```python
import torch

def _softmax(x, axis=-1):
    return torch.softmax(x, dim=axis)
def _gelu(x):
    return torch.nn.functional.gelu(x, approximate="tanh")
def _silu(x):
    return torch.nn.functional.silu(x)
def _sigmoid(x):
    return torch.sigmoid(x)
def _layernorm(x, axis=-1, eps=1e-5):
    m = x.mean(dim=axis, keepdim=True)
    v = x.var(dim=axis, keepdim=True, unbiased=False)
    return (x - m) / torch.sqrt(v + eps)
def _scatter_add(tgt, idx, src, axis=0):
    return tgt.clone().index_add_(axis, idx, src)
def _segment_sum(src, seg, n):
    out = torch.zeros((n,) + src.shape[1:], dtype=src.dtype)
    return out.index_add_(0, seg, src)
def _pad(x, pw):
    flat = tuple(v for pair in reversed(pw) for v in pair)
    return torch.nn.functional.pad(x, flat)

kernel_name = 'sequential_preLN__sliding_block__dense_activation_relu__prompt'

def setup_inputs():

    _w = (lambda a: (lambda t: t.to(torch.bfloat16) if t.is_floating_point() else t)(torch.as_tensor(a)))
    def _A_setup():
        B, S, D = 1, 2048, 640
        return {
            "x": _w((lambda *s: torch.randn(*s, dtype=torch.bfloat16) * 0.05)(B, S, D)),
            "wqkv": _w((lambda *s: torch.randn(*s, dtype=torch.bfloat16) * 0.05)(D, 3 * D)),
            "wo": _w((lambda *s: torch.randn(*s, dtype=torch.bfloat16) * 0.05)(D, D)),
        }
    _A_in = _A_setup()

    def _B_setup():
        B, S, D, Dff = 1, 2048, 640, 1728
        return {
            "x": _w((lambda *s: torch.randn(*s, dtype=torch.bfloat16) * 0.05)(B, S, D)),
            "w1": _w((lambda *s: torch.randn(*s, dtype=torch.bfloat16) * 0.05)(D, Dff)),
            "w2": _w((lambda *s: torch.randn(*s, dtype=torch.bfloat16) * 0.05)(Dff, D)),
        }
    _B_in = _B_setup()

    return {
        "A_x": _A_in["x"],
        "A_wqkv": _A_in["wqkv"],
        "A_wo": _A_in["wo"],
        "B_x": _B_in["x"],
        "B_w1": _B_in["w1"],
        "B_w2": _B_in["w2"],
    }

def reference(A_x, A_wqkv, A_wo, B_x, B_w1, B_w2):
    def _A_ref(x, wqkv, wo):
        B, S, D = x.shape
        H = 32; Dh = D // H; W = 256
        qkv = (lambda x, *d: x.permute(*d))((x @ wqkv).reshape(B, S, 3, H, Dh), 2, 0, 3, 1, 4)
        q, k, v = qkv[0], qkv[1], qkv[2]
        scores = torch.einsum("bhqd,bhkd->bhqk", q, k) * (Dh ** -0.5)
        idx = torch.arange(S)
        mask = (idx[:, None] - idx[None, :] >= 0) & (idx[:, None] - idx[None, :] < W)
        scores = torch.where(mask[None, None], scores, -1e9)
        p = _softmax(scores, axis=-1)
        o = torch.einsum("bhqk,bhkd->bhqd", p, v)
        return (lambda x, *d: x.permute(*d))(o, 0, 2, 1, 3).reshape(B, S, D) @ wo

    def _B_ref(x, w1, w2):
        h = torch.einsum("bsd,df->bsf", x, w1)
        zero = torch.zeros_like(h)
        h = torch.maximum(h, zero)
        return torch.einsum("bsf,fd->bsd", h, w2)

    x = A_x
    h = x + _A_ref(_layernorm(x, axis=-1), A_wqkv, A_wo)
    h2 = h + _B_ref(_layernorm(h, axis=-1), B_w1, B_w2)
    return h2
```

```python
import re

_REG = re.compile(r'^(-?)(abs\()?([vsa])(?:(\d+)|\[(\d+):(\d+)\])\)?$')


def regs_of(tok):
    tok = tok.strip()
    if tok in ('vcc',):
        return [('s', 106), ('s', 107)]
    if tok == 'vcc_lo':
        return [('s', 106)]
    if tok == 'vcc_hi':
        return [('s', 107)]
    if tok == 'exec':
        return [('s', 126), ('s', 127)]
    if tok == 'm0':
        return [('s', 124)]
    m = _REG.match(tok)
    if not m:
        return []
    f = m.group(3)
    if m.group(4) is not None:
        return [(f, int(m.group(4)))]
    return [(f, i) for i in range(int(m.group(5)), int(m.group(6)) + 1)]


TRANS = ('v_exp_f32', 'v_log_f32', 'v_rcp_f32', 'v_rsq_f32', 'v_sqrt_f32', 'v_sin_f32', 'v_cos_f32')


class Ins:
    __slots__ = ('mn', 'kind', 'wr', 'rd', 'srcc', 'ab', 'states', 'wide_store_data', 'passes', 'maskrd')

    def __init__(self):
        self.mn = ''
        self.kind = ''
        self.wr = set()
        self.rd = set()
        self.srcc = set()
        self.ab = set()
        self.states = 1
        self.wide_store_data = set()
        self.passes = 0
        self.maskrd = set()


def parse(text):
    t = text.split(';')[0].strip()
    I = Ins()
    parts = t.split(None, 1)
    mn = parts[0]
    I.mn = mn
    ops = []
    if len(parts) > 1:
        raw = parts[1].split(',')
        for r in raw:
            r = r.strip()
            ops.append(r.split()[0] if r else r)
    R = [regs_of(o) for o in ops]
    if mn == 's_nop':
        I.kind = 'nop'
        I.states = int(ops[0], 0) + 1
        return I
    if mn.startswith('v_mfma'):
        I.kind = 'mfma'
        I.passes = 8 if '32x32' in mn else 4
        I.wr = set(R[0])
        I.ab = set(R[1]) | set(R[2])
        I.srcc = set(R[3]) if len(R) > 3 else set()
        I.rd = I.ab | I.srcc
        return I
    if mn.startswith('ds_read') or mn.startswith('ds_bpermute') or mn.startswith('ds_swizzle'):
        I.kind = 'ds'
        I.wr = set(R[0])
        for r in R[1:]:
            I.rd |= set(r)
        return I
    if mn.startswith('ds_'):
        I.kind = 'ds'
        for r in R:
            I.rd |= set(r)
        return I
    if mn.startswith('buffer_load') or mn.startswith('global_load'):
        I.kind = 'vmem'
        if ' lds' in t:
            for r in R:
                I.rd |= set(r)
            I.rd.add(('s', 124))
            I.kind = 'vmem_lds'
        else:
            I.wr = set(R[0])
            for r in R[1:]:
                I.rd |= set(r)
        return I
    if mn.startswith('buffer_store') or mn.startswith('global_store') or mn.startswith('buffer_atomic') or mn.startswith('global_atomic'):
        I.kind = 'vmem'
        for r in R:
            I.rd |= set(r)
        if 'x4' in mn or 'x3' in mn:
            I.wide_store_data = set(R[0]) if mn.startswith('buffer') else set(R[1])
        return I
    if mn.startswith('v_'):
        I.kind = 'trans' if mn.replace('_e32', '').replace('_e64', '') in TRANS else 'valu'
        if mn.startswith('v_permlane'):
            I.kind = 'permlane'
            I.wr = set(R[0]) | set(R[1])
            I.rd = set(R[0]) | set(R[1])
            return I
        if mn.startswith('v_readfirstlane') or mn.startswith('v_readlane'):
            I.kind = 'readlane'
        I.wr = set(R[0])
        for r in R[1:]:
            I.rd |= set(r)
        if mn.startswith('v_cndmask'):
            I.maskrd = set(R[3]) if len(R) > 3 else {('s', 106), ('s', 107)}
            I.rd |= I.maskrd
        if mn.startswith('v_fmac') or mn.startswith('v_dot2c'):
            I.rd |= set(R[0])
        if mn.startswith('v_add_co') or mn.startswith('v_addc_co') or mn.startswith('v_sub_co'):
            I.wr |= set(R[1])
        return I
    if mn.startswith('s_'):
        I.kind = 'salu'
        if mn.startswith(('s_cmp', 's_cbranch', 's_branch', 's_waitcnt', 's_barrier', 's_setprio', 's_endpgm', 's_sleep')):
            for r in R:
                I.rd |= set(r)
            return I
        if R:
            I.wr = set(R[0])
            for r in R[1:]:
                I.rd |= set(r)
        if mn.startswith('s_and_saveexec') or mn.startswith('s_or_saveexec'):
            I.wr |= {('s', 126), ('s', 127)}
        return I
    raise ValueError('cannot parse: ' + text)


VALUISH = ('valu', 'trans', 'permlane', 'readlane')


def need_states(P, C):
    n = 0
    pv = P.kind in VALUISH
    cv = C.kind in VALUISH
    pw_v = {r for r in P.wr if r[0] in 'va'}
    pw_s = {r for r in P.wr if r[0] == 's'}
    if pv and C.kind == 'mfma' and (pw_v & C.rd):
        n = max(n, 2)
    if P.kind == 'mfma':
        D = P.wr
        big = {4: 8, 8: 12}[P.passes]
        ovl = {4: 6, 8: 10}[P.passes]
        if C.kind == 'mfma':
            if D & C.ab:
                n = max(n, big)
            if D & C.srcc:
                if not (C.srcc == D and C.passes == P.passes):
                    n = max(n, ovl)
            elif D & C.wr:
                n = max(n, ovl)
        else:
            if (D & C.rd) or (D & C.wr):
                n = max(n, big)
        if cv and (P.srcc & C.wr):
            n = max(n, {4: 3, 8: 7}[P.passes])
    if pv:
        if cv and (pw_s & C.rd):
            n = max(n, 2)
        if C.kind in ('vmem', 'vmem_lds') and (pw_s & C.rd):
            n = max(n, 5)
        if C.kind == 'readlane' and (pw_v & C.rd):
            n = max(n, 1)
        if C.kind == 'permlane' and (pw_v & C.rd):
            n = max(n, 2)
        if P.kind == 'trans' and cv and C.kind != 'trans' and (pw_v & C.rd):
            n = max(n, 1)
        if P.kind == 'trans' and C.kind == 'mfma' and (pw_v & C.rd):
            n = max(n, 2)
        if P.kind == 'readlane' and C.kind == 'salu' and (pw_s & C.rd):
            n = max(n, 1)
    if P.kind == 'salu' and ('s', 124) in P.wr and C.kind == 'vmem_lds':
        n = max(n, 1)
    if P.wide_store_data and (P.wide_store_data & C.wr):
        n = max(n, 2)
    return n


class Asm:
    def __init__(self):
        self.lines = []
        self.hist = []
        self.nops_inserted = 0

    def raw(self, text):
        self.lines.append(text)

    def comment(self, text):
        self.lines.append('    ; ' + text)

    def label(self, name):
        self.lines.append(name + ':')
        self.hist = []

    def flush_hazards(self, n=12):
        self('s_nop %d' % (n - 1))

    def __call__(self, text):
        text = text.replace(' lds sc1', ' sc1 lds')
        I = parse(text)
        if I.kind != 'nop':
            need = 0
            dist = 0
            for P in reversed(self.hist):
                n = need_states(P, I)
                if n > dist:
                    need = max(need, n - dist)
                dist += P.states
                if dist > 24:
                    break
            while need > 0:
                k = min(need, 16)
                self.lines.append('    s_nop %d' % (k - 1))
                N = Ins()
                N.kind = 'nop'
                N.states = k
                self.hist.append(N)
                self.nops_inserted += 1
                need -= k
        self.lines.append('    ' + text)
        self.hist.append(I)
        if len(self.hist) > 40:
            self.hist = self.hist[-40:]

    def text(self):
        return '\n'.join(self.lines) + '\n'


class Regs:
    def __init__(self, start, limit, f):
        self.n = start
        self.limit = limit
        self.f = f
        self.hi = start

    def alloc(self, count=1, align=1):
        if count > 1 and align < 2:
            align = 2
        self.n = (self.n + align - 1) // align * align
        b = self.n
        self.n += count
        self.hi = max(self.hi, self.n)
        assert self.n <= self.limit, 'out of %s regs' % self.f
        return b


def v(b, n=1):
    return 'v%d' % b if n == 1 else 'v[%d:%d]' % (b, b + n - 1)


def s(b, n=1):
    return 's%d' % b if n == 1 else 's[%d:%d]' % (b, b + n - 1)
```

```python
import math
import struct
from asmlib import Asm, Regs, v, s
from gemm import build_srd, KA, WS_QKV, WS_O, QKV_BYTES


def f32bits(x):
    return struct.unpack('<I', struct.pack('<f', x))[0]


def gen_attn(a):
    name = 'attn_kernel'
    L = lambda x: '%s_%s' % (name, x)
    KIMG, V0, V1 = 0, 32768, 49152
    LDS = 57344
    HS = 81920
    KBASE = 32 * HS
    VBASE = 64 * HS
    sQ, sO = 4, 8
    pWS = 12
    s_head, s_qb, s_wave, s_t0, s_t1, s_hk, s_c, s_nm = 14, 15, 16, 17, 18, 19, 20, 21
    sM = [22, 24, 26, 28]
    s_m3, s_m2 = 30, 32

    a.raw('.p2align 8')
    a.raw('.globl %s' % name)
    a.raw('.type %s,@function' % name)
    a.label(name)
    a('s_cmp_ge_u32 s2, 256')
    a('s_cbranch_scc1 %s' % L('end'))
    a('s_load_dwordx2 %s, s[0:1], %d' % (s(pWS, 2), KA['ws']))
    a('s_and_b32 %s, s2, 7' % s(s_t0))
    a('s_lshr_b32 %s, s2, 3' % s(s_t1))
    a('s_lshl_b32 %s, %s, 2' % (s(s_head), s(s_t0)))
    a('s_and_b32 %s, %s, 3' % (s(s_t0), s(s_t1)))
    a('s_add_u32 %s, %s, %s' % (s(s_head), s(s_head), s(s_t0)))
    a('s_lshr_b32 %s, %s, 2' % (s(s_qb), s(s_t1)))
    a('v_lshrrev_b32 v1, 6, v0')
    a('v_and_b32 v0, 63, v0')
    a('v_readfirstlane_b32 %s, v1' % s(s_wave))
    R = Regs(1, 256, 'v')
    vg, vi, vt0, vt1, vt2, vt3, vg2 = [R.alloc() for _ in range(7)]
    a('v_lshrrev_b32 %s, 4, v0' % v(vg))
    a('v_and_b32 %s, 15, v0' % v(vi))
    a('v_min_u32 %s, 2, %s' % (v(vg2), v(vg)))
    a('s_mul_i32 %s, %s, %d' % (s(s_hk), s(s_head), HS))
    a('s_mul_i32 %s, %s, %d' % (s(s_t0), s(s_qb), 256 * 40))
    a('s_add_u32 %s, %s, %s' % (s(s_hk), s(s_hk), s(s_t0)))
    a('s_sub_u32 %s, %s, %d' % (s(s_hk), s(s_hk), 256 * 40))
    a('s_waitcnt lgkmcnt(0)')
    build_srd(a, sQ, pWS, WS_QKV, QKV_BYTES + 64)
    build_srd(a, sO, pWS, WS_O, 2048 * 1280)
    a('v_mul_u32_u24 %s, 40, %s' % (v(vt0), v(vi)))
    a('v_lshl_add_u32 %s, %s, 4, %s' % (v(vt0), v(vg2), v(vt0)))
    a('s_mul_i32 %s, %s, %d' % (s(s_t0), s(s_wave), 4 * 640))
    a('s_add_u32 %s, %s, %s' % (s(s_t0), s(s_t0), s(s_hk)))
    a('s_add_u32 %s, %s, %d' % (s(s_t0), s(s_t0), KBASE))
    a('s_lshl_b32 %s, %s, 12' % (s(s_t1), s(s_wave)))
    for j in range(4):
        a('s_add_u32 m0, %s, %d' % (s(s_t1), KIMG + j * 1024))
        a('buffer_load_dwordx4 %s, %s, %s offen lds' % (v(vt0), s(sQ, 4), s(s_t0)))
        if j < 3:
            a('s_add_u32 %s, %s, 640' % (s(s_t0), s(s_t0)))
    a('v_lshrrev_b32 %s, 1, v0' % v(vt1))
    a('v_mul_u32_u24 %s, 40, %s' % (v(vt1), v(vt1)))
    a('v_and_b32 %s, 1, v0' % v(vt2))
    a('v_lshl_add_u32 %s, %s, 4, %s' % (v(vt1), v(vt2), v(vt1)))
    a('s_mul_i32 %s, %s, %d' % (s(s_t0), s(s_wave), 64 * 40))
    a('s_add_u32 %s, %s, %s' % (s(s_t0), s(s_t0), s(s_hk)))
    a('s_add_u32 %s, %s, %d' % (s(s_t0), s(s_t0), VBASE))
    a('s_lshl_b32 %s, %s, 11' % (s(s_t1), s(s_wave)))
    for j in range(2):
        a('s_add_u32 m0, %s, %d' % (s(s_t1), V0 + j * 1024))
        a('buffer_load_dwordx4 %s, %s, %s offen lds' % (v(vt1), s(sQ, 4), s(s_t0)))
        if j == 0:
            a('s_add_u32 %s, %s, %d' % (s(s_t0), s(s_t0), 32 * 40))
    a('s_add_u32 %s, %s, %d' % (s(s_t0), s(s_t0), 32 - 32 * 40))
    a('v_mul_u32_u24 %s, 40, v0' % v(vt2))
    a('s_lshl_b32 %s, %s, 10' % (s(s_t1), s(s_wave)))
    a('s_add_u32 m0, %s, %d' % (s(s_t1), V1))
    a('buffer_load_dwordx4 %s, %s, %s offen lds' % (v(vt2), s(sQ, 4), s(s_t0)))
    fQ = [R.alloc(4, 4) for _ in range(2)]
    a('s_mul_i32 %s, %s, %d' % (s(s_t0), s(s_wave), 32 * 40))
    a('s_add_u32 %s, %s, %s' % (s(s_t0), s(s_t0), s(s_hk)))
    a('s_add_u32 %s, %s, %d' % (s(s_t0), s(s_t0), 256 * 40))
    for aa in range(2):
        a('buffer_load_dwordx4 %s, %s, %s, %s offen offset:%d' % (v(fQ[aa], 4), v(vt0), s(sQ, 4), s(s_t0), aa * 640))
    for r in range(4):
        a('v_lshl_add_u32 %s, %s, 2, %d' % (v(vt3), v(vg), r))
        a('v_cmp_le_u32 %s, %s, %s' % (s(sM[r], 2), v(vt3), v(vi)))
    a('v_cmp_eq_u32 %s, 3, %s' % (s(s_m3, 2), v(vg)))
    a('v_cmp_le_u32 %s, 2, %s' % (s(s_m2, 2), v(vg)))
    vML = [R.alloc() for _ in range(2)]
    vMH = [R.alloc() for _ in range(2)]
    vz = R.alloc()
    a('v_mov_b32 %s, 0' % v(vz))
    a('v_mov_b32 %s, 0xffff' % v(vt3))
    vhi16 = R.alloc()
    a('v_mov_b32 %s, 0xffff0000' % v(vhi16))
    for h in range(2):
        a('v_cndmask_b32 %s, %s, %s, %s' % (v(vML[h]), v(vz), v(vt3), s(sM[2 * h], 2)))
        a('v_cndmask_b32 %s, %s, %s, %s' % (v(vMH[h]), v(vz), v(vhi16), s(sM[2 * h + 1], 2)))
        a('v_or_b32 %s, %s, %s' % (v(vML[h]), v(vML[h]), v(vMH[h])))
        a('v_not_b32 %s, %s' % (v(vMH[h]), v(vML[h])))
    a('s_mov_b32 %s, 0x%x' % (s(s_c), f32bits(20 ** -0.5 * math.log2(math.e))))
    vKa, vV0a, vV1a, vP = R.alloc(), R.alloc(), R.alloc(), R.alloc()
    a('s_lshl_b32 %s, %s, 11' % (s(s_t0), s(s_wave)))
    a('v_lshlrev_b32 %s, 4, v0' % v(vKa))
    a('v_add_u32 %s, %s, %s' % (v(vKa), s(s_t0), v(vKa)))
    a('s_lshl_b32 %s, %s, 10' % (s(s_t0), s(s_wave)))
    a('s_add_u32 %s, %s, %d' % (s(s_t0), s(s_t0), V0))
    a('v_lshlrev_b32 %s, 3, v0' % v(vV0a))
    a('v_add_u32 %s, %s, %s' % (v(vV0a), s(s_t0), v(vV0a)))
    a('s_lshl_b32 %s, %s, 9' % (s(s_t0), s(s_wave)))
    a('s_add_u32 %s, %s, %d' % (s(s_t0), s(s_t0), V1))
    a('v_lshrrev_b32 %s, 2, v0' % v(vV1a))
    a('v_lshlrev_b32 %s, 4, %s' % (v(vV1a), v(vV1a)))
    a('v_and_b32 %s, 1, v0' % v(vt3))
    a('v_lshl_add_u32 %s, %s, 3, %s' % (v(vV1a), v(vt3), v(vV1a)))
    a('v_add_u32 %s, %s, %s' % (v(vV1a), s(s_t0), v(vV1a)))
    a('s_lshl_b32 %s, %s, 10' % (s(s_t0), s(s_wave)))
    a('s_add_u32 %s, %s, %d' % (s(s_t0), s(s_t0), V1 + 8))
    a('v_lshlrev_b32 %s, 4, v0' % v(vP))
    a('v_add_u32 %s, %s, %s' % (v(vP), s(s_t0), v(vP)))
    vone = R.alloc(2)
    a('v_mov_b32 %s, 0x3f80' % v(vone))
    a('v_mov_b32 %s, 0' % v(vone + 1))
    a('s_waitcnt vmcnt(0)')
    a('ds_write_b64 %s, %s' % (v(vP), v(vone, 2)))
    for aa in range(2):
        for r in range(2):
            a('v_cndmask_b32 %s, %s, %s, %s' % (v(fQ[aa] + r), v(fQ[aa] + r), v(vz), s(s_m3, 2)))
        for r in range(2, 4):
            a('v_cndmask_b32 %s, %s, %s, %s' % (v(fQ[aa] + r), v(fQ[aa] + r), v(vz), s(s_m2, 2)))
    a('s_waitcnt lgkmcnt(0)')
    a('s_barrier')

    Sreg = [[R.alloc(4, 4) for t in range(17)] for aa in range(2)]
    NKB = 6
    fK = [R.alloc(4, 4) for _ in range(NKB)]
    for t in range(min(NKB, 18)):
        a('ds_read_b128 %s, %s offset:%d' % (v(fK[t % NKB], 4), v(vKa), t * 1024))
    for t in range(18):
        outstanding_after = min(17, t + NKB - 1) - t
        a('s_waitcnt lgkmcnt(%d)' % outstanding_after)
        if t <= 16:
            a('v_mfma_f32_16x16x32_bf16 %s, %s, %s, 0' % (v(Sreg[0][t], 4), v(fK[t % NKB], 4), v(fQ[0], 4)))
        if t >= 1:
            a('v_mfma_f32_16x16x32_bf16 %s, %s, %s, 0' % (v(Sreg[1][t - 1], 4), v(fK[t % NKB], 4), v(fQ[1], 4)))
        if t + NKB < 18:
            a('ds_read_b128 %s, %s offset:%d' % (v(fK[t % NKB], 4), v(vKa), (t + NKB) * 1024))
    a('s_nop 7')
    a('s_cmp_lg_u32 %s, 0' % s(s_qb))
    a('s_cbranch_scc1 %s' % L('nomask'))
    for aa in range(2):
        a('s_lshl_b32 %s, %s, 1' % (s(s_nm), s(s_wave)))
        a('s_sub_u32 %s, %d, %s' % (s(s_nm), 16 - aa, s(s_nm)))
        for t in range(16):
            a('s_cmp_gt_u32 %s, %d' % (s(s_nm), t))
            a('s_cbranch_scc0 %s' % L('mdone%d' % aa))
            for r in range(4):
                a('v_mov_b32 %s, 0xf149f2ca' % v(Sreg[aa][t] + r))
        a.label(L('mdone%d' % aa))
    a.label(L('nomask'))

    vmx, vmx2 = R.alloc(), R.alloc()
    Oacc = [[R.alloc(4, 4) for dt in range(2)] for aa in range(2)]

    def softmax(aa):
        Sg = Sreg[aa]
        for r in range(4):
            a('v_cndmask_b32 %s, %s, %s, %s' % (v(Sg[16] + r), v(Sg[0] + r), v(Sg[16] + r), s(sM[r], 2)))
        vals = [Sg[t] + r for t in range(1, 17) for r in range(4)]
        a('v_max3_f32 %s, %s, %s, %s' % (v(vmx), v(vals[0]), v(vals[1]), v(vals[2])))
        a('v_max3_f32 %s, %s, %s, %s' % (v(vmx2), v(vals[3]), v(vals[4]), v(vals[5])))
        k = 6
        tog = 0
        while k + 1 < len(vals):
            d = vmx if tog == 0 else vmx2
            a('v_max3_f32 %s, %s, %s, %s' % (v(d), v(d), v(vals[k]), v(vals[k + 1])))
            k += 2
            tog ^= 1
        assert k == len(vals)
        a('v_max_f32 %s, %s, %s' % (v(vmx), v(vmx), v(vmx2)))
        a('v_mov_b32 %s, %s' % (v(vmx2), v(vmx)))
        a('v_permlane32_swap_b32 %s, %s' % (v(vmx), v(vmx2)))
        a('v_max_f32 %s, %s, %s' % (v(vmx), v(vmx), v(vmx2)))
        a('v_mov_b32 %s, %s' % (v(vmx2), v(vmx)))
        a('v_permlane16_swap_b32 %s, %s' % (v(vmx), v(vmx2)))
        a('v_max_f32 %s, %s, %s' % (v(vmx), v(vmx), v(vmx2)))
        a('v_mul_f32 %s, %s, %s' % (v(vmx), s(s_c), v(vmx)))
        if aa == 0:
            dst = {t: Sg[t & ~1] + 2 * (t & 1) for t in range(2, 16)}
            dst[1] = Sg[0] + 2
            dhi, dlo = Sg[0], Sg[16]
        else:
            dst = {t: Sg[t - ((t - 1) & 1)] + 2 * ((t - 1) & 1) for t in range(1, 15)}
            dst[15] = Sg[15]
            dhi, dlo = Sg[0], Sg[15] + 2
        order = list(range(1, 16)) + [16]
        for t in order:
            b = Sg[t]
            for r in range(4):
                a('v_fma_f32 %s, %s, %s, -%s' % (v(b + r), v(b + r), s(s_c), v(vmx)))
            for r in range(4):
                a('v_exp_f32 %s, %s' % (v(b + r), v(b + r)))
            if t < 16:
                a('v_cvt_pk_bf16_f32 %s, %s, %s' % (v(dst[t]), v(b), v(b + 1)))
                a('v_cvt_pk_bf16_f32 %s, %s, %s' % (v(dst[t] + 1), v(b + 2), v(b + 3)))
            else:
                a('v_cvt_pk_bf16_f32 %s, %s, %s' % (v(vt0), v(b), v(b + 1)))
                a('v_cvt_pk_bf16_f32 %s, %s, %s' % (v(vt1), v(b + 2), v(b + 3)))
                a('v_and_b32 %s, %s, %s' % (v(dlo), v(vt0), v(vML[0])))
                a('v_and_b32 %s, %s, %s' % (v(dlo + 1), v(vt1), v(vML[1])))
                a('v_and_b32 %s, %s, %s' % (v(dhi), v(vt0), v(vMH[0])))
                a('v_and_b32 %s, %s, %s' % (v(dhi + 1), v(vt1), v(vMH[1])))

    softmax(0)
    softmax(1)

    Vb = [(fK[0], fK[1]), (fK[2], fK[3]), (fK[4], fK[5])]

    def vreads(slot, kta, ktb):
        for dt in range(2):
            base, stride = (vV0a, 512) if dt == 0 else (vV1a, 256)
            a('ds_read_b64_tr_b16 %s, %s offset:%d' % (v(Vb[slot][dt], 2), v(base), kta * stride))
            a('ds_read_b64_tr_b16 %s, %s offset:%d' % (v(Vb[slot][dt] + 2, 2), v(base), ktb * stride))

    steps = [(0, 1)] + [(t, t + 1) for t in range(2, 16, 2)] + [(16, 17)]
    vreads(0, *steps[0])
    vreads(1, *steps[1])
    first = [[True, True], [True, True]]

    def pv(aa, dt, vreg, preg, wide):
        cc = '0' if first[aa][dt] else v(Oacc[aa][dt], 4)
        first[aa][dt] = False
        if wide:
            a('v_mfma_f32_16x16x32_bf16 %s, %s, %s, %s' % (v(Oacc[aa][dt], 4), v(vreg, 4), v(preg, 4), cc))
        else:
            a('v_mfma_f32_16x16x16_bf16 %s, %s, %s, %s' % (v(Oacc[aa][dt], 4), v(vreg, 2), v(preg, 2), cc))

    for si, (ta, tb) in enumerate(steps):
        if si + 2 < len(steps):
            vreads((si + 2) % 3, *steps[si + 2])
        nafter = min(len(steps) - 1, si + 2) - si
        a('s_waitcnt lgkmcnt(%d)' % (4 * nafter))
        sl = Vb[si % 3]
        for dt in range(2):
            if si == 0:
                pv(0, dt, sl[dt], Sreg[0][0], True)
                pv(1, dt, sl[dt] + 2, Sreg[1][0], False)
            elif si == len(steps) - 1:
                pv(0, dt, sl[dt], Sreg[0][16], False)
                pv(1, dt, sl[dt], Sreg[1][15], True)
            else:
                pv(0, dt, sl[dt], Sreg[0][ta], True)
                pv(1, dt, sl[dt], Sreg[1][ta - 1], True)

    vo = R.alloc()
    a('s_lshl_b32 %s, %s, 8' % (s(s_t0), s(s_qb)))
    a('s_lshl_b32 %s, %s, 5' % (s(s_t1), s(s_wave)))
    a('s_add_u32 %s, %s, %s' % (s(s_t0), s(s_t0), s(s_t1)))
    a('v_add_u32 %s, %s, %s' % (v(vo), s(s_t0), v(vi)))
    a('v_mul_u32_u24 %s, 1280, %s' % (v(vo), v(vo)))
    a('v_lshl_add_u32 %s, %s, 3, %s' % (v(vo), v(vg), v(vo)))
    a('s_mul_i32 %s, %s, 40' % (s(s_t0), s(s_head)))
    a('v_add_u32 %s, %s, %s' % (v(vo), s(s_t0), v(vo)))
    a('s_mov_b32 %s, %d' % (s(s_t1), 16 * 1280))
    for aa in range(2):
        O0, O1 = Oacc[aa]
        a('v_mov_b32 %s, %s' % (v(vt0), v(O1)))
        a('v_mov_b32 %s, %s' % (v(vt1), v(O1)))
        a('v_permlane16_swap_b32 %s, %s' % (v(vt0), v(vt1)))
        a('v_mov_b32 %s, %s' % (v(vt0), v(vt1)))
        a('v_permlane32_swap_b32 %s, %s' % (v(vt0), v(vt1)))
        a('v_rcp_f32 %s, %s' % (v(vt0), v(vt0)))
        for r in range(4):
            a('v_mul_f32 %s, %s, %s' % (v(O0 + r), v(vt0), v(O0 + r)))
            a('v_mul_f32 %s, %s, %s' % (v(O1 + r), v(vt0), v(O1 + r)))
        a('v_cvt_pk_bf16_f32 %s, %s, %s' % (v(O0), v(O0), v(O0 + 1)))
        a('v_cvt_pk_bf16_f32 %s, %s, %s' % (v(O0 + 1), v(O0 + 2), v(O0 + 3)))
        a('v_cvt_pk_bf16_f32 %s, %s, %s' % (v(O1), v(O1), v(O1 + 1)))
        a('v_cvt_pk_bf16_f32 %s, %s, %s' % (v(O1 + 1), v(O1 + 2), v(O1 + 3)))
        so = '0' if aa == 0 else s(s_t1)
        a('buffer_store_dwordx2 %s, %s, %s, %s offen' % (v(O0, 2), v(vo), s(sO, 4), so))
        a('s_mov_b64 exec, 0xffff')
        a('buffer_store_dwordx2 %s, %s, %s, %s offen offset:32' % (v(O1, 2), v(vo), s(sO, 4), so))
        a('s_mov_b64 exec, -1')
    a.label(L('end'))
    a('s_endpgm')
    return dict(name=name, vgpr=R.hi, sgpr=40, lds=LDS, block=512, grid=256)
```

```python
from asmlib import Asm, Regs, v, s

WS_QKV = 0
WS_O = 0x800000
WS_H = 0xB00000
WS_H1 = 0x1000000
QKV_BYTES = 96 * 81920

KA = dict(x=0, wqkv=8, wo=16, bx=24, w1=32, w2=40, out=48, dbg=56, ws=64)


def build_srd(a, sr, sptr, off, nbytes):
    if off:
        a('s_add_u32 %s, %s, 0x%x' % (s(sr), s(sptr), off))
        a('s_addc_u32 %s, %s, 0' % (s(sr + 1), s(sptr + 1)))
        a('s_and_b32 %s, %s, 0xffff' % (s(sr + 1), s(sr + 1)))
    else:
        a('s_mov_b32 %s, %s' % (s(sr), s(sptr)))
        a('s_and_b32 %s, %s, 0xffff' % (s(sr + 1), s(sptr + 1)))
    a('s_mov_b32 %s, 0x%x' % (s(sr + 2), nbytes))
    a('s_mov_b32 %s, 0x20000' % s(sr + 3))


def bf16_round(a, dst, src):
    a('v_cvt_pk_bf16_f32 %s, %s, %s' % (v(dst), v(src), v(src)))
    a('v_lshlrev_b32 %s, 16, %s' % (v(dst), v(dst)))


def gen_gemm(a, c):
    name = c['name']
    BM, BN, K, N = c['BM'], c['BN'], c['K'], c['N']
    WM, WN = c['WM'], c['WN']
    D = c['D']
    LN = c.get('LN', False)
    epi = c['epi']
    MT = BM // 16 // WM
    NT = BN // 16 // WN
    S = K // 64
    G = BN // 8
    rowW = BN * 2
    XB = BM * 128
    WB = 64 * rowW
    SLOT = XB + WB
    STAT = D * SLOT
    SROW = STAT
    SCOL = STAT + BM * 32
    lds_total = SCOL + 4 * BN * 4 if LN else STAT
    XOR = (rowW % 256 == 0)
    strideX = K * 2
    strideW = N * 2
    nX = BM // 32
    nW = (16 * G + 63) // 64
    lastmask = (16 * G) % 64
    nDMA = nX + nW
    L = lambda x: '%s_%s' % (name, x)

    sX, sW, sO, sR = 4, 8, 12, 16
    pX, pW, pO, pR = 20, 22, 24, 26
    s_rb, s_cb, s_wave, s_t0, s_t1, s_kx, s_kw, s_ldsX, s_ldsW, s_ones = 28, 29, 30, 31, 32, 33, 34, 35, 36, 37
    s_wm, s_wn, s_tok0, s_col0 = 38, 39, 40, 41
    s_ex = 42

    a.raw('.p2align 8')
    a.raw('.globl %s' % name)
    a.raw('.type %s,@function' % name)
    a.label(name)
    a('s_cmp_ge_u32 s2, 256')
    a('s_cbranch_scc1 %s' % L('end'))
    a('s_load_dwordx2 %s, s[0:1], %d' % (s(pX, 2), KA[c['x'][0]]))
    a('s_load_dwordx2 %s, s[0:1], %d' % (s(pW, 2), KA[c['w']]))
    a('s_load_dwordx2 %s, s[0:1], %d' % (s(pO, 2), KA[c['o'][0]]))
    if epi == 'resid':
        a('s_load_dwordx2 %s, s[0:1], %d' % (s(pR, 2), KA[c['r'][0]]))
    RBX, CBX = c['rb_per_xcd'], c['cb_per_xcd']
    a('s_and_b32 %s, s2, 7' % s(s_t0))
    a('s_lshr_b32 %s, s2, 3' % s(s_t1))
    a('s_lshr_b32 %s, %s, 1' % (s(s_rb), s(s_t0)))
    a('s_mul_i32 %s, %s, %d' % (s(s_rb), s(s_rb), RBX))
    a('s_and_b32 %s, %s, %d' % (s(s_cb), s(s_t1), RBX - 1))
    a('s_add_u32 %s, %s, %s' % (s(s_rb), s(s_rb), s(s_cb)))
    a('s_and_b32 %s, %s, 1' % (s(s_cb), s(s_t0)))
    a('s_mul_i32 %s, %s, %d' % (s(s_cb), s(s_cb), CBX))
    a('s_lshr_b32 %s, %s, %d' % (s(s_t1), s(s_t1), RBX.bit_length() - 1))
    a('s_add_u32 %s, %s, %s' % (s(s_cb), s(s_cb), s(s_t1)))
    a('s_cmp_ge_u32 %s, %d' % (s(s_cb), c['NB']))
    a('s_cbranch_scc1 %s' % L('end'))
    a('v_lshrrev_b32 v1, 6, v0')
    a('v_and_b32 v0, 63, v0')
    a('v_readfirstlane_b32 %s, v1' % s(s_wave))
    a('s_mul_i32 %s, %s, %d' % (s(s_tok0), s(s_rb), BM))
    a('s_mul_i32 %s, %s, %d' % (s(s_col0), s(s_cb), BN))
    a('s_waitcnt lgkmcnt(0)')
    build_srd(a, sX, pX, c['x'][1], 2048 * strideX)
    build_srd(a, sW, pW, 0, K * strideW)
    build_srd(a, sO, pO, c['o'][1], c['obytes'])
    if epi == 'resid':
        build_srd(a, sR, pR, c['r'][1], 2048 * 1280)
    a('s_cmp_ge_u32 %s, 4' % s(s_wave))
    a('s_cbranch_scc1 %s' % L('loader'))

    R = Regs(1, 256, 'v')
    vg, vi, vt0, vt1, vt2, vt3 = [R.alloc() for _ in range(6)]
    a('v_lshrrev_b32 %s, 4, v0' % v(vg))
    a('v_and_b32 %s, 15, v0' % v(vi))
    if WN == 1:
        a('s_mov_b32 %s, %s' % (s(s_wm), s(s_wave)))
        a('s_mov_b32 %s, 0' % s(s_wn))
    else:
        assert WN == 2
        a('s_lshr_b32 %s, %s, 1' % (s(s_wm), s(s_wave)))
        a('s_and_b32 %s, %s, 1' % (s(s_wn), s(s_wave)))
    vXa = [R.alloc() for _ in range(2)]
    vXs = [R.alloc() for _ in range(2)]
    a('s_mul_i32 %s, %s, %d' % (s(s_t0), s(s_wm), MT * 16 * 128))
    a('v_lshrrev_b32 %s, 1, %s' % (v(vt0), v(vi)))
    a('v_lshlrev_b32 %s, 7, %s' % (v(vt1), v(vi)))
    a('v_add_u32 %s, %s, %s' % (v(vt1), s(s_t0), v(vt1)))
    for ks in range(2):
        a('v_add_u32 %s, %d, %s' % (v(vt2), 4 * ks, v(vg)))
        a('v_xor_b32 %s, %s, %s' % (v(vt2), v(vt2), v(vt0)))
        a('v_lshl_add_u32 %s, %s, 4, %s' % (v(vXa[ks]), v(vt2), v(vt1)))
    nWa = NT if XOR else 1
    vWa = [R.alloc() for _ in range(nWa)]
    vWs = [R.alloc() for _ in range(nWa)]
    a('v_lshrrev_b32 %s, 2, %s' % (v(vt0), v(vi)))
    a('v_and_b32 %s, 1, %s' % (v(vt1), v(vg)))
    a('v_lshl_add_u32 %s, %s, 2, %s' % (v(vt0), v(vt1), v(vt0)))
    a('v_lshrrev_b32 %s, 1, %s' % (v(vt1), v(vg)))
    a('v_lshl_add_u32 %s, %s, 4, %s' % (v(vt1), v(vt1), v(vt0)))
    a('v_mul_u32_u24 %s, %d, %s' % (v(vt1), rowW, v(vt1)))
    a('v_and_b32 %s, 1, %s' % (v(vt2), v(vi)))
    a('v_lshl_add_u32 %s, %s, 3, %s' % (v(vt1), v(vt2), v(vt1)))
    a('v_bfe_u32 %s, %s, 1, 1' % (v(vt2), v(vi)))
    a('v_lshl_add_u32 %s, %s, 4, %s' % (v(vt1), v(vt2), v(vt1)))
    a('v_add_u32 %s, %d, %s' % (v(vt1), XB, v(vt1)))
    if XOR:
        a('v_lshlrev_b32 %s, 1, %s' % (v(vt0), v(vt0)))
        for nt in range(NT):
            a('s_mul_i32 %s, %s, %d' % (s(s_t0), s(s_wn), 2 * NT))
            a('s_add_u32 %s, %s, %d' % (s(s_t0), s(s_t0), 2 * nt))
            a('v_xor_b32 %s, %s, %s' % (v(vt2), s(s_t0), v(vt0)))
            a('v_lshl_add_u32 %s, %s, 4, %s' % (v(vWa[nt]), v(vt2), v(vt1)))
    else:
        a('s_mul_i32 %s, %s, %d' % (s(s_t0), s(s_wn), NT * 32))
        a('v_add_u32 %s, %s, %s' % (v(vWa[0]), s(s_t0), v(vt1)))

    vOut = None
    vRes = None
    if epi == 'resid':
        assert MT == 1 and WN == 1
        vOut = R.alloc()
        vRes = [R.alloc(2) for _ in range(NT)]
        a('s_lshl_b32 %s, %s, 4' % (s(s_t0), s(s_wave)))
        a('s_add_u32 %s, %s, %s' % (s(s_t0), s(s_t0), s(s_tok0)))
        a('v_add_u32 %s, %s, %s' % (v(vt0), s(s_t0), v(vi)))
        a('v_mul_u32_u24 %s, 1280, %s' % (v(vt0), v(vt0)))
        a('s_lshl_b32 %s, %s, 1' % (s(s_t0), s(s_col0)))
        a('v_lshl_add_u32 %s, %s, 3, %s' % (v(vt0), v(vg), v(vt0)))
        a('v_add_u32 %s, %s, %s' % (v(vOut), s(s_t0), v(vt0)))
        for nt in range(NT):
            a('buffer_load_dwordx2 %s, %s, %s, 0 offen offset:%d' % (v(vRes[nt], 2), v(vOut), s(sR, 4), nt * 32))

    acc = [[R.alloc(4, 4) for nt in range(NT)] for mt in range(MT)]
    fX = [[R.alloc(4, 4) for mt in range(MT)] for _ in range(2)]
    fW = [[R.alloc(4, 4) for nt in range(NT)] for _ in range(2)]
    nreads = MT + 2 * NT

    def addr(st):
        base = (st % D) * SLOT
        for ks in range(2):
            a('v_add_u32 %s, 0x%x, %s' % (v(vXs[ks]), base, v(vXa[ks])))
        for j in range(nWa):
            a('v_add_u32 %s, 0x%x, %s' % (v(vWs[j]), base, v(vWa[j])))

    def reads(setn, ks):
        for mt in range(MT):
            a('ds_read_b128 %s, %s offset:%d' % (v(fX[setn][mt], 4), v(vXs[ks]), mt * 2048))
        for nt in range(NT):
            for hf in range(2):
                off = (32 * ks + 8 * hf) * rowW + (0 if XOR else nt * 32)
                a('ds_read_b64_tr_b16 %s, %s offset:%d' % (v(fW[setn][nt] + 2 * hf, 2), v(vWs[nt if XOR else 0]), off))

    def mfmas(setn, first):
        for nt in range(NT):
            for mt in range(MT):
                cc = '0' if first else v(acc[mt][nt], 4)
                a('v_mfma_f32_16x16x32_bf16 %s, %s, %s, %s' % (v(acc[mt][nt], 4), v(fW[setn][nt], 4), v(fX[setn][mt], 4), cc))

    addr(0)
    a('s_barrier')
    reads(0, 0)
    for st in range(S):
        reads(1, 1)
        a('s_waitcnt lgkmcnt(%d)' % min(15, nreads))
        mfmas(0, st == 0)
        a('s_waitcnt lgkmcnt(0)')
        if st + 1 < S:
            addr(st + 1)
            a('s_barrier')
            reads(0, 0)
        mfmas(1, False)

    if LN:
        a('s_barrier')
        vmean = [R.alloc() for _ in range(MT)]
        vrinv = [R.alloc() for _ in range(MT)]
        vcs = [R.alloc(4, 4) for _ in range(NT)]
        tmp = fX[0][0]
        T0, T1 = fW[0][0], fW[0][1]
        a('s_mul_i32 %s, %s, %d' % (s(s_t0), s(s_wm), MT * 16 * 32))
        a('v_lshlrev_b32 %s, 5, %s' % (v(vt0), v(vi)))
        a('v_add_u32 %s, %s, %s' % (v(vt0), s(s_t0), v(vt0)))
        a('v_add_u32 %s, 0x%x, %s' % (v(vt0), SROW, v(vt0)))
        a('s_mov_b32 %s, 0x3acccccd' % s(s_t1))
        for mt in range(MT):
            a('ds_read_b128 %s, %s offset:%d' % (v(T0, 4), v(vt0), mt * 512))
            a('ds_read_b128 %s, %s offset:%d' % (v(T1, 4), v(vt0), mt * 512 + 16))
            a('s_waitcnt lgkmcnt(0)')
            a('v_add_f32 %s, %s, %s' % (v(T0), v(T0), v(T0 + 1)))
            a('v_add_f32 %s, %s, %s' % (v(T0 + 2), v(T0 + 2), v(T0 + 3)))
            a('v_add_f32 %s, %s, %s' % (v(T1), v(T1), v(T1 + 1)))
            a('v_add_f32 %s, %s, %s' % (v(T1 + 2), v(T1 + 2), v(T1 + 3)))
            a('v_add_f32 %s, %s, %s' % (v(T0), v(T0), v(T0 + 2)))
            a('v_add_f32 %s, %s, %s' % (v(T1), v(T1), v(T1 + 2)))
            a('v_mul_f32 %s, %s, %s' % (v(T0), s(s_t1), v(T0)))
            a('v_mul_f32 %s, %s, %s' % (v(T1), s(s_t1), v(T1)))
            a('v_fma_f32 %s, -%s, %s, %s' % (v(T1), v(T0), v(T0), v(T1)))
            a('v_max_f32 %s, 0, %s' % (v(T1), v(T1)))
            bf16_round(a, vmean[mt], T0)
            bf16_round(a, T1, T1)
            a('v_add_f32 %s, 0x3727c5ac, %s' % (v(T1), v(T1)))
            bf16_round(a, T1, T1)
            a('v_sqrt_f32 %s, %s' % (v(T1), v(T1)))
            bf16_round(a, T1, T1)
            a('v_rcp_f32 %s, %s' % (v(vrinv[mt]), v(T1)))
        a('s_mul_i32 %s, %s, %d' % (s(s_t0), s(s_wn), NT * 64))
        a('v_lshlrev_b32 %s, 4, %s' % (v(vt0), v(vg)))
        a('v_add_u32 %s, %s, %s' % (v(vt0), s(s_t0), v(vt0)))
        a('v_add_u32 %s, 0x%x, %s' % (v(vt0), SCOL, v(vt0)))
        Tq = [fW[1][0], fW[1][1], fW[0][0], fW[0][1]]
        for nt in range(NT):
            for gp in range(4):
                a('ds_read_b128 %s, %s offset:%d' % (v(Tq[gp], 4), v(vt0), gp * BN * 4 + nt * 64))
            a('s_waitcnt lgkmcnt(0)')
            for r in range(4):
                a('v_add_f32 %s, %s, %s' % (v(Tq[0] + r), v(Tq[0] + r), v(Tq[1] + r)))
                a('v_add_f32 %s, %s, %s' % (v(Tq[2] + r), v(Tq[2] + r), v(Tq[3] + r)))
                a('v_add_f32 %s, %s, %s' % (v(vcs[nt] + r), v(Tq[0] + r), v(Tq[2] + r)))

    if epi == 'qkv':
        vtok = R.alloc()
        vo = [R.alloc() for _ in range(NT)]
        a('s_mul_i32 %s, %s, %d' % (s(s_t0), s(s_wm), MT * 16))
        a('s_add_u32 %s, %s, %s' % (s(s_t0), s(s_t0), s(s_tok0)))
        a('v_add_u32 %s, %s, %s' % (v(vtok), s(s_t0), v(vi)))
        a('v_mul_u32_u24 %s, 40, %s' % (v(vtok), v(vtok)))
        for nt in range(NT):
            a('s_mul_i32 %s, %s, %d' % (s(s_t0), s(s_wn), NT * 4))
            a('s_lshr_b32 %s, %s, 2' % (s(s_t1), s(s_col0)))
            a('s_add_u32 %s, %s, %s' % (s(s_t0), s(s_t0), s(s_t1)))
            a('s_add_u32 %s, %s, %d' % (s(s_t0), s(s_t0), 4 * nt))
            a('v_add_u32 %s, %s, %s' % (v(vt0), s(s_t0), v(vg)))
            a('v_mul_u32_u24 %s, 205, %s' % (v(vt1), v(vt0)))
            a('v_lshrrev_b32 %s, 10, %s' % (v(vt1), v(vt1)))
            a('v_mul_u32_u24 %s, 5, %s' % (v(vt2), v(vt1)))
            a('v_sub_u32 %s, %s, %s' % (v(vt2), v(vt0), v(vt2)))
            a('v_mul_u32_u24 %s, 81920, %s' % (v(vt1), v(vt1)))
            a('v_lshl_add_u32 %s, %s, 3, %s' % (v(vt1), v(vt2), v(vt1)))
            a('v_add_u32 %s, %s, %s' % (v(vo[nt]), v(vt1), v(vtok)))
        for nt in range(NT):
            for mt in range(MT):
                A = acc[mt][nt]
                for r in range(4):
                    a('v_fma_f32 %s, -%s, %s, %s' % (v(A + r), v(vmean[mt]), v(vcs[nt] + r), v(A + r)))
                for r in range(4):
                    a('v_mul_f32 %s, %s, %s' % (v(A + r), v(vrinv[mt]), v(A + r)))
                a('v_cvt_pk_bf16_f32 %s, %s, %s' % (v(A), v(A), v(A + 1)))
                a('v_cvt_pk_bf16_f32 %s, %s, %s' % (v(A + 1), v(A + 2), v(A + 3)))
                a('buffer_store_dwordx2 %s, %s, %s, 0 offen offset:%d' % (v(A, 2), v(vo[nt]), s(sO, 4), mt * 640))
    elif epi == 'relu':
        vo = [R.alloc() for _ in range(MT)]
        a('s_mul_i32 %s, %s, %d' % (s(s_t0), s(s_wm), MT * 16))
        a('s_add_u32 %s, %s, %s' % (s(s_t0), s(s_t0), s(s_tok0)))
        a('v_add_u32 %s, %s, %s' % (v(vt0), s(s_t0), v(vi)))
        a('v_mul_u32_u24 %s, %d, %s' % (v(vt0), N * 2, v(vt0)))
        a('s_lshl_b32 %s, %s, 1' % (s(s_t0), s(s_col0)))
        a('v_lshl_add_u32 %s, %s, 3, %s' % (v(vt0), v(vg), v(vt0)))
        a('v_add_u32 %s, %s, %s' % (v(vo[0]), s(s_t0), v(vt0)))
        for mt in range(1, MT):
            a('v_add_u32 %s, %d, %s' % (v(vo[mt]), mt * 16 * N * 2, v(vo[0])))
        nvalid_last = (N - (c['NB'] - 1) * BN) // 16
        for nt in range(NT):
            if nt == nvalid_last:
                a('s_cmp_eq_u32 %s, %d' % (s(s_cb), c['NB'] - 1))
                a('s_cbranch_scc1 %s' % L('end'))
            for mt in range(MT):
                A = acc[mt][nt]
                for r in range(4):
                    a('v_fma_f32 %s, -%s, %s, %s' % (v(A + r), v(vmean[mt]), v(vcs[nt] + r), v(A + r)))
                for r in range(4):
                    a('v_mul_f32 %s, %s, %s' % (v(A + r), v(vrinv[mt]), v(A + r)))
                for r in range(4):
                    a('v_max_f32 %s, 0, %s' % (v(A + r), v(A + r)))
                a('v_cvt_pk_bf16_f32 %s, %s, %s' % (v(A), v(A), v(A + 1)))
                a('v_cvt_pk_bf16_f32 %s, %s, %s' % (v(A + 1), v(A + 2), v(A + 3)))
                a('buffer_store_dwordx2 %s, %s, %s, 0 offen offset:%d' % (v(A, 2), v(vo[mt]), s(sO, 4), nt * 32))
    elif epi == 'resid':
        a('s_waitcnt vmcnt(0)')
        a('s_mov_b32 %s, 0xffff0000' % s(s_t0))
        for nt in range(NT):
            A = acc[0][nt]
            Rr = vRes[nt]
            for h in range(2):
                a('v_cvt_pk_bf16_f32 %s, %s, %s' % (v(vt0), v(A + 2 * h), v(A + 2 * h + 1)))
                a('v_lshlrev_b32 %s, 16, %s' % (v(vt1), v(vt0)))
                a('v_and_b32 %s, %s, %s' % (v(vt0), s(s_t0), v(vt0)))
                a('v_lshlrev_b32 %s, 16, %s' % (v(vt2), v(Rr + h)))
                a('v_and_b32 %s, %s, %s' % (v(vt3), s(s_t0), v(Rr + h)))
                a('v_add_f32 %s, %s, %s' % (v(vt1), v(vt1), v(vt2)))
                a('v_add_f32 %s, %s, %s' % (v(vt0), v(vt0), v(vt3)))
                a('v_cvt_pk_bf16_f32 %s, %s, %s' % (v(A + h), v(vt1), v(vt0)))
            a('buffer_store_dwordx2 %s, %s, %s, 0 offen offset:%d' % (v(A, 2), v(vOut), s(sO, 4), nt * 32))
    a('s_endpgm')
    vmax = R.hi

    a.label(L('loader'))
    R = Regs(1, 256, 'v')
    vt0, vt1, vt2, vt3, vl3, vl7, vl4 = [R.alloc() for _ in range(7)]
    s_lw = s_wave
    a('s_sub_u32 %s, %s, 4' % (s(s_lw), s(s_wave)))
    a('v_lshrrev_b32 %s, 3, v0' % v(vl3))
    a('v_and_b32 %s, 7, v0' % v(vl7))
    a('v_lshrrev_b32 %s, 4, v0' % v(vl4))
    vX = [R.alloc() for _ in range(nX)]
    vW = [R.alloc() for _ in range(nW)]
    a('s_mul_i32 %s, %s, %d' % (s(s_t0), s(s_lw), BM // 4))
    a('s_add_u32 %s, %s, %s' % (s(s_t0), s(s_t0), s(s_tok0)))
    for j in range(nX):
        a('s_add_u32 %s, %s, %d' % (s(s_t1), s(s_t0), 8 * j))
        a('v_add_u32 %s, %s, %s' % (v(vt0), s(s_t1), v(vl3)))
        a('v_mul_u32_u24 %s, %d, %s' % (v(vt0), strideX, v(vt0)))
        a('v_add_u32 %s, %d, %s' % (v(vt1), 4 * (j & 1), v(vl4)))
        a('v_xor_b32 %s, %s, %s' % (v(vt1), v(vt1), v(vl7)))
        a('v_lshl_add_u32 %s, %s, 4, %s' % (v(vX[j]), v(vt1), v(vt0)))
    magic = (65536 + G - 1) // G
    for Lx in range(256):
        assert (Lx * magic) >> 16 == Lx // G
    a('s_lshl_b32 %s, %s, 4' % (s(s_t0), s(s_lw)))
    a('s_lshl_b32 %s, %s, 1' % (s(s_t1), s(s_col0)))
    for j in range(nW):
        a('v_add_u32 %s, %d, v0' % (v(vt0), 64 * j))
        a('v_mul_u32_u24 %s, %d, %s' % (v(vt1), magic, v(vt0)))
        a('v_lshrrev_b32 %s, 16, %s' % (v(vt1), v(vt1)))
        a('v_mul_u32_u24 %s, %d, %s' % (v(vt2), G, v(vt1)))
        a('v_sub_u32 %s, %s, %s' % (v(vt0), v(vt0), v(vt2)))
        if XOR:
            a('v_and_b32 %s, 7, %s' % (v(vt2), v(vt1)))
            a('v_lshlrev_b32 %s, 1, %s' % (v(vt2), v(vt2)))
            a('v_xor_b32 %s, %s, %s' % (v(vt0), v(vt0), v(vt2)))
        a('v_and_b32 %s, 3, %s' % (v(vt2), v(vt1)))
        a('v_bfe_u32 %s, %s, 3, 1' % (v(vt3), v(vt1)))
        a('v_lshl_add_u32 %s, %s, 2, %s' % (v(vt2), v(vt3), v(vt2)))
        a('v_bfe_u32 %s, %s, 2, 1' % (v(vt3), v(vt1)))
        a('v_lshl_add_u32 %s, %s, 3, %s' % (v(vt2), v(vt3), v(vt2)))
        a('v_add_u32 %s, %s, %s' % (v(vt2), s(s_t0), v(vt2)))
        a('v_mul_u32_u24 %s, %d, %s' % (v(vt2), strideW, v(vt2)))
        a('v_lshl_add_u32 %s, %s, 4, %s' % (v(vt2), v(vt0), v(vt2)))
        a('v_add_u32 %s, %s, %s' % (v(vW[j]), s(s_t1), v(vt2)))
    a('s_mul_i32 %s, %s, %d' % (s(s_ldsX), s(s_lw), (BM // 4) * 128))
    a('s_mul_i32 %s, %s, %d' % (s(s_ldsW), s(s_lw), 16 * rowW))
    if lastmask:
        a('s_mov_b32 %s, 0x%x' % (s(s_ex), (1 << min(lastmask, 32)) - 1))
        a('s_mov_b32 %s, 0x%x' % (s(s_ex + 1), (1 << max(lastmask - 32, 0)) - 1))

    def issue(st):
        base = (st % D) * SLOT
        a('s_mov_b32 %s, %d' % (s(s_kx), st * 128))
        a('s_mov_b32 %s, %d' % (s(s_kw), st * 64 * strideW))
        for j in range(nX):
            a('s_add_u32 m0, %s, 0x%x' % (s(s_ldsX), base + j * 1024))
            a('buffer_load_dwordx4 %s, %s, %s offen lds' % (v(vX[j]), s(sX, 4), s(s_kx)))
        for j in range(nW):
            a('s_add_u32 m0, %s, 0x%x' % (s(s_ldsW), base + XB + j * 1024))
            part = lastmask and j == nW - 1
            if part:
                a('s_mov_b64 exec, %s' % s(s_ex, 2))
            a('buffer_load_dwordx4 %s, %s, %s offen lds' % (v(vW[j]), s(sW, 4), s(s_kw)))
            if part:
                a('s_mov_b64 exec, -1')

    for st in range(min(D - 1, S)):
        issue(st)

    if LN:
        vg, vi = R.alloc(), R.alloc()
        a('v_lshrrev_b32 %s, 4, v0' % v(vg))
        a('v_and_b32 %s, 15, v0' % v(vi))
        a('s_mov_b32 %s, 0x3f803f80' % s(s_ones))
        vXa = [R.alloc() for _ in range(2)]
        vXs = [R.alloc() for _ in range(2)]
        a('s_mul_i32 %s, %s, %d' % (s(s_t0), s(s_lw), 32 * 128))
        a('v_lshrrev_b32 %s, 1, %s' % (v(vt0), v(vi)))
        a('v_lshlrev_b32 %s, 7, %s' % (v(vt1), v(vi)))
        a('v_add_u32 %s, %s, %s' % (v(vt1), s(s_t0), v(vt1)))
        for ks in range(2):
            a('v_add_u32 %s, %d, %s' % (v(vt2), 4 * ks, v(vg)))
            a('v_xor_b32 %s, %s, %s' % (v(vt2), v(vt2), v(vt0)))
            a('v_lshl_add_u32 %s, %s, 4, %s' % (v(vXa[ks]), v(vt2), v(vt1)))
        vWa = [R.alloc() for _ in range(2)]
        vWs = [R.alloc() for _ in range(2)]
        s_nt = [44, 45]
        a('v_lshrrev_b32 %s, 2, %s' % (v(vt0), v(vi)))
        a('v_and_b32 %s, 1, %s' % (v(vt1), v(vg)))
        a('v_lshl_add_u32 %s, %s, 2, %s' % (v(vt0), v(vt1), v(vt0)))
        a('v_lshrrev_b32 %s, 1, %s' % (v(vt1), v(vg)))
        a('v_lshl_add_u32 %s, %s, 4, %s' % (v(vt1), v(vt1), v(vt0)))
        a('v_mul_u32_u24 %s, %d, %s' % (v(vt1), rowW, v(vt1)))
        a('v_and_b32 %s, 1, %s' % (v(vt2), v(vi)))
        a('v_lshl_add_u32 %s, %s, 3, %s' % (v(vt1), v(vt2), v(vt1)))
        a('v_bfe_u32 %s, %s, 1, 1' % (v(vt2), v(vi)))
        a('v_lshl_add_u32 %s, %s, 4, %s' % (v(vt1), v(vt2), v(vt1)))
        a('v_add_u32 %s, %d, %s' % (v(vt1), XB, v(vt1)))
        a('v_lshlrev_b32 %s, 1, %s' % (v(vt0), v(vt0)))
        for j in range(2):
            a('s_lshl_b32 %s, %s, 1' % (s(s_nt[j]), s(s_lw)))
            a('s_add_u32 %s, %s, %d' % (s(s_nt[j]), s(s_nt[j]), j))
            a('s_min_u32 %s, %s, %d' % (s(s_nt[j]), s(s_nt[j]), BN // 16 - 1))
            a('s_lshl_b32 %s, %s, 1' % (s(s_t0), s(s_nt[j])))
            if XOR:
                a('v_xor_b32 %s, %s, %s' % (v(vt2), s(s_t0), v(vt0)))
            else:
                a('v_mov_b32 %s, %s' % (v(vt2), s(s_t0)))
            a('v_lshl_add_u32 %s, %s, 4, %s' % (v(vWa[j]), v(vt2), v(vt1)))
        rsum = [R.alloc() for _ in range(2)]
        rsq = [R.alloc() for _ in range(2)]
        csum = [R.alloc() for _ in range(2)]
        for r in rsum + rsq + csum:
            a('v_mov_b32 %s, 0' % v(r))
        fx = [[R.alloc(4, 4) for ks in range(2)] for j in range(2)]
        fw = [[R.alloc(4, 4) for ks in range(2)] for j in range(2)]

    for st in range(S):
        issued_after = min(S - 1, st + D - 2) - st
        a('s_waitcnt vmcnt(%d)' % (issued_after * nDMA))
        a('s_barrier')
        if st + D - 1 < S:
            issue(st + D - 1)
        if LN:
            base = (st % D) * SLOT
            for ks in range(2):
                a('v_add_u32 %s, 0x%x, %s' % (v(vXs[ks]), base, v(vXa[ks])))
            for j in range(2):
                a('v_add_u32 %s, 0x%x, %s' % (v(vWs[j]), base, v(vWa[j])))
            for j in range(2):
                for ks in range(2):
                    a('ds_read_b128 %s, %s offset:%d' % (v(fx[j][ks], 4), v(vXs[ks]), j * 2048))
            for j in range(2):
                for ks in range(2):
                    for hf in range(2):
                        a('ds_read_b64_tr_b16 %s, %s offset:%d' % (v(fw[j][ks] + 2 * hf, 2), v(vWs[j]), (32 * ks + 8 * hf) * rowW))
            a('s_waitcnt lgkmcnt(8)')
            for ks in range(2):
                for r in range(4):
                    for j in range(2):
                        a('v_dot2_f32_bf16 %s, %s, %s, %s' % (v(rsum[j]), v(fx[j][ks] + r), s(s_ones), v(rsum[j])))
                        a('v_dot2_f32_bf16 %s, %s, %s, %s' % (v(rsq[j]), v(fx[j][ks] + r), v(fx[j][ks] + r), v(rsq[j])))
            a('s_waitcnt lgkmcnt(0)')
            for ks in range(2):
                for r in range(4):
                    for j in range(2):
                        a('v_dot2_f32_bf16 %s, %s, %s, %s' % (v(csum[j]), v(fw[j][ks] + r), s(s_ones), v(csum[j])))
    if LN:
        a('s_lshl_b32 %s, %s, 10' % (s(s_t0), s(s_lw)))
        a('v_lshlrev_b32 %s, 5, %s' % (v(vt0), v(vi)))
        a('v_lshl_add_u32 %s, %s, 2, %s' % (v(vt0), v(vg), v(vt0)))
        a('v_add_u32 %s, %s, %s' % (v(vt0), s(s_t0), v(vt0)))
        a('v_add_u32 %s, 0x%x, %s' % (v(vt0), SROW, v(vt0)))
        for j in range(2):
            a('ds_write_b32 %s, %s offset:%d' % (v(vt0), v(rsum[j]), j * 512))
            a('ds_write_b32 %s, %s offset:%d' % (v(vt0), v(rsq[j]), j * 512 + 16))
        a('v_mul_u32_u24 %s, %d, %s' % (v(vt0), BN * 4, v(vg)))
        a('v_lshl_add_u32 %s, %s, 2, %s' % (v(vt0), v(vi), v(vt0)))
        a('v_add_u32 %s, 0x%x, %s' % (v(vt0), SCOL, v(vt0)))
        for j in range(2):
            a('s_lshl_b32 %s, %s, 6' % (s(s_t0), s(s_nt[j])))
            a('v_add_u32 %s, %s, %s' % (v(vt1), s(s_t0), v(vt0)))
            a('ds_write_b32 %s, %s' % (v(vt1), v(csum[j])))
        a('s_waitcnt lgkmcnt(0)')
        a('s_barrier')
    a.label(L('end'))
    a('s_endpgm')
    vmax = max(vmax, R.hi)
    return dict(name=name, vgpr=vmax, sgpr=48, lds=lds_total, block=512, grid=256)


CFG_QKV = dict(name='qkv_kernel', BM=128, BN=128, K=640, N=1920, WM=2, WN=2, D=4, LN=True, epi='qkv',
               x=('x', 0), w='wqkv', o=('ws', WS_QKV), obytes=QKV_BYTES, NB=15, rb_per_xcd=4, cb_per_xcd=8)
CFG_WO = dict(name='wo_kernel', BM=64, BN=80, K=640, N=640, WM=4, WN=1, D=8, epi='resid',
              x=('ws', WS_O), w='wo', o=('ws', WS_H), obytes=2048 * 1280, r=('x', 0), NB=8, rb_per_xcd=8, cb_per_xcd=4)
CFG_W1 = dict(name='w1_kernel', BM=128, BN=112, K=640, N=1728, WM=4, WN=1, D=4, LN=True, epi='relu',
              x=('ws', WS_H), w='w1', o=('ws', WS_H1), obytes=2048 * 3456, NB=16, rb_per_xcd=4, cb_per_xcd=8)
CFG_W2 = dict(name='w2_kernel', BM=64, BN=80, K=1728, N=640, WM=4, WN=1, D=8, epi='resid',
              x=('ws', WS_H1), w='w2', o=('out', 0), obytes=2048 * 1280, r=('ws', WS_H), NB=8, rb_per_xcd=8, cb_per_xcd=4)
```

```python
import sys, os
sys.path.insert(0, os.path.dirname(os.path.abspath(__file__)))
from asmlib import Asm
import gemm, attn

HEADER = """; Kernarg layout for this problem (72 bytes, ptrs only, base s[0:1]):
"""

def build(path):
    a = Asm()
    infos = []
    infos.append(gemm.gen_gemm(a, gemm.CFG_QKV))
    infos.append(attn.gen_attn(a))
    infos.append(gemm.gen_gemm(a, gemm.CFG_WO))
    infos.append(gemm.gen_gemm(a, gemm.CFG_W1))
    infos.append(gemm.gen_gemm(a, gemm.CFG_W2))
    out = HEADER
    for i in infos:
        out += '; @launch kernel=%s grid=(%d,1,1) block=(%d,1,1) lds=%d\n' % (i['name'], i['grid'], i['block'], i['lds'])
    out += '.amdgcn_target "amdgcn-amd-amdhsa--gfx950"\n.text\n'
    out += a.text()
    out += '.section .rodata,"a"\n'
    for i in infos:
        nv = (i['vgpr'] + 7) // 8 * 8
        out += '.p2align 6\n.amdhsa_kernel %s\n' % i['name']
        out += '  .amdhsa_next_free_vgpr %d\n' % nv
        out += '  .amdhsa_next_free_sgpr %d\n' % i['sgpr']
        out += '  .amdhsa_accum_offset %d\n' % nv
        out += '  .amdhsa_group_segment_fixed_size 0\n  .amdhsa_kernarg_size 72\n  .amdhsa_user_sgpr_count 2\n'
        out += '  .amdhsa_user_sgpr_kernarg_segment_ptr 1\n  .amdhsa_system_sgpr_workgroup_id_x 1\n.end_amdhsa_kernel\n'
    open(path, 'w').write(out)
    for i in infos:
        print(i)
    print('nops inserted', a.nops_inserted, 'lines', len(a.lines))

if __name__ == '__main__':
    p = sys.argv[1] if len(sys.argv) > 1 else 'sequential_preLN__sliding_block__dense_activation_relu__prompt.s'
    build(p)
```

```python
import math
import struct
from asmlib import Asm, Regs, v, s
from gemm import build_srd, KA, WS_QKV, WS_O, QKV_BYTES, stamp, stamp_flush, STFLAG


def f32bits(x):
    return struct.unpack('<I', struct.pack('<f', x))[0]


def gen_attn(a, ST=False):
    name = 'attn_kernel'
    L = lambda x: '%s_%s' % (name, x)
    HB = 43008
    KIMG, V0, V1 = 0, 24576, 36864
    STG = 2 * HB
    LDS = STG + 10240
    HS = 81920
    KBASE = 32 * HS
    VBASE = 64 * HS
    sQ, sO = 4, 8
    pWS = 12
    s_head, s_qb, s_wave, s_t0, s_t1, s_hk, s_c, s_nm = 14, 15, 16, 17, 18, 19, 20, 21
    sM = [22, 24, 26, 28]
    s_m3, s_m2 = 30, 32
    s_pair, s_wq, s_hh, s_lb = 34, 35, 36, 37

    a.raw('.p2align 8')
    a.raw('.globl %s' % name)
    a.raw('.type %s,@function' % name)
    a.label(name)
    stamp(a, ST, 0)
    a('s_load_dwordx2 %s, s[0:1], %d' % (s(pWS, 2), KA['ws']))
    a('s_cmp_ge_u32 s2, 256')
    a('s_cbranch_scc1 %s' % L('end'))
    a('s_and_b32 %s, s2, 7' % s(s_t0))
    a('s_lshr_b32 %s, s2, 3' % s(s_t1))
    a('s_lshl_b32 %s, %s, 1' % (s(s_pair), s(s_t0)))
    a('s_and_b32 %s, %s, 1' % (s(s_t0), s(s_t1)))
    a('s_add_u32 %s, %s, %s' % (s(s_pair), s(s_pair), s(s_t0)))
    a('s_lshr_b32 %s, %s, 1' % (s(s_qb), s(s_t1)))
    a('v_lshrrev_b32 v1, 6, v0')
    a('v_and_b32 v0, 63, v0')
    a('v_readfirstlane_b32 %s, v1' % s(s_wave))
    R = Regs(1, 256, 'v')
    vg, vi, vt0, vt1, vt2, vt3, vg2 = [R.alloc() for _ in range(7)]
    a('v_lshrrev_b32 %s, 4, v0' % v(vg))
    a('v_and_b32 %s, 15, v0' % v(vi))
    a('v_min_u32 %s, 2, %s' % (v(vg2), v(vg)))
    a('s_and_b32 %s, %s, 3' % (s(s_wq), s(s_wave)))
    a('s_mov_b32 s38, -1')
    a('s_mov_b32 s39, 0')
    a('s_lshr_b32 %s, %s, 2' % (s(s_hh), s(s_wave)))
    a('s_lshl_b32 %s, %s, 1' % (s(s_head), s(s_pair)))
    a('s_add_u32 %s, %s, %s' % (s(s_head), s(s_head), s(s_hh)))
    a('s_mul_i32 %s, %s, %d' % (s(s_lb), s(s_hh), HB))
    a('s_mul_i32 %s, %s, %d' % (s(s_hk), s(s_head), HS))
    a('s_mul_i32 %s, %s, %d' % (s(s_t0), s(s_qb), 128 * 40))
    a('s_add_u32 %s, %s, %s' % (s(s_hk), s(s_hk), s(s_t0)))
    a('s_sub_u32 %s, %s, %d' % (s(s_hk), s(s_hk), 256 * 40))
    a('v_mul_u32_u24 %s, 40, %s' % (v(vt0), v(vi)))
    a('v_lshl_add_u32 %s, %s, 4, %s' % (v(vt0), v(vg2), v(vt0)))
    a('v_lshrrev_b32 %s, 1, v0' % v(vt1))
    a('v_mul_u32_u24 %s, 40, %s' % (v(vt1), v(vt1)))
    a('v_and_b32 %s, 1, v0' % v(vt2))
    a('v_lshl_add_u32 %s, %s, 4, %s' % (v(vt1), v(vt2), v(vt1)))
    a('v_mul_u32_u24 %s, 40, v0' % v(vt2))
    a('s_mul_i32 %s, %s, %d' % (s(s_t0), s(s_wq), 96 * 40))
    a('s_add_u32 %s, %s, %s' % (s(s_nm), s(s_t0), s(s_hk)))
    a('s_add_u32 %s, %s, %d' % (s(s_t0), s(s_nm), KBASE))
    a('s_mul_i32 %s, %s, %d' % (s(s_t1), s(s_wq), 6 * 1024))
    a('s_add_u32 %s, %s, %s' % (s(s_t1), s(s_t1), s(s_lb)))
    a('s_waitcnt lgkmcnt(0)')
    build_srd(a, sQ, pWS, WS_QKV, QKV_BYTES + 64)
    for j in range(6):
        a('s_add_u32 m0, %s, %d' % (s(s_t1), KIMG + j * 1024))
        a('buffer_load_dwordx4 %s, %s, %s offen lds' % (v(vt0), s(sQ, 4), s(s_t0)))
        if j < 5:
            a('s_add_u32 %s, %s, 640' % (s(s_t0), s(s_t0)))
    fQ = [R.alloc(4, 4) for _ in range(2)]
    a('s_mul_i32 %s, %s, %d' % (s(s_t0), s(s_wq), 32 * 40))
    a('s_add_u32 %s, %s, %s' % (s(s_t0), s(s_t0), s(s_hk)))
    a('s_add_u32 %s, %s, %d' % (s(s_t0), s(s_t0), 256 * 40))
    for aa in range(2):
        a('buffer_load_dwordx4 %s, %s, %s, %s offen offset:%d' % (v(fQ[aa], 4), v(vt0), s(sQ, 4), s(s_t0), aa * 640))
    a('s_add_u32 %s, %s, %d' % (s(s_t0), s(s_nm), VBASE))
    a('s_mul_i32 %s, %s, %d' % (s(s_t1), s(s_wq), 3 * 1024))
    a('s_add_u32 %s, %s, %s' % (s(s_t1), s(s_t1), s(s_lb)))
    for j in range(3):
        a('s_add_u32 m0, %s, %d' % (s(s_t1), V0 + j * 1024))
        a('buffer_load_dwordx4 %s, %s, %s offen lds' % (v(vt1), s(sQ, 4), s(s_t0)))
        a('s_add_u32 %s, %s, %d' % (s(s_t0), s(s_t0), 32 * 40))
    a('s_add_u32 %s, %s, %d' % (s(s_t0), s(s_nm), VBASE + 32))
    a('s_mul_i32 %s, %s, %d' % (s(s_t1), s(s_wq), 96 * 16))
    a('s_add_u32 %s, %s, %s' % (s(s_t1), s(s_t1), s(s_lb)))
    a('s_add_u32 m0, %s, %d' % (s(s_t1), V1))
    a('buffer_load_dwordx4 %s, %s, %s offen lds' % (v(vt2), s(sQ, 4), s(s_t0)))
    a('s_add_u32 %s, %s, %d' % (s(s_t0), s(s_t0), 64 * 40))
    a('s_add_u32 m0, %s, %d' % (s(s_t1), V1 + 1024))
    a('s_mov_b64 exec, s[38:39]')
    a('buffer_load_dwordx4 %s, %s, %s offen lds' % (v(vt2), s(sQ, 4), s(s_t0)))
    a('s_mov_b64 exec, -1')
    build_srd(a, sO, pWS, WS_O, 16 * 163840)
    for r in range(4):
        a('v_lshl_add_u32 %s, %s, 2, %d' % (v(vt3), v(vg), r))
        a('v_cmp_le_u32 %s, %s, %s' % (s(sM[r], 2), v(vt3), v(vi)))
    a('v_cmp_eq_u32 %s, 3, %s' % (s(s_m3, 2), v(vg)))
    a('v_cmp_le_u32 %s, 2, %s' % (s(s_m2, 2), v(vg)))
    vML = [R.alloc() for _ in range(2)]
    vMH = [R.alloc() for _ in range(2)]
    vz = R.alloc()
    a('v_mov_b32 %s, 0' % v(vz))
    a('v_mov_b32 %s, 0xffff' % v(vt3))
    vhi16 = R.alloc()
    a('v_mov_b32 %s, 0xffff0000' % v(vhi16))
    for h in range(2):
        a('v_cndmask_b32 %s, %s, %s, %s' % (v(vML[h]), v(vz), v(vt3), s(sM[2 * h], 2)))
        a('v_cndmask_b32 %s, %s, %s, %s' % (v(vMH[h]), v(vz), v(vhi16), s(sM[2 * h + 1], 2)))
        a('v_or_b32 %s, %s, %s' % (v(vML[h]), v(vML[h]), v(vMH[h])))
        a('v_not_b32 %s, %s' % (v(vMH[h]), v(vML[h])))
    a('s_mov_b32 %s, 0x%x' % (s(s_c), f32bits(20 ** -0.5 * math.log2(math.e))))
    vKa, vV0a, vV1a, vP = R.alloc(), R.alloc(), R.alloc(), R.alloc()
    a('s_lshl_b32 %s, %s, 11' % (s(s_t0), s(s_wq)))
    a('s_add_u32 %s, %s, %s' % (s(s_t0), s(s_t0), s(s_lb)))
    a('v_lshlrev_b32 %s, 4, v0' % v(vKa))
    a('v_add_u32 %s, %s, %s' % (v(vKa), s(s_t0), v(vKa)))
    a('s_lshl_b32 %s, %s, 10' % (s(s_t0), s(s_wq)))
    a('s_add_u32 %s, %s, %d' % (s(s_t0), s(s_t0), V0))
    a('s_add_u32 %s, %s, %s' % (s(s_t0), s(s_t0), s(s_lb)))
    a('v_lshlrev_b32 %s, 3, v0' % v(vV0a))
    a('v_add_u32 %s, %s, %s' % (v(vV0a), s(s_t0), v(vV0a)))
    a('s_lshl_b32 %s, %s, 9' % (s(s_t0), s(s_wq)))
    a('s_add_u32 %s, %s, %d' % (s(s_t0), s(s_t0), V1))
    a('s_add_u32 %s, %s, %s' % (s(s_t0), s(s_t0), s(s_lb)))
    a('v_lshrrev_b32 %s, 2, v0' % v(vV1a))
    a('v_lshlrev_b32 %s, 4, %s' % (v(vV1a), v(vV1a)))
    a('v_and_b32 %s, 1, v0' % v(vt3))
    a('v_lshl_add_u32 %s, %s, 3, %s' % (v(vV1a), v(vt3), v(vV1a)))
    a('v_add_u32 %s, %s, %s' % (v(vV1a), s(s_t0), v(vV1a)))
    a('s_add_u32 %s, %s, %d' % (s(s_t0), s(s_t1), V1 + 8))
    a('v_lshlrev_b32 %s, 4, v0' % v(vP))
    a('v_add_u32 %s, %s, %s' % (v(vP), s(s_t0), v(vP)))
    vone = R.alloc(2)
    a('v_mov_b32 %s, 0x3f80' % v(vone))
    a('v_mov_b32 %s, 0' % v(vone + 1))
    a('s_waitcnt vmcnt(0)')
    a('ds_write_b64 %s, %s' % (v(vP), v(vone, 2)))
    a('s_mov_b64 exec, s[38:39]')
    a('ds_write_b64 %s, %s offset:1024' % (v(vP), v(vone, 2)))
    a('s_mov_b64 exec, -1')
    for aa in range(2):
        for r in range(2):
            a('v_cndmask_b32 %s, %s, %s, %s' % (v(fQ[aa] + r), v(fQ[aa] + r), v(vz), s(s_m3, 2)))
        for r in range(2, 4):
            a('v_cndmask_b32 %s, %s, %s, %s' % (v(fQ[aa] + r), v(fQ[aa] + r), v(vz), s(s_m2, 2)))
    a('s_waitcnt lgkmcnt(0)')
    a('s_barrier')
    stamp(a, ST, 1)

    Sreg = [[R.alloc(4, 4) for t in range(17)] for aa in range(2)]
    NKB = 6
    fK = [R.alloc(4, 4) for _ in range(NKB)]
    for t in range(min(NKB, 18)):
        a('ds_read_b128 %s, %s offset:%d' % (v(fK[t % NKB], 4), v(vKa), t * 1024))
    for t in range(18):
        outstanding_after = min(17, t + NKB - 1) - t
        a('s_waitcnt lgkmcnt(%d)' % outstanding_after)
        if t <= 16:
            a('v_mfma_f32_16x16x32_bf16 %s, %s, %s, 0' % (v(Sreg[0][t], 4), v(fK[t % NKB], 4), v(fQ[0], 4)))
        if t >= 1:
            a('v_mfma_f32_16x16x32_bf16 %s, %s, %s, 0' % (v(Sreg[1][t - 1], 4), v(fK[t % NKB], 4), v(fQ[1], 4)))
        if t + NKB < 18:
            a('ds_read_b128 %s, %s offset:%d' % (v(fK[t % NKB], 4), v(vKa), (t + NKB) * 1024))
    a('s_nop 7')
    a('s_cmp_ge_u32 %s, 2' % s(s_qb))
    a('s_cbranch_scc1 %s' % L('nomask'))
    for aa in range(2):
        a('s_lshl_b32 %s, %s, 1' % (s(s_nm), s(s_wq)))
        a('s_lshl_b32 %s, %s, 3' % (s(s_t0), s(s_qb)))
        a('s_add_u32 %s, %s, %s' % (s(s_nm), s(s_nm), s(s_t0)))
        a('s_sub_u32 %s, %d, %s' % (s(s_nm), 16 - aa, s(s_nm)))
        for t in range(16):
            a('s_cmp_gt_u32 %s, %d' % (s(s_nm), t))
            a('s_cbranch_scc0 %s' % L('mdone%d' % aa))
            for r in range(4):
                a('v_mov_b32 %s, 0xf149f2ca' % v(Sreg[aa][t] + r))
        a.label(L('mdone%d' % aa))
    a.label(L('nomask'))

    vmx, vmx2 = R.alloc(), R.alloc()
    Oacc = [[R.alloc(4, 4) for dt in range(2)] for aa in range(2)]

    def softmax(aa):
        Sg = Sreg[aa]
        for r in range(4):
            a('v_cndmask_b32 %s, %s, %s, %s' % (v(Sg[16] + r), v(Sg[0] + r), v(Sg[16] + r), s(sM[r], 2)))
        vals = [Sg[t] + r for t in range(1, 17) for r in range(4)]
        a('v_max3_f32 %s, %s, %s, %s' % (v(vmx), v(vals[0]), v(vals[1]), v(vals[2])))
        a('v_max3_f32 %s, %s, %s, %s' % (v(vmx2), v(vals[3]), v(vals[4]), v(vals[5])))
        k = 6
        tog = 0
        while k + 1 < len(vals):
            d = vmx if tog == 0 else vmx2
            a('v_max3_f32 %s, %s, %s, %s' % (v(d), v(d), v(vals[k]), v(vals[k + 1])))
            k += 2
            tog ^= 1
        assert k == len(vals)
        a('v_max_f32 %s, %s, %s' % (v(vmx), v(vmx), v(vmx2)))
        a('v_mov_b32 %s, %s' % (v(vmx2), v(vmx)))
        a('v_permlane32_swap_b32 %s, %s' % (v(vmx), v(vmx2)))
        a('v_max_f32 %s, %s, %s' % (v(vmx), v(vmx), v(vmx2)))
        a('v_mov_b32 %s, %s' % (v(vmx2), v(vmx)))
        a('v_permlane16_swap_b32 %s, %s' % (v(vmx), v(vmx2)))
        a('v_max_f32 %s, %s, %s' % (v(vmx), v(vmx), v(vmx2)))
        a('v_mul_f32 %s, %s, %s' % (v(vmx), s(s_c), v(vmx)))
        if aa == 0:
            dst = {t: Sg[t & ~1] + 2 * (t & 1) for t in range(2, 16)}
            dst[1] = Sg[0] + 2
            dhi, dlo = Sg[0], Sg[16]
        else:
            dst = {t: Sg[t - ((t - 1) & 1)] + 2 * ((t - 1) & 1) for t in range(1, 15)}
            dst[15] = Sg[15]
            dhi, dlo = Sg[0], Sg[15] + 2
        order = list(range(1, 16)) + [16]
        for t in order:
            b = Sg[t]
            for r in range(4):
                a('v_fma_f32 %s, %s, %s, -%s' % (v(b + r), v(b + r), s(s_c), v(vmx)))
            for r in range(4):
                a('v_exp_f32 %s, %s' % (v(b + r), v(b + r)))
            if t < 16:
                a('v_cvt_pk_bf16_f32 %s, %s, %s' % (v(dst[t]), v(b), v(b + 1)))
                a('v_cvt_pk_bf16_f32 %s, %s, %s' % (v(dst[t] + 1), v(b + 2), v(b + 3)))
            else:
                a('v_cvt_pk_bf16_f32 %s, %s, %s' % (v(vt0), v(b), v(b + 1)))
                a('v_cvt_pk_bf16_f32 %s, %s, %s' % (v(vt1), v(b + 2), v(b + 3)))
                a('v_and_b32 %s, %s, %s' % (v(dlo), v(vt0), v(vML[0])))
                a('v_and_b32 %s, %s, %s' % (v(dlo + 1), v(vt1), v(vML[1])))
                a('v_and_b32 %s, %s, %s' % (v(dhi), v(vt0), v(vMH[0])))
                a('v_and_b32 %s, %s, %s' % (v(dhi + 1), v(vt1), v(vMH[1])))

    stamp(a, ST, 2)
    softmax(0)
    softmax(1)
    stamp(a, ST, 3)

    Vb = [(fK[0], fK[1]), (fK[2], fK[3]), (fK[4], fK[5])]

    def vreads(slot, kta, ktb):
        for dt in range(2):
            base, stride = (vV0a, 512) if dt == 0 else (vV1a, 256)
            a('ds_read_b64_tr_b16 %s, %s offset:%d' % (v(Vb[slot][dt], 2), v(base), kta * stride))
            a('ds_read_b64_tr_b16 %s, %s offset:%d' % (v(Vb[slot][dt] + 2, 2), v(base), ktb * stride))

    steps = [(0, 1)] + [(t, t + 1) for t in range(2, 16, 2)] + [(16, 17)]
    vreads(0, *steps[0])
    vreads(1, *steps[1])
    first = [[True, True], [True, True]]

    def pv(aa, dt, vreg, preg, wide):
        cc = '0' if first[aa][dt] else v(Oacc[aa][dt], 4)
        first[aa][dt] = False
        if wide:
            a('v_mfma_f32_16x16x32_bf16 %s, %s, %s, %s' % (v(Oacc[aa][dt], 4), v(vreg, 4), v(preg, 4), cc))
        else:
            a('v_mfma_f32_16x16x16_bf16 %s, %s, %s, %s' % (v(Oacc[aa][dt], 4), v(vreg, 2), v(preg, 2), cc))

    for si, (ta, tb) in enumerate(steps):
        if si + 2 < len(steps):
            vreads((si + 2) % 3, *steps[si + 2])
        nafter = min(len(steps) - 1, si + 2) - si
        a('s_waitcnt lgkmcnt(%d)' % (4 * nafter))
        sl = Vb[si % 3]
        for dt in range(2):
            if si == 0:
                pv(0, dt, sl[dt], Sreg[0][0], True)
                pv(1, dt, sl[dt] + 2, Sreg[1][0], False)
            elif si == len(steps) - 1:
                pv(0, dt, sl[dt], Sreg[0][16], False)
                pv(1, dt, sl[dt], Sreg[1][15], True)
            else:
                pv(0, dt, sl[dt], Sreg[0][ta], True)
                pv(1, dt, sl[dt], Sreg[1][ta - 1], True)

    stamp(a, ST, 4)
    vo = R.alloc()
    a('s_mul_i32 %s, %s, %d' % (s(s_t0), s(s_wq), 32 * 80))
    a('s_mul_i32 %s, %s, 40' % (s(s_t1), s(s_hh)))
    a('s_add_u32 %s, %s, %s' % (s(s_t0), s(s_t0), s(s_t1)))
    a('s_add_u32 %s, %s, %d' % (s(s_t0), s(s_t0), STG))
    a('v_mul_u32_u24 %s, 80, %s' % (v(vo), v(vi)))
    a('v_lshl_add_u32 %s, %s, 3, %s' % (v(vo), v(vg), v(vo)))
    a('v_add_u32 %s, %s, %s' % (v(vo), s(s_t0), v(vo)))
    for aa in range(2):
        O0, O1 = Oacc[aa]
        a('v_mov_b32 %s, %s' % (v(vt0), v(O1)))
        a('v_mov_b32 %s, %s' % (v(vt1), v(O1)))
        a('v_permlane16_swap_b32 %s, %s' % (v(vt0), v(vt1)))
        a('v_mov_b32 %s, %s' % (v(vt0), v(vt1)))
        a('v_permlane32_swap_b32 %s, %s' % (v(vt0), v(vt1)))
        a('v_rcp_f32 %s, %s' % (v(vt0), v(vt0)))
        for r in range(4):
            a('v_mul_f32 %s, %s, %s' % (v(O0 + r), v(vt0), v(O0 + r)))
            a('v_mul_f32 %s, %s, %s' % (v(O1 + r), v(vt0), v(O1 + r)))
        a('v_cvt_pk_bf16_f32 %s, %s, %s' % (v(O0), v(O0), v(O0 + 1)))
        a('v_cvt_pk_bf16_f32 %s, %s, %s' % (v(O0 + 1), v(O0 + 2), v(O0 + 3)))
        a('v_cvt_pk_bf16_f32 %s, %s, %s' % (v(O1), v(O1), v(O1 + 1)))
        a('v_cvt_pk_bf16_f32 %s, %s, %s' % (v(O1 + 1), v(O1 + 2), v(O1 + 3)))
        a('ds_write_b64 %s, %s offset:%d' % (v(vo), v(O0, 2), aa * 16 * 80))
        a('s_mov_b64 exec, 0xffff')
        a('ds_write_b64 %s, %s offset:%d' % (v(vo), v(O1, 2), aa * 16 * 80 + 32))
        a('s_mov_b64 exec, -1')
    a('s_mul_i32 %s, %s, 1280' % (s(s_t0), s(s_wave)))
    a('v_lshl_add_u32 %s, v0, 4, %s' % (v(vt0), s(s_t0)))
    a('v_add_u32 %s, %d, %s' % (v(vt1), STG, v(vt0)))
    a('s_mul_i32 %s, %s, 163840' % (s(s_t0), s(s_pair)))
    a('s_mul_i32 %s, %s, 10240' % (s(s_t1), s(s_qb)))
    a('s_add_u32 %s, %s, %s' % (s(s_t0), s(s_t0), s(s_t1)))
    a('s_waitcnt lgkmcnt(0)')
    a('s_barrier')
    a('ds_read_b128 %s, %s' % (v(fK[0], 4), v(vt1)))
    a('ds_read_b128 %s, %s offset:1024' % (v(fK[1], 4), v(vt1)))
    a('s_waitcnt lgkmcnt(1)')
    a('buffer_store_dwordx4 %s, %s, %s, %s offen%s' % (v(fK[0], 4), v(vt0), s(sO, 4), s(s_t0), STFLAG))
    a('s_waitcnt lgkmcnt(0)')
    a('s_mov_b64 exec, 0xffff')
    a('buffer_store_dwordx4 %s, %s, %s, %s offen offset:1024%s' % (v(fK[1], 4), v(vt0), s(sO, 4), s(s_t0), STFLAG))
    a('s_mov_b64 exec, -1')
    stamp_flush(a, ST, 1, 5, s_wave, L('sdone'))
    a.label(L('end'))
    a('s_endpgm')
    return dict(name=name, vgpr=254 if ST else R.hi, sgpr=90 if ST else 40, lds=LDS, block=512, grid=256)
```

```python
from asmlib import Asm, Regs, v, s

WS_QKV = 0
WS_O = 0x800000
WS_H = 0xB00000
WS_H1 = 0x1000000
QKV_BYTES = 96 * 81920
WS_STAMP = 0x3000000
STAMP_S = 60

KA = dict(x=0, wqkv=8, wo=16, bx=24, w1=32, w2=40, out=48, dbg=56, ws=64)
STFLAG = ' sc1'


def build_srd(a, sr, sptr, off, nbytes):
    if off:
        a('s_add_u32 %s, %s, 0x%x' % (s(sr), s(sptr), off))
        a('s_addc_u32 %s, %s, 0' % (s(sr + 1), s(sptr + 1)))
        a('s_and_b32 %s, %s, 0xffff' % (s(sr + 1), s(sr + 1)))
    else:
        a('s_mov_b32 %s, %s' % (s(sr), s(sptr)))
        a('s_and_b32 %s, %s, 0xffff' % (s(sr + 1), s(sptr + 1)))
    a('s_mov_b32 %s, 0x%x' % (s(sr + 2), nbytes))
    a('s_mov_b32 %s, 0x20000' % s(sr + 3))


def stamp(a, on, i):
    if on:
        a('s_memrealtime %s' % s(STAMP_S + 2 * i, 2))


def stamp_flush(a, on, kidx, n, s_wave, lbl):
    if not on:
        return
    a('s_waitcnt vmcnt(0)')
    stamp(a, on, n)
    a('s_load_dwordx2 s[80:81], s[0:1], %d' % KA['ws'])
    a('s_waitcnt lgkmcnt(0)')
    a('s_cmp_lg_u32 %s, 0' % s(s_wave))
    a('s_cbranch_scc1 %s' % lbl)
    build_srd(a, 76, 80, WS_STAMP + kidx * 16384, 16384)
    a('s_lshl_b32 s82, s2, 6')
    a('v_mov_b32 v250, s82')
    a('s_mov_b64 exec, 1')
    for i in range(n + 1):
        a('v_mov_b32 v252, %s' % s(STAMP_S + 2 * i))
        a('v_mov_b32 v253, %s' % s(STAMP_S + 2 * i + 1))
        a('buffer_store_dwordx2 v[252:253], v250, s[76:79], 0 offen offset:%d' % (8 * i))
        a('s_nop 1')
    a('s_mov_b64 exec, -1')
    a.label(lbl)


def bf16_round(a, dst, src):
    a('v_cvt_pk_bf16_f32 %s, %s, %s' % (v(dst), v(src), v(src)))
    a('v_lshlrev_b32 %s, 16, %s' % (v(dst), v(dst)))


def gen_gemm(a, c):
    name = c['name']
    BM, BN, K, N = c['BM'], c['BN'], c['K'], c['N']
    WM, WN = c['WM'], c['WN']
    D = c['D']
    LN = c.get('LN', False)
    epi = c['epi']
    ST = c.get('stamps', False)
    MT = BM // 16 // WM
    NT = BN // 16 // WN
    S = K // 64
    G = BN // 8
    rowW = BN * 2
    assert rowW in (128, 256)
    XB = BM * 128
    WB = 64 * rowW
    SLOT = XB + WB
    SCOL = D * SLOT
    lds_total = SCOL + BN * 4
    strideX = K * 2
    strideW = N * 2
    nX = BM // 32
    nW = 16 * G // 64
    nDMA = nX + nW
    pairX = c.get('pairX', False)
    last_slot = (S - 1) % D
    STG = (last_slot + 1) * SLOT if last_slot + 1 < D else 0
    STG_ROOM = (D - last_slot - 1) * SLOT if last_slot + 1 < D else last_slot * SLOT
    stf = STFLAG if c.get('sc1', True) else ''
    L = lambda x: '%s_%s' % (name, x)

    sX, sW, sO, sR = 4, 8, 12, 16
    pX, pW, pO, pR = 20, 22, 24, 26
    s_rb, s_cb, s_wave, s_t0, s_t1, s_kx, s_kw, s_ldsX, s_ldsW, s_st = 28, 29, 30, 31, 32, 33, 34, 35, 36, 37
    s_wm, s_wn, s_tok0, s_col0 = 38, 39, 40, 41
    s_ex = 42
    s_slot = 46
    s_t2, s_t3, s_t4, s_t5 = 54, 55, 56, 57
    s_m4 = 58

    a.raw('.p2align 8')
    a.raw('.globl %s' % name)
    a.raw('.type %s,@function' % name)
    a.label(name)
    stamp(a, ST, 0)
    a('s_load_dwordx2 %s, s[0:1], %d' % (s(pX, 2), KA[c['x'][0]]))
    a('s_load_dwordx2 %s, s[0:1], %d' % (s(pW, 2), KA[c['w']]))
    a('s_load_dwordx2 %s, s[0:1], %d' % (s(pO, 2), KA[c['o'][0]]))
    if epi == 'resid':
        a('s_load_dwordx2 %s, s[0:1], %d' % (s(pR, 2), KA[c['r'][0]]))
    a('s_cmp_ge_u32 s2, 256')
    a('s_cbranch_scc1 %s' % L('end'))
    a('s_and_b32 %s, s2, 7' % s(s_t0))
    a('s_lshr_b32 %s, s2, 3' % s(s_t1))
    if c['map'] == 'p2':
        RBX = c['rb_per_xcd']
        a('s_and_b32 %s, %s, %d' % (s(s_t2), s(s_t1), RBX - 1))
        a('s_lshr_b32 %s, %s, %d' % (s(s_t3), s(s_t1), RBX.bit_length() - 1))
        a('s_lshr_b32 %s, %s, 1' % (s(s_rb), s(s_t0)))
        a('s_mul_i32 %s, %s, %d' % (s(s_rb), s(s_rb), RBX))
        a('s_add_u32 %s, %s, %s' % (s(s_rb), s(s_rb), s(s_t2)))
        a('s_and_b32 %s, %s, 1' % (s(s_cb), s(s_t0)))
        a('s_mul_i32 %s, %s, %d' % (s(s_cb), s(s_cb), c['cb_stride']))
        a('s_cmp_ge_u32 %s, %d' % (s(s_t3), c['cb_stride']))
        a('s_cbranch_scc1 %s' % L('end'))
        a('s_add_u32 %s, %s, %s' % (s(s_cb), s(s_cb), s(s_t3)))
        a('s_cmp_ge_u32 %s, %d' % (s(s_cb), c['NB']))
        a('s_cbranch_scc1 %s' % L('end'))
        rot_max = c['rot'][0] * (RBX - 1) + c['rot'][1] * (c['cb_stride'] - 1)
    else:
        a('s_mul_i32 %s, %s, 205' % (s(s_t2), s(s_t1)))
        a('s_lshr_b32 %s, %s, 10' % (s(s_t2), s(s_t2)))
        a('s_mul_i32 %s, %s, 5' % (s(s_t3), s(s_t2)))
        a('s_sub_u32 %s, %s, %s' % (s(s_t3), s(s_t1), s(s_t3)))
        a('s_lshr_b32 %s, %s, 1' % (s(s_t1), s(s_t0)))
        a('s_mul_i32 %s, %s, 11' % (s(s_rb), s(s_t1)))
        a('s_add_u32 %s, %s, 12' % (s(s_t4), s(s_rb)))
        a('s_lshr_b32 %s, %s, 1' % (s(s_t4), s(s_t4)))
        a('s_add_u32 %s, %s, 1' % (s(s_rb), s(s_rb)))
        a('s_lshr_b32 %s, %s, 1' % (s(s_rb), s(s_rb)))
        a('s_add_u32 %s, %s, %s' % (s(s_rb), s(s_rb), s(s_t2)))
        a('s_cmp_ge_u32 %s, %s' % (s(s_rb), s(s_t4)))
        a('s_cbranch_scc1 %s' % L('end'))
        a('s_and_b32 %s, %s, 1' % (s(s_cb), s(s_t0)))
        a('s_mul_i32 %s, %s, 5' % (s(s_cb), s(s_cb)))
        a('s_add_u32 %s, %s, %s' % (s(s_cb), s(s_cb), s(s_t3)))
        rot_max = c['rot'][0] * 5 + c['rot'][1] * 4
    a('v_lshrrev_b32 v1, 6, v0')
    a('v_and_b32 v0, 63, v0')
    a('v_readfirstlane_b32 %s, v1' % s(s_wave))
    a('s_mul_i32 %s, %s, %d' % (s(s_tok0), s(s_rb), BM))
    a('s_mul_i32 %s, %s, %d' % (s(s_col0), s(s_cb), BN))
    a('s_cmp_ge_u32 %s, 4' % s(s_wave))
    a('s_cbranch_scc1 %s' % L('loader'))

    R = Regs(1, 256, 'v')
    vg, vi, vt0, vt1, vt2, vt3 = [R.alloc() for _ in range(6)]
    a('v_lshrrev_b32 %s, 4, v0' % v(vg))
    a('v_and_b32 %s, 15, v0' % v(vi))
    if WN == 1:
        a('s_mov_b32 %s, %s' % (s(s_wm), s(s_wave)))
        a('s_mov_b32 %s, 0' % s(s_wn))
    else:
        assert WN == 2
        a('s_lshr_b32 %s, %s, 1' % (s(s_wm), s(s_wave)))
        a('s_and_b32 %s, %s, 1' % (s(s_wn), s(s_wave)))
    vXa = [R.alloc() for _ in range(2)]
    vXs = [R.alloc() for _ in range(2)]
    a('s_mul_i32 %s, %s, %d' % (s(s_t0), s(s_wm), MT * 16 * 128))
    a('v_lshrrev_b32 %s, 1, %s' % (v(vt0), v(vi)))
    a('v_lshlrev_b32 %s, 7, %s' % (v(vt1), v(vi)))
    a('v_add_u32 %s, %s, %s' % (v(vt1), s(s_t0), v(vt1)))
    for ks in range(2):
        a('v_add_u32 %s, %d, %s' % (v(vt2), 4 * ks, v(vg)))
        a('v_xor_b32 %s, %s, %s' % (v(vt2), v(vt2), v(vt0)))
        a('v_lshl_add_u32 %s, %s, 4, %s' % (v(vXa[ks]), v(vt2), v(vt1)))
    vWa = [R.alloc() for _ in range(NT)]
    vWs = [R.alloc() for _ in range(NT)]
    a('v_lshrrev_b32 %s, 2, %s' % (v(vt0), v(vi)))
    a('v_and_b32 %s, 1, %s' % (v(vt1), v(vg)))
    a('v_lshl_add_u32 %s, %s, 2, %s' % (v(vt0), v(vt1), v(vt0)))
    a('v_lshrrev_b32 %s, 1, %s' % (v(vt1), v(vg)))
    a('v_lshl_add_u32 %s, %s, 4, %s' % (v(vt1), v(vt1), v(vt0)))
    a('v_mul_u32_u24 %s, %d, %s' % (v(vt1), rowW, v(vt1)))
    a('v_and_b32 %s, 1, %s' % (v(vt2), v(vi)))
    a('v_lshl_add_u32 %s, %s, 3, %s' % (v(vt1), v(vt2), v(vt1)))
    a('v_bfe_u32 %s, %s, 1, 1' % (v(vt2), v(vi)))
    a('v_lshl_add_u32 %s, %s, 4, %s' % (v(vt1), v(vt2), v(vt1)))
    a('v_add_u32 %s, %d, %s' % (v(vt1), XB, v(vt1)))
    if rowW == 256:
        a('v_lshlrev_b32 %s, 1, %s' % (v(vt0), v(vt0)))
    else:
        a('v_and_b32 %s, 6, %s' % (v(vt0), v(vt0)))
    for nt in range(NT):
        if LN:
            a('s_lshl_b32 %s, %s, 1' % (s(s_t0), s(s_wave)))
            a('s_add_u32 %s, %s, %d' % (s(s_t0), s(s_t0), nt))
            a('s_and_b32 %s, %s, 7' % (s(s_slot + nt), s(s_t0)))
        else:
            a('s_mul_i32 %s, %s, %d' % (s(s_t0), s(s_wn), NT))
            a('s_add_u32 %s, %s, %d' % (s(s_slot + nt), s(s_t0), nt))
        a('s_lshl_b32 %s, %s, 1' % (s(s_t0), s(s_slot + nt)))
        a('v_xor_b32 %s, %s, %s' % (v(vt2), s(s_t0), v(vt0)))
        a('v_lshl_add_u32 %s, %s, 4, %s' % (v(vWa[nt]), v(vt2), v(vt1)))
    a('s_waitcnt lgkmcnt(0)')
    build_srd(a, sO, pO, c['o'][1], c['obytes'])

    if epi == 'resid':
        build_srd(a, sR, pR, c['r'][1], 2048 * 1280)
        NCH = BM * 8 // 64 // 4
        vOut = [R.alloc() for _ in range(NCH)]
        vRes = [R.alloc(4, 4) for _ in range(NCH)]
        a('s_mul_i32 %s, %s, %d' % (s(s_t0), s(s_wave), NCH * 8))
        a('s_add_u32 %s, %s, %s' % (s(s_t0), s(s_t0), s(s_tok0)))
        a('v_lshrrev_b32 %s, 3, v0' % v(vt0))
        a('v_add_u32 %s, %s, %s' % (v(vt0), s(s_t0), v(vt0)))
        a('v_mul_u32_u24 %s, 1280, %s' % (v(vt0), v(vt0)))
        a('v_and_b32 %s, 7, v0' % v(vt1))
        a('v_lshl_add_u32 %s, %s, 4, %s' % (v(vt0), v(vt1), v(vt0)))
        a('s_lshl_b32 %s, %s, 1' % (s(s_t0), s(s_col0)))
        a('v_add_u32 %s, %s, %s' % (v(vOut[0]), s(s_t0), v(vt0)))
        for j in range(1, NCH):
            a('v_add_u32 %s, %d, %s' % (v(vOut[j]), j * 8 * 1280, v(vOut[0])))
        for j in range(NCH):
            a('buffer_load_dwordx4 %s, %s, %s, 0 offen' % (v(vRes[j], 4), v(vOut[j]), s(sR, 4)))

    acc = [[R.alloc(4, 4) for nt in range(NT)] for mt in range(MT)]
    fX = [[R.alloc(4, 4) for mt in range(MT)] for _ in range(2)]
    fW = [[R.alloc(4, 4) for nt in range(NT)] for _ in range(2)]
    nreads = MT + 2 * NT

    def addr(st):
        base = (st % D) * SLOT
        for ks in range(2):
            a('v_add_u32 %s, 0x%x, %s' % (v(vXs[ks]), base, v(vXa[ks])))
        for j in range(NT):
            a('v_add_u32 %s, 0x%x, %s' % (v(vWs[j]), base, v(vWa[j])))

    def reads(setn, ks):
        if c.get('nocompute') or c.get('noreads'):
            return
        for mt in range(MT):
            a('ds_read_b128 %s, %s offset:%d' % (v(fX[setn][mt], 4), v(vXs[ks]), mt * 2048))
        for nt in range(NT):
            for hf in range(2):
                off = (32 * ks + 8 * hf) * rowW
                a('ds_read_b64_tr_b16 %s, %s offset:%d' % (v(fW[setn][nt] + 2 * hf, 2), v(vWs[nt]), off))

    if LN:
        assert WN == 1 and NT == 8
        vones = R.alloc(4, 4)
        for r in range(4):
            a('v_mov_b32 %s, 0x3f803f80' % v(vones + r))
        accS = [R.alloc(4, 4) for _ in range(MT)]
        accG = [R.alloc(4, 4) for _ in range(MT)]
        accC = [R.alloc(4, 4) for _ in range(2)]

    def mfmas(setn, first):
        if (c.get('nocompute') or c.get('nomfma')) and not first:
            return
        for nt in range(NT):
            for mt in range(MT):
                cc = '0' if first else v(acc[mt][nt], 4)
                a('v_mfma_f32_16x16x32_bf16 %s, %s, %s, %s' % (v(acc[mt][nt], 4), v(fW[setn][nt], 4), v(fX[setn][mt], 4), cc))
            if LN:
                if nt < 2:
                    cc = '0' if first else v(accC[nt], 4)
                    a('v_mfma_f32_16x16x32_bf16 %s, %s, %s, %s' % (v(accC[nt], 4), v(fW[setn][nt], 4), v(vones, 4), cc))
                elif nt < 2 + MT:
                    mt = nt - 2
                    cc = '0' if first else v(accS[mt], 4)
                    a('v_mfma_f32_16x16x32_bf16 %s, %s, %s, %s' % (v(accS[mt], 4), v(vones, 4), v(fX[setn][mt], 4), cc))
                elif nt < 2 + 2 * MT:
                    mt = nt - 2 - MT
                    cc = '0' if first else v(accG[mt], 4)
                    a('v_mfma_f32_16x16x32_bf16 %s, %s, %s, %s' % (v(accG[mt], 4), v(fX[setn][mt], 4), v(fX[setn][mt], 4), cc))

    addr(0)
    a('s_barrier')
    stamp(a, ST, 1)
    reads(0, 0)
    for st in range(S):
        reads(1, 1)
        a('s_waitcnt lgkmcnt(%d)' % min(15, nreads))
        mfmas(0, st == 0)
        a('s_waitcnt lgkmcnt(0)')
        if st + 1 < S:
            addr(st + 1)
            a('s_barrier')
            reads(0, 0)
        mfmas(1, False)

    stamp(a, ST, 2)
    if LN:
        vmean = [R.alloc() for _ in range(MT)]
        vrinv = [R.alloc() for _ in range(MT)]
        vcs = [R.alloc(4, 4) for _ in range(NT)]
        T0, T1 = fW[0][0], fW[0][1]
        for j in range(2):
            a('s_lshl_b32 %s, %s, 6' % (s(s_t0), s(s_slot + j)))
            a('v_lshl_add_u32 %s, %s, 4, %s' % (v(vt0), v(vg), s(s_t0)))
            a('v_add_u32 %s, 0x%x, %s' % (v(vt0), SCOL, v(vt0)))
            a('ds_write_b128 %s, %s' % (v(vt0), v(accC[j], 4)))
        a('v_and_b32 %s, 3, %s' % (v(vt0), v(vi)))
        a('v_lshrrev_b32 %s, 2, %s' % (v(vt1), v(vi)))
        a('v_cmp_eq_u32 %s, 1, %s' % (s(s_ex, 2), v(vt0)))
        a('v_cmp_eq_u32 %s, 2, %s' % (s(s_ex + 2, 2), v(vt0)))
        a('v_cmp_eq_u32 vcc, 3, %s' % v(vt0))
        a('v_cmp_eq_u32 %s, %s, %s' % (s(s_m4, 2), v(vt1), v(vg)))
        a('s_mov_b32 %s, 0x3acccccd' % s(s_t1))
        a('v_mov_b32 %s, 0' % v(vt2))
        for mt in range(MT):
            Gm = accG[mt]
            a('v_cndmask_b32 %s, %s, %s, %s' % (v(T1), v(Gm), v(Gm + 1), s(s_ex, 2)))
            a('v_cndmask_b32 %s, %s, %s, %s' % (v(T1), v(T1), v(Gm + 2), s(s_ex + 2, 2)))
            a('v_cndmask_b32 %s, %s, %s, vcc' % (v(T1), v(T1), v(Gm + 3)))
            a('v_cndmask_b32 %s, %s, %s, %s' % (v(T1), v(vt2), v(T1), s(s_m4, 2)))
            a('v_mov_b32 %s, %s' % (v(T0), v(T1)))
            a('v_permlane32_swap_b32 %s, %s' % (v(T1), v(T0)))
            a('v_add_f32 %s, %s, %s' % (v(T1), v(T1), v(T0)))
            a('v_mov_b32 %s, %s' % (v(T0), v(T1)))
            a('v_permlane16_swap_b32 %s, %s' % (v(T1), v(T0)))
            a('v_add_f32 %s, %s, %s' % (v(T1), v(T1), v(T0)))
            a('v_mul_f32 %s, %s, %s' % (v(T0), s(s_t1), v(accS[mt])))
            a('v_mul_f32 %s, %s, %s' % (v(T1), s(s_t1), v(T1)))
            a('v_fma_f32 %s, -%s, %s, %s' % (v(T1), v(T0), v(T0), v(T1)))
            a('v_max_f32 %s, 0, %s' % (v(T1), v(T1)))
            bf16_round(a, vmean[mt], T0)
            bf16_round(a, T1, T1)
            a('v_add_f32 %s, 0x3727c5ac, %s' % (v(T1), v(T1)))
            bf16_round(a, T1, T1)
            a('v_sqrt_f32 %s, %s' % (v(T1), v(T1)))
            bf16_round(a, T1, T1)
            a('v_rcp_f32 %s, %s' % (v(vrinv[mt]), v(T1)))
        a('s_waitcnt lgkmcnt(0)')
        a('s_barrier')
        for nt in range(NT):
            a('s_lshl_b32 %s, %s, 6' % (s(s_t0), s(s_slot + nt)))
            a('v_lshl_add_u32 %s, %s, 4, %s' % (v(vt0), v(vg), s(s_t0)))
            a('v_add_u32 %s, 0x%x, %s' % (v(vt0), SCOL, v(vt0)))
            a('ds_read_b128 %s, %s' % (v(vcs[nt], 4), v(vt0)))
        a('s_waitcnt lgkmcnt(0)')

    def ln_apply(A, mt, nt, relu):
        for r in range(4):
            a('v_fma_f32 %s, -%s, %s, %s' % (v(A + r), v(vmean[mt]), v(vcs[nt] + r), v(A + r)))
        for r in range(4):
            a('v_mul_f32 %s, %s, %s' % (v(A + r), v(vrinv[mt]), v(A + r)))
        if relu:
            for r in range(4):
                a('v_max_f32 %s, 0, %s' % (v(A + r), v(A + r)))
        a('v_cvt_pk_bf16_f32 %s, %s, %s' % (v(A), v(A), v(A + 1)))
        a('v_cvt_pk_bf16_f32 %s, %s, %s' % (v(A + 1), v(A + 2), v(A + 3)))

    cbuf = [fX[0][0], fX[0][1], fX[1][0], fX[1][1]] + [fW[1][j] for j in range(NT)] + [fW[0][j] for j in range(NT)]

    if epi == 'qkv':
        assert 4 * 10240 <= STG_ROOM
        s_hd0, s_r0, s_hf0, s_hfe, s_rL, s_wb, s_tw = s_kx, s_kw, s_ldsX, s_ldsW, s_st, s_t4, s_t5
        a('s_lshl_b32 %s, %s, 5' % (s(s_t0), s(s_cb)))
        a('s_mul_i32 %s, %s, 205' % (s(s_hd0), s(s_t0)))
        a('s_lshr_b32 %s, %s, 10' % (s(s_hd0), s(s_hd0)))
        a('s_mul_i32 %s, %s, 5' % (s(s_t1), s(s_hd0)))
        a('s_sub_u32 %s, %s, %s' % (s(s_r0), s(s_t0), s(s_t1)))
        a('s_cmp_lg_u32 %s, 0' % s(s_r0))
        a('s_addc_u32 %s, %s, 0' % (s(s_hf0), s(s_hd0)))
        a('s_add_u32 %s, %s, 32' % (s(s_t0), s(s_t0)))
        a('s_mul_i32 %s, %s, 205' % (s(s_hfe), s(s_t0)))
        a('s_lshr_b32 %s, %s, 10' % (s(s_hfe), s(s_hfe)))
        a('s_mul_i32 %s, %s, 5' % (s(s_t1), s(s_hfe)))
        a('s_sub_u32 %s, %s, %s' % (s(s_rL), s(s_t0), s(s_t1)))
        a('s_mul_i32 %s, %s, 10240' % (s(s_wb), s(s_wave)))
        a('s_add_u32 %s, %s, 0x%x' % (s(s_wb), s(s_wb), STG))
        a('s_lshl_b32 %s, %s, 5' % (s(s_tw), s(s_wave)))
        a('s_add_u32 %s, %s, %s' % (s(s_tw), s(s_tw), s(s_tok0)))
        a('s_mul_i32 %s, %s, 40' % (s(s_tw), s(s_tw)))
        vtok = R.alloc()
        vo = [R.alloc() for _ in range(NT)]
        a('v_mul_u32_u24 %s, 40, %s' % (v(vtok), v(vi)))
        a('v_add_u32 %s, %s, %s' % (v(vtok), s(s_wb), v(vtok)))
        for nt in range(NT):
            a('s_lshl_b32 %s, %s, 2' % (s(s_t0), s(s_slot + nt)))
            a('s_lshl_b32 %s, %s, 5' % (s(s_t1), s(s_cb)))
            a('s_add_u32 %s, %s, %s' % (s(s_t0), s(s_t0), s(s_t1)))
            a('v_add_u32 %s, %s, %s' % (v(vt0), s(s_t0), v(vg)))
            a('v_mul_u32_u24 %s, 205, %s' % (v(vt1), v(vt0)))
            a('v_lshrrev_b32 %s, 10, %s' % (v(vt1), v(vt1)))
            a('v_mul_u32_u24 %s, 5, %s' % (v(vt2), v(vt1)))
            a('v_sub_u32 %s, %s, %s' % (v(vt2), v(vt0), v(vt2)))
            a('v_subrev_u32 %s, %s, %s' % (v(vt1), s(s_hd0), v(vt1)))
            a('v_mul_u32_u24 %s, 1280, %s' % (v(vt1), v(vt1)))
            a('v_lshl_add_u32 %s, %s, 3, %s' % (v(vt1), v(vt2), v(vt1)))
            a('v_add_u32 %s, %s, %s' % (v(vo[nt]), v(vt1), v(vtok)))
        for nt in range(NT):
            for mt in range(MT):
                A = acc[mt][nt]
                ln_apply(A, mt, nt, False)
                a('ds_write_b64 %s, %s offset:%d' % (v(vo[nt]), v(A, 2), mt * 640))
        for q in range(512):
            assert (q * 205) >> 14 == q // 80
        a('s_sub_u32 %s, %s, %s' % (s(s_t0), s(s_hfe), s(s_hf0)))
        a('s_mul_i32 %s, %s, 80' % (s(s_t0), s(s_t0)))
        a('s_sub_u32 %s, %s, %s' % (s(s_t1), s(s_hf0), s(s_hd0)))
        a('s_mul_i32 %s, %s, 1280' % (s(s_t1), s(s_t1)))
        a('s_add_u32 %s, %s, %s' % (s(s_t1), s(s_t1), s(s_wb)))
        a('s_mul_i32 %s, %s, 81920' % (s(s_t2), s(s_hf0)))
        a('s_add_u32 %s, %s, %s' % (s(s_t2), s(s_t2), s(s_tw)))
        vga = [R.alloc() for _ in range(8)]
        vla = vo
        for it in range(8):
            a('v_add_u32 %s, %d, v0' % (v(vt0), 64 * it))
            a('v_mul_u32_u24 %s, 205, %s' % (v(vt1), v(vt0)))
            a('v_lshrrev_b32 %s, 14, %s' % (v(vt1), v(vt1)))
            a('v_mul_u32_u24 %s, 80, %s' % (v(vt2), v(vt1)))
            a('v_sub_u32 %s, %s, %s' % (v(vt2), v(vt0), v(vt2)))
            a('v_lshlrev_b32 %s, 4, %s' % (v(vt2), v(vt2)))
            a('v_mul_u32_u24 %s, 81920, %s' % (v(vt3), v(vt1)))
            a('v_add3_u32 %s, %s, %s, %s' % (v(vga[it]), v(vt3), v(vt2), s(s_t2)))
        a('s_waitcnt lgkmcnt(0)')
        for it in range(8):
            a('v_lshl_add_u32 %s, v0, 4, %s' % (v(vt0), s(s_t1)))
            a('ds_read_b128 %s, %s offset:%d' % (v(cbuf[it], 4), v(vt0), it * 1024))
        for it in range(8):
            a('s_waitcnt lgkmcnt(%d)' % (7 - it))
            if it >= 6:
                a('v_add_u32 %s, %d, v0' % (v(vt0), 64 * it))
                a('v_cmp_gt_u32 vcc, %s, %s' % (s(s_t0), v(vt0)))
                a('s_and_saveexec_b64 %s, vcc' % s(s_ex, 2))
                a('s_cbranch_execz %s' % L('fs%d' % it))
            a('buffer_store_dwordx4 %s, %s, %s, 0 offen%s' % (v(cbuf[it], 4), v(vga[it]), s(sO, 4), stf))
            if it >= 6:
                a.label(L('fs%d' % it))
                a('s_mov_b64 exec, %s' % s(s_ex, 2))
        for which in range(2):
            if which == 0:
                a('s_cmp_eq_u32 %s, 0' % s(s_r0))
                a('s_cbranch_scc1 %s' % L('pd0'))
                a('s_sub_u32 %s, 5, %s' % (s(s_t0), s(s_r0)))
                a('s_lshl_b32 %s, %s, 3' % (s(s_t1), s(s_r0)))
                a('s_mul_i32 %s, %s, 81920' % (s(s_t2), s(s_hd0)))
                a('s_add_u32 %s, %s, %s' % (s(s_t2), s(s_t2), s(s_t1)))
                a('s_add_u32 %s, %s, %s' % (s(s_t1), s(s_t1), s(s_wb)))
            else:
                a('s_cmp_eq_u32 %s, 0' % s(s_rL))
                a('s_cbranch_scc1 %s' % L('pd1'))
                a('s_mov_b32 %s, %s' % (s(s_t0), s(s_rL)))
                a('s_sub_u32 %s, %s, %s' % (s(s_t1), s(s_hfe), s(s_hd0)))
                a('s_mul_i32 %s, %s, 1280' % (s(s_t1), s(s_t1)))
                a('s_add_u32 %s, %s, %s' % (s(s_t1), s(s_t1), s(s_wb)))
                a('s_mul_i32 %s, %s, 81920' % (s(s_t2), s(s_hfe)))
            a('s_add_u32 %s, %s, %s' % (s(s_t2), s(s_t2), s(s_tw)))
            for it in range(2):
                a('v_and_b32 %s, 31, v0' % v(vt0))
                a('v_mul_u32_u24 %s, 40, %s' % (v(vt0), v(vt0)))
                a('v_lshrrev_b32 %s, 5, v0' % v(vt1))
                a('v_add_u32 %s, %d, %s' % (v(vt1), 2 * it, v(vt1)))
                a('v_lshl_add_u32 %s, %s, 3, %s' % (v(vt0), v(vt1), v(vt0)))
                a('v_add_u32 %s, %s, %s' % (v(vt2), s(s_t1), v(vt0)))
                a('v_add_u32 %s, %s, %s' % (v(vt3), s(s_t2), v(vt0)))
                a('v_cmp_gt_u32 vcc, %s, %s' % (s(s_t0), v(vt1)))
                a('s_and_saveexec_b64 %s, vcc' % s(s_ex, 2))
                a('s_cbranch_execz %s' % L('ps%d%d' % (which, it)))
                a('ds_read_b64 %s, %s' % (v(vga[0 + 2 * it], 2) if False else v(cbuf[8 + 2 * which + it], 2), v(vt2)))
                a('s_waitcnt lgkmcnt(0)')
                a('buffer_store_dwordx2 %s, %s, %s, 0 offen%s' % (v(cbuf[8 + 2 * which + it], 2), v(vt3), s(sO, 4), stf))
                a.label(L('ps%d%d' % (which, it)))
                a('s_mov_b64 exec, %s' % s(s_ex, 2))
            a.label(L('pd%d' % which))
    elif epi == 'relu':
        RS = 272
        assert 4 * 32 * RS <= STG_ROOM
        s_wb = s_kx
        a('s_mul_i32 %s, %s, %d' % (s(s_wb), s(s_wave), 32 * RS))
        a('s_add_u32 %s, %s, 0x%x' % (s(s_wb), s(s_wb), STG))
        vw = R.alloc()
        a('v_mul_u32_u24 %s, %d, %s' % (v(vw), RS, v(vi)))
        a('v_lshl_add_u32 %s, %s, 3, %s' % (v(vw), v(vg), v(vw)))
        a('v_add_u32 %s, %s, %s' % (v(vw), s(s_wb), v(vw)))
        vws = [R.alloc() for _ in range(NT)]
        for nt in range(NT):
            a('s_lshl_b32 %s, %s, 5' % (s(s_t0), s(s_slot + nt)))
            a('v_add_u32 %s, %s, %s' % (v(vws[nt]), s(s_t0), v(vw)))
        for nt in range(NT):
            for mt in range(MT):
                A = acc[mt][nt]
                ln_apply(A, mt, nt, True)
                a('ds_write_b64 %s, %s offset:%d' % (v(vws[nt]), v(A, 2), mt * 16 * RS))
        vr, vgo = R.alloc(), R.alloc()
        a('v_mul_u32_u24 %s, %d, %s' % (v(vr), RS, v(vg)))
        a('v_lshl_add_u32 %s, %s, 4, %s' % (v(vr), v(vi), v(vr)))
        a('v_add_u32 %s, %s, %s' % (v(vr), s(s_wb), v(vr)))
        a('s_lshl_b32 %s, %s, 5' % (s(s_t0), s(s_wave)))
        a('s_add_u32 %s, %s, %s' % (s(s_t0), s(s_t0), s(s_tok0)))
        a('v_add_u32 %s, %s, %s' % (v(vgo), s(s_t0), v(vg)))
        a('v_mul_u32_u24 %s, %d, %s' % (v(vgo), N * 2, v(vgo)))
        a('v_lshl_add_u32 %s, %s, 4, %s' % (v(vgo), v(vi), v(vgo)))
        a('s_lshl_b32 %s, %s, 1' % (s(s_t0), s(s_col0)))
        a('v_add_u32 %s, %s, %s' % (v(vgo), s(s_t0), v(vgo)))
        nvalid_chunks = (N - (c['NB'] - 1) * BN) // 8
        a('s_cmp_eq_u32 %s, %d' % (s(s_cb), c['NB'] - 1))
        a('s_cselect_b32 %s, %d, 16' % (s(s_t1), nvalid_chunks))
        a('v_cmp_gt_u32 vcc, %s, %s' % (s(s_t1), v(vi)))
        a('s_waitcnt lgkmcnt(0)')
        for it in range(8):
            a('ds_read_b128 %s, %s offset:%d' % (v(cbuf[it], 4), v(vr), it * 4 * RS))
        a('s_and_saveexec_b64 %s, vcc' % s(s_ex, 2))
        for it in range(8):
            a('s_mov_b32 %s, %d' % (s(s_t0), it * 4 * N * 2))
            a('s_waitcnt lgkmcnt(%d)' % (7 - it))
            a('buffer_store_dwordx4 %s, %s, %s, %s offen%s' % (v(cbuf[it], 4), v(vgo), s(sO, 4), s(s_t0), stf))
        a('s_mov_b64 exec, %s' % s(s_ex, 2))
    elif epi == 'resid':
        RS = 144
        assert BM * RS <= STG_ROOM
        vw = R.alloc()
        a('s_mul_i32 %s, %s, %d' % (s(s_t0), s(s_wm), MT * 16 * RS))
        a('s_mul_i32 %s, %s, %d' % (s(s_t1), s(s_wn), NT * 32))
        a('s_add_u32 %s, %s, %s' % (s(s_t0), s(s_t0), s(s_t1)))
        a('s_add_u32 %s, %s, 0x%x' % (s(s_t0), s(s_t0), STG))
        a('v_mul_u32_u24 %s, %d, %s' % (v(vw), RS, v(vi)))
        a('v_lshl_add_u32 %s, %s, 3, %s' % (v(vw), v(vg), v(vw)))
        a('v_add_u32 %s, %s, %s' % (v(vw), s(s_t0), v(vw)))
        for nt in range(NT):
            for mt in range(MT):
                A = acc[mt][nt]
                a('v_cvt_pk_bf16_f32 %s, %s, %s' % (v(A), v(A), v(A + 1)))
                a('v_cvt_pk_bf16_f32 %s, %s, %s' % (v(A + 1), v(A + 2), v(A + 3)))
                a('ds_write_b64 %s, %s offset:%d' % (v(vw), v(A, 2), mt * 16 * RS + nt * 32))
        vr = R.alloc()
        a('s_mul_i32 %s, %s, %d' % (s(s_t0), s(s_wave), NCH * 8 * RS))
        a('s_add_u32 %s, %s, 0x%x' % (s(s_t0), s(s_t0), STG))
        a('v_lshrrev_b32 %s, 3, v0' % v(vr))
        a('v_mul_u32_u24 %s, %d, %s' % (v(vr), RS, v(vr)))
        a('v_and_b32 %s, 7, v0' % v(vt0))
        a('v_lshl_add_u32 %s, %s, 4, %s' % (v(vr), v(vt0), v(vr)))
        a('v_add_u32 %s, %s, %s' % (v(vr), s(s_t0), v(vr)))
        a('s_mov_b32 %s, 0xffff0000' % s(s_t0))
        a('s_waitcnt lgkmcnt(0)')
        a('s_barrier')
        for j in range(NCH):
            a('ds_read_b128 %s, %s offset:%d' % (v(cbuf[j], 4), v(vr), j * 8 * RS))
        a('s_waitcnt vmcnt(0)')
        for j in range(NCH):
            a('s_waitcnt lgkmcnt(%d)' % (NCH - 1 - j))
            Cb, Rr = cbuf[j], vRes[j]
            for h in range(4):
                a('v_lshlrev_b32 %s, 16, %s' % (v(vt0), v(Cb + h)))
                a('v_and_b32 %s, %s, %s' % (v(vt1), s(s_t0), v(Cb + h)))
                a('v_lshlrev_b32 %s, 16, %s' % (v(vt2), v(Rr + h)))
                a('v_and_b32 %s, %s, %s' % (v(vt3), s(s_t0), v(Rr + h)))
                a('v_add_f32 %s, %s, %s' % (v(vt0), v(vt0), v(vt2)))
                a('v_add_f32 %s, %s, %s' % (v(vt1), v(vt1), v(vt3)))
                a('v_cvt_pk_bf16_f32 %s, %s, %s' % (v(Cb + h), v(vt0), v(vt1)))
            a('buffer_store_dwordx4 %s, %s, %s, 0 offen%s' % (v(Cb, 4), v(vOut[j]), s(sO, 4), stf if c['o'][0] == 'ws' else ''))
    stamp_flush(a, ST, c.get('kidx', 0), 3, s_wave, L('sdone'))
    a('s_endpgm')
    vmax = 254 if ST else R.hi

    a.label(L('loader'))
    R = Regs(1, 256, 'v')
    vt0, vt1, vt2, vt3, vl3, vl7 = [R.alloc() for _ in range(6)]
    s_lw = s_wave
    a('s_sub_u32 %s, %s, 4' % (s(s_lw), s(s_wave)))
    a('v_lshrrev_b32 %s, 3, v0' % v(vl3))
    a('v_and_b32 %s, 7, v0' % v(vl7))
    vX = [R.alloc() for _ in range(nX)]
    vXj = [R.alloc() for _ in range(nX)]
    vXo = [R.alloc() for _ in range(nX)]
    vW = [R.alloc() for _ in range(nW)]
    a('s_mul_i32 %s, %s, %d' % (s(s_t0), s(s_lw), BM // 4))
    for j in range(nX):
        a('s_add_u32 %s, %s, %d' % (s(s_t1), s(s_t0), 8 * j))
        a('v_add_u32 %s, %s, %s' % (v(vt0), s(s_t1), v(vl3)))
        a('v_bfe_u32 %s, %s, 1, 3' % (v(vt1), v(vt0)))
        a('v_xor_b32 %s, %s, %s' % (v(vt1), v(vt1), v(vl7)))
        a('v_add_u32 %s, %s, %s' % (v(vt0), s(s_tok0), v(vt0)))
        if pairX:
            a('v_mul_u32_u24 %s, 80, %s' % (v(vX[j]), v(vt0)))
            a('v_mov_b32 %s, %s' % (v(vXj[j]), v(vt1)))
        else:
            a('v_mul_u32_u24 %s, %d, %s' % (v(vt0), strideX, v(vt0)))
            a('v_lshl_add_u32 %s, %s, 4, %s' % (v(vX[j]), v(vt1), v(vt0)))
    lg = G.bit_length() - 1
    a('s_lshl_b32 %s, %s, 4' % (s(s_t0), s(s_lw)))
    a('s_lshl_b32 %s, %s, 1' % (s(s_t1), s(s_col0)))
    for j in range(nW):
        a('v_add_u32 %s, %d, v0' % (v(vt0), 64 * j))
        a('v_lshrrev_b32 %s, %d, %s' % (v(vt1), lg, v(vt0)))
        a('v_and_b32 %s, %d, %s' % (v(vt0), G - 1, v(vt0)))
        if rowW == 256:
            a('v_and_b32 %s, 7, %s' % (v(vt2), v(vt1)))
            a('v_lshlrev_b32 %s, 1, %s' % (v(vt2), v(vt2)))
        else:
            a('v_and_b32 %s, 6, %s' % (v(vt2), v(vt1)))
        a('v_xor_b32 %s, %s, %s' % (v(vt0), v(vt0), v(vt2)))
        a('v_and_b32 %s, 3, %s' % (v(vt2), v(vt1)))
        a('v_bfe_u32 %s, %s, 3, 1' % (v(vt3), v(vt1)))
        a('v_lshl_add_u32 %s, %s, 2, %s' % (v(vt2), v(vt3), v(vt2)))
        a('v_bfe_u32 %s, %s, 2, 1' % (v(vt3), v(vt1)))
        a('v_lshl_add_u32 %s, %s, 3, %s' % (v(vt2), v(vt3), v(vt2)))
        a('v_add_u32 %s, %s, %s' % (v(vt2), s(s_t0), v(vt2)))
        a('v_mul_u32_u24 %s, %d, %s' % (v(vt2), strideW, v(vt2)))
        a('v_lshl_add_u32 %s, %s, 4, %s' % (v(vt2), v(vt0), v(vt2)))
        a('v_add_u32 %s, %s, %s' % (v(vW[j]), s(s_t1), v(vt2)))
    a('s_mul_i32 %s, %s, %d' % (s(s_ldsX), s(s_lw), (BM // 4) * 128))
    a('s_mul_i32 %s, %s, %d' % (s(s_ldsW), s(s_lw), 16 * rowW))
    ra, rc = c['rot']
    a('s_mul_i32 %s, %s, %d' % (s(s_t2), s(s_t2), ra))
    a('s_mul_i32 %s, %s, %d' % (s(s_t3), s(s_t3), rc))
    a('s_add_u32 %s, %s, %s' % (s(s_st), s(s_t2), s(s_t3)))
    for _ in range(rot_max // S):
        a('s_cmp_ge_u32 %s, %d' % (s(s_st), S))
        a('s_cselect_b32 %s, %d, 0' % (s(s_t1), S))
        a('s_sub_u32 %s, %s, %s' % (s(s_st), s(s_st), s(s_t1)))
    a('s_lshl_b32 %s, %s, 7' % (s(s_kx), s(s_st)))
    a('s_mul_i32 %s, %s, %d' % (s(s_kw), s(s_st), 64 * strideW))
    a('s_waitcnt lgkmcnt(0)')
    build_srd(a, sX, pX, c['x'][1], c.get('xbytes', 2048 * strideX))
    build_srd(a, sW, pW, 0, K * strideW)

    def issue(st):
        base = (st % D) * SLOT
        for j in range(nW):
            a('s_add_u32 m0, %s, 0x%x' % (s(s_ldsW), base + XB + j * 1024))
            a('buffer_load_dwordx4 %s, %s, %s offen lds' % (v(vW[j]), s(sW, 4), s(s_kw)))
        for j in range(nX):
            if pairX:
                a('s_lshr_b32 %s, %s, 4' % (s(s_t0), s(s_kx)))
                a('v_add_u32 %s, %s, %s' % (v(vt0), s(s_t0), v(vXj[j])))
                a('v_mul_u32_u24 %s, 205, %s' % (v(vt1), v(vt0)))
                a('v_lshrrev_b32 %s, 10, %s' % (v(vt1), v(vt1)))
                a('v_mul_u32_u24 %s, 5, %s' % (v(vt2), v(vt1)))
                a('v_sub_u32 %s, %s, %s' % (v(vt0), v(vt0), v(vt2)))
                a('v_mul_u32_u24 %s, 163840, %s' % (v(vt1), v(vt1)))
                a('v_lshl_add_u32 %s, %s, 4, %s' % (v(vt1), v(vt0), v(vt1)))
                a('v_add_u32 %s, %s, %s' % (v(vXo[j]), v(vt1), v(vX[j])))
                a('s_add_u32 m0, %s, 0x%x' % (s(s_ldsX), base + j * 1024))
                a('buffer_load_dwordx4 %s, %s, 0 offen lds' % (v(vXo[j]), s(sX, 4)))
            else:
                a('s_add_u32 m0, %s, 0x%x' % (s(s_ldsX), base + j * 1024))
                a('buffer_load_dwordx4 %s, %s, %s offen lds' % (v(vX[j]), s(sX, 4), s(s_kx)))
        a('s_add_u32 %s, %s, 128' % (s(s_kx), s(s_kx)))
        a('s_add_u32 %s, %s, %d' % (s(s_kw), s(s_kw), 64 * strideW))
        a('s_cmp_eq_u32 %s, %d' % (s(s_kx), S * 128))
        a('s_cselect_b32 %s, 0, %s' % (s(s_kx), s(s_kx)))
        a('s_cselect_b32 %s, 0, %s' % (s(s_kw), s(s_kw)))

    issued = 0
    for _ in range(min(D - 1, S, c.get('pro', 3))):
        issue(issued)
        issued += 1
    for st in range(S):
        a('s_waitcnt vmcnt(%d)' % ((issued - 1 - st) * nDMA))
        a('s_barrier')
        n = 0
        while issued < S and issued < st + D and n < 2:
            issue(issued)
            issued += 1
            n += 1
    a.label(L('end'))
    a('s_endpgm')
    vmax = max(vmax, R.hi)
    return dict(name=name, vgpr=vmax, sgpr=90 if ST else 60, lds=lds_total, block=512, grid=256)


CFG_QKV = dict(name='qkv_kernel', kidx=0, BM=128, BN=128, K=640, N=1920, WM=4, WN=1, D=4, LN=True, epi='qkv',
               x=('x', 0), w='wqkv', o=('ws', WS_QKV), obytes=QKV_BYTES, NB=15, map='p2', rb_per_xcd=4, cb_stride=8, rot=(3, 1))
CFG_WO = dict(name='wo_kernel', kidx=2, BM=96, BN=64, K=640, N=640, WM=2, WN=2, D=7, epi='resid', pairX=True, xbytes=16 * 163840,
              x=('ws', WS_O), w='wo', o=('ws', WS_H), obytes=2048 * 1280, r=('x', 0), map='22x10', rot=(2, 2))
CFG_W1 = dict(name='w1_kernel', kidx=3, BM=128, BN=128, K=640, N=1728, WM=4, WN=1, D=4, LN=True, epi='relu',
              x=('ws', WS_H), w='w1', o=('ws', WS_H1), obytes=2048 * 3456, NB=14, map='p2', rb_per_xcd=4, cb_stride=7, rot=(3, 1))
CFG_W2 = dict(name='w2_kernel', kidx=4, BM=96, BN=64, K=1728, N=640, WM=2, WN=2, D=7, epi='resid',
              x=('ws', WS_H1), w='w2', o=('out', 0), obytes=2048 * 1280, r=('ws', WS_H), map='22x10', rot=(4, 5))
```

```python
import sys, os
sys.path.insert(0, os.path.dirname(os.path.abspath(__file__)))
from asmlib import Asm
import gemm, attn

HEADER = """; Kernarg layout for this problem (72 bytes, ptrs only, base s[0:1]):
"""

def build(path, opts=()):
    a = Asm()
    for cfg in (gemm.CFG_QKV, gemm.CFG_WO, gemm.CFG_W1, gemm.CFG_W2):
        for o in opts:
            cfg[o] = True
    infos = []
    infos.append(gemm.gen_gemm(a, gemm.CFG_QKV))
    infos.append(attn.gen_attn(a, 'stamps' in opts))
    infos.append(gemm.gen_gemm(a, gemm.CFG_WO))
    infos.append(gemm.gen_gemm(a, gemm.CFG_W1))
    infos.append(gemm.gen_gemm(a, gemm.CFG_W2))
    out = HEADER
    for i in infos:
        out += '; @launch kernel=%s grid=(%d,1,1) block=(%d,1,1) lds=%d\n' % (i['name'], i['grid'], i['block'], i['lds'])
    out += '.amdgcn_target "amdgcn-amd-amdhsa--gfx950"\n.text\n'
    out += a.text()
    out += '.section .rodata,"a"\n'
    for i in infos:
        nv = (i['vgpr'] + 7) // 8 * 8
        out += '.p2align 6\n.amdhsa_kernel %s\n' % i['name']
        out += '  .amdhsa_next_free_vgpr %d\n' % nv
        out += '  .amdhsa_next_free_sgpr %d\n' % i['sgpr']
        out += '  .amdhsa_accum_offset %d\n' % nv
        out += '  .amdhsa_group_segment_fixed_size 0\n  .amdhsa_kernarg_size 72\n  .amdhsa_user_sgpr_count 2\n'
        out += '  .amdhsa_user_sgpr_kernarg_segment_ptr 1\n  .amdhsa_system_sgpr_workgroup_id_x 1\n.end_amdhsa_kernel\n'
    open(path, 'w').write(out)
    for i in infos:
        print(i)
    print('nops inserted', a.nops_inserted, 'lines', len(a.lines))

if __name__ == '__main__':
    p = sys.argv[1] if len(sys.argv) > 1 else 'sequential_preLN__sliding_block__dense_activation_relu__prompt.s'
    build(p, sys.argv[2:])
```

```python
import math
import struct
from asmlib import Asm, Regs, v, s
from gemm import build_srd, KA, WS_QKV, WS_O, QKV_BYTES, stamp, stamp_flush, STFLAG, weight_prefetch


def f32bits(x):
    return struct.unpack('<I', struct.pack('<f', x))[0]


def gen_attn(a, ST=False):
    name = 'attn_kernel'
    L = lambda x: '%s_%s' % (name, x)
    HB = 43008
    KIMG, V0, V1 = 0, 24576, 36864
    STG = 2 * HB
    LDS = STG + 10240
    HS = 81920
    KBASE = 32 * HS
    VBASE = 64 * HS
    sQ, sO = 4, 8
    pWS = 12
    s_head, s_qb, s_wave, s_t0, s_t1, s_hk, s_c, s_nm = 14, 15, 16, 17, 18, 19, 20, 21
    sM = [22, 24, 26, 28]
    s_m3, s_m2 = 30, 32
    s_pair, s_wq, s_hh, s_lb = 34, 35, 36, 37

    a.raw('.p2align 8')
    a.raw('.globl %s' % name)
    a.raw('.type %s,@function' % name)
    a.label(name)
    stamp(a, ST, 0)
    a('s_load_dwordx2 %s, s[0:1], %d' % (s(pWS, 2), KA['ws']))
    a('s_load_dwordx2 s[44:45], s[0:1], %d' % KA['w1'])
    a('s_cmp_ge_u32 s2, 256')
    a('s_cbranch_scc1 %s' % L('end'))
    a('s_and_b32 %s, s2, 7' % s(s_t0))
    a('s_lshr_b32 %s, s2, 3' % s(s_t1))
    a('s_lshl_b32 %s, %s, 1' % (s(s_pair), s(s_t0)))
    a('s_and_b32 %s, %s, 1' % (s(s_t0), s(s_t1)))
    a('s_add_u32 %s, %s, %s' % (s(s_pair), s(s_pair), s(s_t0)))
    a('s_lshr_b32 %s, %s, 1' % (s(s_qb), s(s_t1)))
    a('v_lshrrev_b32 v1, 6, v0')
    a('v_and_b32 v0, 63, v0')
    a('v_readfirstlane_b32 %s, v1' % s(s_wave))
    R = Regs(1, 256, 'v')
    vg, vi, vt0, vt1, vt2, vt3, vg2 = [R.alloc() for _ in range(7)]
    a('v_lshrrev_b32 %s, 4, v0' % v(vg))
    a('v_and_b32 %s, 15, v0' % v(vi))
    a('v_min_u32 %s, 2, %s' % (v(vg2), v(vg)))
    a('s_and_b32 %s, %s, 3' % (s(s_wq), s(s_wave)))
    a('s_mov_b32 s38, -1')
    a('s_mov_b32 s39, 0')
    a('s_lshr_b32 %s, %s, 2' % (s(s_hh), s(s_wave)))
    a('s_lshl_b32 %s, %s, 1' % (s(s_head), s(s_pair)))
    a('s_add_u32 %s, %s, %s' % (s(s_head), s(s_head), s(s_hh)))
    a('s_mul_i32 %s, %s, %d' % (s(s_lb), s(s_hh), HB))
    a('s_mul_i32 %s, %s, %d' % (s(s_hk), s(s_head), HS))
    a('s_mul_i32 %s, %s, %d' % (s(s_t0), s(s_qb), 128 * 40))
    a('s_add_u32 %s, %s, %s' % (s(s_hk), s(s_hk), s(s_t0)))
    a('s_sub_u32 %s, %s, %d' % (s(s_hk), s(s_hk), 256 * 40))
    a('v_mul_u32_u24 %s, 40, %s' % (v(vt0), v(vi)))
    a('v_lshl_add_u32 %s, %s, 4, %s' % (v(vt0), v(vg2), v(vt0)))
    a('v_lshrrev_b32 %s, 1, v0' % v(vt1))
    a('v_mul_u32_u24 %s, 40, %s' % (v(vt1), v(vt1)))
    a('v_and_b32 %s, 1, v0' % v(vt2))
    a('v_lshl_add_u32 %s, %s, 4, %s' % (v(vt1), v(vt2), v(vt1)))
    a('v_mul_u32_u24 %s, 40, v0' % v(vt2))
    a('s_mul_i32 %s, %s, %d' % (s(s_t0), s(s_wq), 96 * 40))
    a('s_add_u32 %s, %s, %s' % (s(s_nm), s(s_t0), s(s_hk)))
    a('s_add_u32 %s, %s, %d' % (s(s_t0), s(s_nm), KBASE))
    a('s_mul_i32 %s, %s, %d' % (s(s_t1), s(s_wq), 6 * 1024))
    a('s_add_u32 %s, %s, %s' % (s(s_t1), s(s_t1), s(s_lb)))
    a('s_waitcnt lgkmcnt(0)')
    build_srd(a, sQ, pWS, WS_QKV, QKV_BYTES + 64)
    for j in range(6):
        a('s_add_u32 m0, %s, %d' % (s(s_t1), KIMG + j * 1024))
        a('buffer_load_dwordx4 %s, %s, %s offen lds' % (v(vt0), s(sQ, 4), s(s_t0)))
        if j < 5:
            a('s_add_u32 %s, %s, 640' % (s(s_t0), s(s_t0)))
    fQ = [R.alloc(4, 4) for _ in range(2)]
    a('s_mul_i32 %s, %s, %d' % (s(s_t0), s(s_wq), 32 * 40))
    a('s_add_u32 %s, %s, %s' % (s(s_t0), s(s_t0), s(s_hk)))
    a('s_add_u32 %s, %s, %d' % (s(s_t0), s(s_t0), 256 * 40))
    for aa in range(2):
        a('buffer_load_dwordx4 %s, %s, %s, %s offen offset:%d' % (v(fQ[aa], 4), v(vt0), s(sQ, 4), s(s_t0), aa * 640))
    a('s_add_u32 %s, %s, %d' % (s(s_t0), s(s_nm), VBASE))
    a('s_mul_i32 %s, %s, %d' % (s(s_t1), s(s_wq), 3 * 1024))
    a('s_add_u32 %s, %s, %s' % (s(s_t1), s(s_t1), s(s_lb)))
    for j in range(3):
        a('s_add_u32 m0, %s, %d' % (s(s_t1), V0 + j * 1024))
        a('buffer_load_dwordx4 %s, %s, %s offen lds' % (v(vt1), s(sQ, 4), s(s_t0)))
        a('s_add_u32 %s, %s, %d' % (s(s_t0), s(s_t0), 32 * 40))
    a('s_add_u32 %s, %s, %d' % (s(s_t0), s(s_nm), VBASE + 32))
    a('s_mul_i32 %s, %s, %d' % (s(s_t1), s(s_wq), 96 * 16))
    a('s_add_u32 %s, %s, %s' % (s(s_t1), s(s_t1), s(s_lb)))
    a('s_add_u32 m0, %s, %d' % (s(s_t1), V1))
    a('buffer_load_dwordx4 %s, %s, %s offen lds' % (v(vt2), s(sQ, 4), s(s_t0)))
    a('s_add_u32 %s, %s, %d' % (s(s_t0), s(s_t0), 64 * 40))
    a('s_add_u32 m0, %s, %d' % (s(s_t1), V1 + 1024))
    a('s_mov_b64 exec, s[38:39]')
    a('buffer_load_dwordx4 %s, %s, %s offen lds' % (v(vt2), s(sQ, 4), s(s_t0)))
    a('s_mov_b64 exec, -1')
    build_srd(a, sO, pWS, WS_O, 16 * 163840)
    for r in range(4):
        a('v_lshl_add_u32 %s, %s, 2, %d' % (v(vt3), v(vg), r))
        a('v_cmp_le_u32 %s, %s, %s' % (s(sM[r], 2), v(vt3), v(vi)))
    a('v_cmp_eq_u32 %s, 3, %s' % (s(s_m3, 2), v(vg)))
    a('v_cmp_le_u32 %s, 2, %s' % (s(s_m2, 2), v(vg)))
    vML = [R.alloc() for _ in range(2)]
    vMH = [R.alloc() for _ in range(2)]
    vz = R.alloc()
    a('v_mov_b32 %s, 0' % v(vz))
    a('v_mov_b32 %s, 0xffff' % v(vt3))
    vhi16 = R.alloc()
    a('v_mov_b32 %s, 0xffff0000' % v(vhi16))
    for h in range(2):
        a('v_cndmask_b32 %s, %s, %s, %s' % (v(vML[h]), v(vz), v(vt3), s(sM[2 * h], 2)))
        a('v_cndmask_b32 %s, %s, %s, %s' % (v(vMH[h]), v(vz), v(vhi16), s(sM[2 * h + 1], 2)))
        a('v_or_b32 %s, %s, %s' % (v(vML[h]), v(vML[h]), v(vMH[h])))
        a('v_not_b32 %s, %s' % (v(vMH[h]), v(vML[h])))
    a('s_mov_b32 %s, 0x%x' % (s(s_c), f32bits(20 ** -0.5 * math.log2(math.e))))
    vKa, vV0a, vV1a, vP = R.alloc(), R.alloc(), R.alloc(), R.alloc()
    a('s_lshl_b32 %s, %s, 11' % (s(s_t0), s(s_wq)))
    a('s_add_u32 %s, %s, %s' % (s(s_t0), s(s_t0), s(s_lb)))
    a('v_lshlrev_b32 %s, 4, v0' % v(vKa))
    a('v_add_u32 %s, %s, %s' % (v(vKa), s(s_t0), v(vKa)))
    a('s_lshl_b32 %s, %s, 10' % (s(s_t0), s(s_wq)))
    a('s_add_u32 %s, %s, %d' % (s(s_t0), s(s_t0), V0))
    a('s_add_u32 %s, %s, %s' % (s(s_t0), s(s_t0), s(s_lb)))
    a('v_lshlrev_b32 %s, 3, v0' % v(vV0a))
    a('v_add_u32 %s, %s, %s' % (v(vV0a), s(s_t0), v(vV0a)))
    a('s_lshl_b32 %s, %s, 9' % (s(s_t0), s(s_wq)))
    a('s_add_u32 %s, %s, %d' % (s(s_t0), s(s_t0), V1))
    a('s_add_u32 %s, %s, %s' % (s(s_t0), s(s_t0), s(s_lb)))
    a('v_lshrrev_b32 %s, 2, v0' % v(vV1a))
    a('v_lshlrev_b32 %s, 4, %s' % (v(vV1a), v(vV1a)))
    a('v_and_b32 %s, 1, v0' % v(vt3))
    a('v_lshl_add_u32 %s, %s, 3, %s' % (v(vV1a), v(vt3), v(vV1a)))
    a('v_add_u32 %s, %s, %s' % (v(vV1a), s(s_t0), v(vV1a)))
    a('s_add_u32 %s, %s, %d' % (s(s_t0), s(s_t1), V1 + 8))
    a('v_lshlrev_b32 %s, 4, v0' % v(vP))
    a('v_add_u32 %s, %s, %s' % (v(vP), s(s_t0), v(vP)))
    vone = R.alloc(2)
    a('v_mov_b32 %s, 0x3f80' % v(vone))
    a('v_mov_b32 %s, 0' % v(vone + 1))
    a('s_waitcnt vmcnt(0)')
    a('ds_write_b64 %s, %s' % (v(vP), v(vone, 2)))
    a('s_mov_b64 exec, s[38:39]')
    a('ds_write_b64 %s, %s offset:1024' % (v(vP), v(vone, 2)))
    a('s_mov_b64 exec, -1')
    for aa in range(2):
        for r in range(2):
            a('v_cndmask_b32 %s, %s, %s, %s' % (v(fQ[aa] + r), v(fQ[aa] + r), v(vz), s(s_m3, 2)))
        for r in range(2, 4):
            a('v_cndmask_b32 %s, %s, %s, %s' % (v(fQ[aa] + r), v(fQ[aa] + r), v(vz), s(s_m2, 2)))
    a('s_waitcnt lgkmcnt(0)')
    a('s_barrier')
    stamp(a, ST, 1)

    Sreg = [[R.alloc(4, 4) for t in range(17)] for aa in range(2)]
    NKB = 6
    fK = [R.alloc(4, 4) for _ in range(NKB)]
    for t in range(min(NKB, 18)):
        a('ds_read_b128 %s, %s offset:%d' % (v(fK[t % NKB], 4), v(vKa), t * 1024))
    for t in range(18):
        outstanding_after = min(17, t + NKB - 1) - t
        a('s_waitcnt lgkmcnt(%d)' % outstanding_after)
        if t <= 16:
            a('v_mfma_f32_16x16x32_bf16 %s, %s, %s, 0' % (v(Sreg[0][t], 4), v(fK[t % NKB], 4), v(fQ[0], 4)))
        if t >= 1:
            a('v_mfma_f32_16x16x32_bf16 %s, %s, %s, 0' % (v(Sreg[1][t - 1], 4), v(fK[t % NKB], 4), v(fQ[1], 4)))
        if t + NKB < 18:
            a('ds_read_b128 %s, %s offset:%d' % (v(fK[t % NKB], 4), v(vKa), (t + NKB) * 1024))
    a('s_nop 7')
    a('s_cmp_ge_u32 %s, 2' % s(s_qb))
    a('s_cbranch_scc1 %s' % L('nomask'))
    for aa in range(2):
        a('s_lshl_b32 %s, %s, 1' % (s(s_nm), s(s_wq)))
        a('s_lshl_b32 %s, %s, 3' % (s(s_t0), s(s_qb)))
        a('s_add_u32 %s, %s, %s' % (s(s_nm), s(s_nm), s(s_t0)))
        a('s_sub_u32 %s, %d, %s' % (s(s_nm), 16 - aa, s(s_nm)))
        for t in range(16):
            a('s_cmp_gt_u32 %s, %d' % (s(s_nm), t))
            a('s_cbranch_scc0 %s' % L('mdone%d' % aa))
            for r in range(4):
                a('v_mov_b32 %s, 0xf149f2ca' % v(Sreg[aa][t] + r))
        a.label(L('mdone%d' % aa))
    a.label(L('nomask'))

    vmx, vmx2 = R.alloc(), R.alloc()
    Oacc = [[R.alloc(4, 4) for dt in range(2)] for aa in range(2)]

    def softmax(aa):
        Sg = Sreg[aa]
        for r in range(4):
            a('v_cndmask_b32 %s, %s, %s, %s' % (v(Sg[16] + r), v(Sg[0] + r), v(Sg[16] + r), s(sM[r], 2)))
        vals = [Sg[t] + r for t in range(1, 17) for r in range(4)]
        a('v_max3_f32 %s, %s, %s, %s' % (v(vmx), v(vals[0]), v(vals[1]), v(vals[2])))
        a('v_max3_f32 %s, %s, %s, %s' % (v(vmx2), v(vals[3]), v(vals[4]), v(vals[5])))
        k = 6
        tog = 0
        while k + 1 < len(vals):
            d = vmx if tog == 0 else vmx2
            a('v_max3_f32 %s, %s, %s, %s' % (v(d), v(d), v(vals[k]), v(vals[k + 1])))
            k += 2
            tog ^= 1
        assert k == len(vals)
        a('v_max_f32 %s, %s, %s' % (v(vmx), v(vmx), v(vmx2)))
        a('v_mov_b32 %s, %s' % (v(vmx2), v(vmx)))
        a('v_permlane32_swap_b32 %s, %s' % (v(vmx), v(vmx2)))
        a('v_max_f32 %s, %s, %s' % (v(vmx), v(vmx), v(vmx2)))
        a('v_mov_b32 %s, %s' % (v(vmx2), v(vmx)))
        a('v_permlane16_swap_b32 %s, %s' % (v(vmx), v(vmx2)))
        a('v_max_f32 %s, %s, %s' % (v(vmx), v(vmx), v(vmx2)))
        a('v_mul_f32 %s, %s, %s' % (v(vmx), s(s_c), v(vmx)))
        if aa == 0:
            dst = {t: Sg[t & ~1] + 2 * (t & 1) for t in range(2, 16)}
            dst[1] = Sg[0] + 2
            dhi, dlo = Sg[0], Sg[16]
        else:
            dst = {t: Sg[t - ((t - 1) & 1)] + 2 * ((t - 1) & 1) for t in range(1, 15)}
            dst[15] = Sg[15]
            dhi, dlo = Sg[0], Sg[15] + 2
        order = list(range(1, 16)) + [16]
        for t in order:
            b = Sg[t]
            for r in range(4):
                a('v_fma_f32 %s, %s, %s, -%s' % (v(b + r), v(b + r), s(s_c), v(vmx)))
            for r in range(4):
                a('v_exp_f32 %s, %s' % (v(b + r), v(b + r)))
            if t < 16:
                a('v_cvt_pk_bf16_f32 %s, %s, %s' % (v(dst[t]), v(b), v(b + 1)))
                a('v_cvt_pk_bf16_f32 %s, %s, %s' % (v(dst[t] + 1), v(b + 2), v(b + 3)))
            else:
                a('v_cvt_pk_bf16_f32 %s, %s, %s' % (v(vt0), v(b), v(b + 1)))
                a('v_cvt_pk_bf16_f32 %s, %s, %s' % (v(vt1), v(b + 2), v(b + 3)))
                a('v_and_b32 %s, %s, %s' % (v(dlo), v(vt0), v(vML[0])))
                a('v_and_b32 %s, %s, %s' % (v(dlo + 1), v(vt1), v(vML[1])))
                a('v_and_b32 %s, %s, %s' % (v(dhi), v(vt0), v(vMH[0])))
                a('v_and_b32 %s, %s, %s' % (v(dhi + 1), v(vt1), v(vMH[1])))

    stamp(a, ST, 2)
    softmax(0)
    vtid = R.alloc()
    a('v_lshl_add_u32 %s, %s, 6, v0' % (v(vtid), s(s_wave)))
    weight_prefetch(a, 'w1', vtid, 512, [vt0, vt1, vt2], vt3, 40, 44, [s_t0, s_t1, s_nm], preloaded=True)
    softmax(1)
    stamp(a, ST, 3)

    Vb = [(fK[0], fK[1]), (fK[2], fK[3]), (fK[4], fK[5])]

    def vreads(slot, kta, ktb):
        for dt in range(2):
            base, stride = (vV0a, 512) if dt == 0 else (vV1a, 256)
            a('ds_read_b64_tr_b16 %s, %s offset:%d' % (v(Vb[slot][dt], 2), v(base), kta * stride))
            a('ds_read_b64_tr_b16 %s, %s offset:%d' % (v(Vb[slot][dt] + 2, 2), v(base), ktb * stride))

    steps = [(0, 1)] + [(t, t + 1) for t in range(2, 16, 2)] + [(16, 17)]
    vreads(0, *steps[0])
    vreads(1, *steps[1])
    first = [[True, True], [True, True]]

    def pv(aa, dt, vreg, preg, wide):
        cc = '0' if first[aa][dt] else v(Oacc[aa][dt], 4)
        first[aa][dt] = False
        if wide:
            a('v_mfma_f32_16x16x32_bf16 %s, %s, %s, %s' % (v(Oacc[aa][dt], 4), v(vreg, 4), v(preg, 4), cc))
        else:
            a('v_mfma_f32_16x16x16_bf16 %s, %s, %s, %s' % (v(Oacc[aa][dt], 4), v(vreg, 2), v(preg, 2), cc))

    for si, (ta, tb) in enumerate(steps):
        if si + 2 < len(steps):
            vreads((si + 2) % 3, *steps[si + 2])
        nafter = min(len(steps) - 1, si + 2) - si
        a('s_waitcnt lgkmcnt(%d)' % (4 * nafter))
        sl = Vb[si % 3]
        for dt in range(2):
            if si == 0:
                pv(0, dt, sl[dt], Sreg[0][0], True)
                pv(1, dt, sl[dt] + 2, Sreg[1][0], False)
            elif si == len(steps) - 1:
                pv(0, dt, sl[dt], Sreg[0][16], False)
                pv(1, dt, sl[dt], Sreg[1][15], True)
            else:
                pv(0, dt, sl[dt], Sreg[0][ta], True)
                pv(1, dt, sl[dt], Sreg[1][ta - 1], True)

    stamp(a, ST, 4)
    vo = R.alloc()
    a('s_mul_i32 %s, %s, %d' % (s(s_t0), s(s_wq), 32 * 80))
    a('s_mul_i32 %s, %s, 40' % (s(s_t1), s(s_hh)))
    a('s_add_u32 %s, %s, %s' % (s(s_t0), s(s_t0), s(s_t1)))
    a('s_add_u32 %s, %s, %d' % (s(s_t0), s(s_t0), STG))
    a('v_mul_u32_u24 %s, 80, %s' % (v(vo), v(vi)))
    a('v_lshl_add_u32 %s, %s, 3, %s' % (v(vo), v(vg), v(vo)))
    a('v_add_u32 %s, %s, %s' % (v(vo), s(s_t0), v(vo)))
    for aa in range(2):
        O0, O1 = Oacc[aa]
        a('v_mov_b32 %s, %s' % (v(vt0), v(O1)))
        a('v_mov_b32 %s, %s' % (v(vt1), v(O1)))
        a('v_permlane16_swap_b32 %s, %s' % (v(vt0), v(vt1)))
        a('v_mov_b32 %s, %s' % (v(vt0), v(vt1)))
        a('v_permlane32_swap_b32 %s, %s' % (v(vt0), v(vt1)))
        a('v_rcp_f32 %s, %s' % (v(vt0), v(vt0)))
        for r in range(4):
            a('v_mul_f32 %s, %s, %s' % (v(O0 + r), v(vt0), v(O0 + r)))
            a('v_mul_f32 %s, %s, %s' % (v(O1 + r), v(vt0), v(O1 + r)))
        a('v_cvt_pk_bf16_f32 %s, %s, %s' % (v(O0), v(O0), v(O0 + 1)))
        a('v_cvt_pk_bf16_f32 %s, %s, %s' % (v(O0 + 1), v(O0 + 2), v(O0 + 3)))
        a('v_cvt_pk_bf16_f32 %s, %s, %s' % (v(O1), v(O1), v(O1 + 1)))
        a('v_cvt_pk_bf16_f32 %s, %s, %s' % (v(O1 + 1), v(O1 + 2), v(O1 + 3)))
        a('ds_write_b64 %s, %s offset:%d' % (v(vo), v(O0, 2), aa * 16 * 80))
        a('s_mov_b64 exec, 0xffff')
        a('ds_write_b64 %s, %s offset:%d' % (v(vo), v(O1, 2), aa * 16 * 80 + 32))
        a('s_mov_b64 exec, -1')
    a('s_mul_i32 %s, %s, 1280' % (s(s_t0), s(s_wave)))
    a('v_lshl_add_u32 %s, v0, 4, %s' % (v(vt0), s(s_t0)))
    a('v_add_u32 %s, %d, %s' % (v(vt1), STG, v(vt0)))
    a('s_mul_i32 %s, %s, 163840' % (s(s_t0), s(s_pair)))
    a('s_mul_i32 %s, %s, 10240' % (s(s_t1), s(s_qb)))
    a('s_add_u32 %s, %s, %s' % (s(s_t0), s(s_t0), s(s_t1)))
    a('s_waitcnt lgkmcnt(0)')
    a('s_barrier')
    a('ds_read_b128 %s, %s' % (v(fK[0], 4), v(vt1)))
    a('ds_read_b128 %s, %s offset:1024' % (v(fK[1], 4), v(vt1)))
    a('s_waitcnt lgkmcnt(1)')
    a('buffer_store_dwordx4 %s, %s, %s, %s offen%s' % (v(fK[0], 4), v(vt0), s(sO, 4), s(s_t0), STFLAG))
    a('s_waitcnt lgkmcnt(0)')
    a('s_mov_b64 exec, 0xffff')
    a('buffer_store_dwordx4 %s, %s, %s, %s offen offset:1024%s' % (v(fK[1], 4), v(vt0), s(sO, 4), s(s_t0), STFLAG))
    a('s_mov_b64 exec, -1')
    stamp_flush(a, ST, 1, 5, s_wave, L('sdone'))
    a.label(L('end'))
    a('s_endpgm')
    return dict(name=name, vgpr=254 if ST else R.hi, sgpr=90 if ST else 48, lds=LDS, block=512, grid=256)
```

```python
from asmlib import Asm, Regs, v, s

WS_QKV = 0
WS_O = 0x800000
WS_H = 0xB00000
WS_H1 = 0x1000000
QKV_BYTES = 96 * 81920
WS_STAMP = 0x3000000
STAMP_S = 60

KA = dict(x=0, wqkv=8, wo=16, bx=24, w1=32, w2=40, out=48, dbg=56, ws=64)
STFLAG = ''


def build_srd(a, sr, sptr, off, nbytes):
    if off:
        a('s_add_u32 %s, %s, 0x%x' % (s(sr), s(sptr), off))
        a('s_addc_u32 %s, %s, 0' % (s(sr + 1), s(sptr + 1)))
        a('s_and_b32 %s, %s, 0xffff' % (s(sr + 1), s(sr + 1)))
    else:
        a('s_mov_b32 %s, %s' % (s(sr), s(sptr)))
        a('s_and_b32 %s, %s, 0xffff' % (s(sr + 1), s(sptr + 1)))
    a('s_mov_b32 %s, 0x%x' % (s(sr + 2), nbytes))
    a('s_mov_b32 %s, 0x20000' % s(sr + 3))


def stamp(a, on, i):
    if on:
        a('s_memrealtime %s' % s(STAMP_S + 2 * i, 2))


def stamp_flush(a, on, kidx, n, s_wave, lbl):
    if not on:
        return
    a('s_waitcnt vmcnt(0)')
    stamp(a, on, n)
    a('s_load_dwordx2 s[80:81], s[0:1], %d' % KA['ws'])
    a('s_waitcnt lgkmcnt(0)')
    a('s_cmp_lg_u32 %s, 0' % s(s_wave))
    a('s_cbranch_scc1 %s' % lbl)
    build_srd(a, 76, 80, WS_STAMP + kidx * 16384, 16384)
    a('s_lshl_b32 s82, s2, 6')
    a('v_mov_b32 v250, s82')
    a('s_mov_b64 exec, 1')
    for i in range(6):
        a('v_mov_b32 v252, %s' % s(STAMP_S + 2 * i))
        a('v_mov_b32 v253, %s' % s(STAMP_S + 2 * i + 1))
        a('buffer_store_dwordx2 v[252:253], v250, s[76:79], 0 offen offset:%d' % (8 * i))
        a('s_nop 1')
    a('s_mov_b64 exec, -1')
    a.label(lbl)


PF = dict(wo=(640, 1280, 5, 640), w1=(640, 3456, 14, 1792), w2=(1728, 1280, 5, 640))


def weight_prefetch(a, wname, vtid, nthreads, vt, vdst, sr, sp, st, preloaded=False):
    nrows, stride, lpr, half = PF[wname]
    total = nrows * lpr
    per = (total + 31) // 32
    if not preloaded:
        a('s_load_dwordx2 %s, s[0:1], %d' % (s(sp, 2), KA[wname]))
    a('s_lshr_b32 %s, s2, 3' % s(st[0]))
    a('s_mul_i32 %s, %s, %d' % (s(st[0]), s(st[0]), per))
    a('s_add_u32 %s, %s, %d' % (s(st[1]), s(st[0]), per))
    a('s_min_u32 %s, %s, %d' % (s(st[1]), s(st[1]), total))
    a('s_and_b32 %s, s2, 1' % s(st[2]))
    a('s_mul_i32 %s, %s, %d' % (s(st[2]), s(st[2]), half))
    sh = 16
    while True:
        magic = ((1 << sh) + lpr - 1) // lpr
        if all((f * magic) >> sh == f // lpr for f in range(0, total + 2048)) and (total + 2048) * magic < (1 << 32):
            break
        sh += 1
    if not preloaded:
        a('s_waitcnt lgkmcnt(0)')
    build_srd(a, sr, sp, 0, nrows * stride)
    for it in range((per + nthreads - 1) // nthreads):
        a('v_add_u32 %s, %s, %s' % (v(vt[0]), s(st[0]), v(vtid)))
        if it:
            a('v_add_u32 %s, %d, %s' % (v(vt[0]), it * nthreads, v(vt[0])))
        a('v_mul_u32_u24 %s, %d, %s' % (v(vt[1]), magic, v(vt[0])))
        a('v_lshrrev_b32 %s, %d, %s' % (v(vt[1]), sh, v(vt[1])))
        a('v_mul_u32_u24 %s, %d, %s' % (v(vt[2]), lpr, v(vt[1])))
        a('v_sub_u32 %s, %s, %s' % (v(vt[2]), v(vt[0]), v(vt[2])))
        a('v_mul_u32_u24 %s, %d, %s' % (v(vt[1]), stride, v(vt[1])))
        a('v_lshl_add_u32 %s, %s, 7, %s' % (v(vt[1]), v(vt[2]), v(vt[1])))
        a('v_cmp_gt_u32 vcc, %s, %s' % (s(st[1]), v(vt[0])))
        a('v_mov_b32 %s, -1' % v(vt[2]))
        a('v_cndmask_b32 %s, %s, %s, vcc' % (v(vt[1]), v(vt[2]), v(vt[1])))
        a('buffer_load_dword %s, %s, %s, %s offen' % (v(vdst), v(vt[1]), s(sr, 4), s(st[2])))


def bf16_round(a, dst, src):
    a('v_cvt_pk_bf16_f32 %s, %s, %s' % (v(dst), v(src), v(src)))
    a('v_lshlrev_b32 %s, 16, %s' % (v(dst), v(dst)))


def gen_gemm(a, c):
    name = c['name']
    BM, BN, K, N = c['BM'], c['BN'], c['K'], c['N']
    WM, WN = c['WM'], c['WN']
    D = c['D']
    LN = c.get('LN', False)
    epi = c['epi']
    ST = c.get('stamps', False)
    MT = BM // 16 // WM
    NT = BN // 16 // WN
    S = K // 64
    G = BN // 8
    rowW = BN * 2
    assert rowW in (128, 256)
    XB = BM * 128
    WB = 64 * rowW
    SLOT = XB + WB
    SCOL = D * SLOT
    SROW = SCOL + BN * 4
    lds_total = SROW + BM * 8 if LN else SCOL
    strideX = K * 2
    strideW = N * 2
    nX = BM // 32
    nW = 16 * G // 64
    nDMA = nX + nW
    pairX = c.get('pairX', False)
    GRP = c.get('GRP', 1)
    PD = c.get('PD', 1)
    assert D % GRP == 0
    DG = D // GRP
    NG = (S + GRP - 1) // GRP
    last_g = (NG - 1) % DG
    GS = GRP * SLOT
    STG = (last_g + 1) * GS if last_g + 1 < DG else 0
    STG_ROOM = (DG - last_g - 1) * GS if last_g + 1 < DG else last_g * GS
    stf = STFLAG if c.get('sc1', True) else ''
    L = lambda x: '%s_%s' % (name, x)

    sX, sW, sO, sR = 4, 8, 12, 16
    pX, pW, pO, pR = 20, 22, 24, 26
    s_rb, s_cb, s_wave, s_t0, s_t1, s_kx, s_kw, s_ldsX, s_ldsW, s_st = 28, 29, 30, 31, 32, 33, 34, 35, 36, 37
    s_wm, s_wn, s_tok0, s_col0 = 38, 39, 40, 41
    s_ex = 42
    s_slot = 46
    s_t2, s_t3, s_t4, s_t5 = 54, 55, 56, 57
    s_m4 = 58

    a.raw('.p2align 8')
    a.raw('.globl %s' % name)
    a.raw('.type %s,@function' % name)
    a.label(name)
    stamp(a, ST, 0)
    a('s_load_dwordx2 %s, s[0:1], %d' % (s(pX, 2), KA[c['x'][0]]))
    a('s_load_dwordx2 %s, s[0:1], %d' % (s(pW, 2), KA[c['w']]))
    a('s_load_dwordx2 %s, s[0:1], %d' % (s(pO, 2), KA[c['o'][0]]))
    if epi == 'resid':
        a('s_load_dwordx2 %s, s[0:1], %d' % (s(pR, 2), KA[c['r'][0]]))
    a('s_cmp_ge_u32 s2, 256')
    a('s_cbranch_scc1 %s' % L('end'))
    a('s_and_b32 %s, s2, 7' % s(s_t0))
    a('s_lshr_b32 %s, s2, 3' % s(s_t1))
    if c['map'] == 'p2':
        RBX = c['rb_per_xcd']
        a('s_and_b32 %s, %s, %d' % (s(s_t2), s(s_t1), RBX - 1))
        a('s_lshr_b32 %s, %s, %d' % (s(s_t3), s(s_t1), RBX.bit_length() - 1))
        a('s_lshr_b32 %s, %s, 1' % (s(s_rb), s(s_t0)))
        a('s_mul_i32 %s, %s, %d' % (s(s_rb), s(s_rb), RBX))
        a('s_add_u32 %s, %s, %s' % (s(s_rb), s(s_rb), s(s_t2)))
        a('s_and_b32 %s, %s, 1' % (s(s_cb), s(s_t0)))
        a('s_mul_i32 %s, %s, %d' % (s(s_cb), s(s_cb), c['cb_stride']))
        a('s_cmp_ge_u32 %s, %d' % (s(s_t3), c['cb_stride']))
        a('s_cbranch_scc1 %s' % L('end'))
        a('s_add_u32 %s, %s, %s' % (s(s_cb), s(s_cb), s(s_t3)))
        a('s_cmp_ge_u32 %s, %d' % (s(s_cb), c['NB']))
        a('s_cbranch_scc1 %s' % L('end'))
        rot_max = c['rot'][0] * (RBX - 1) + c['rot'][1] * (c['cb_stride'] - 1)
    else:
        a('s_mul_i32 %s, %s, 205' % (s(s_t2), s(s_t1)))
        a('s_lshr_b32 %s, %s, 10' % (s(s_t2), s(s_t2)))
        a('s_mul_i32 %s, %s, 5' % (s(s_t3), s(s_t2)))
        a('s_sub_u32 %s, %s, %s' % (s(s_t3), s(s_t1), s(s_t3)))
        a('s_lshr_b32 %s, %s, 1' % (s(s_t1), s(s_t0)))
        a('s_mul_i32 %s, %s, 11' % (s(s_rb), s(s_t1)))
        a('s_add_u32 %s, %s, 12' % (s(s_t4), s(s_rb)))
        a('s_lshr_b32 %s, %s, 1' % (s(s_t4), s(s_t4)))
        a('s_add_u32 %s, %s, 1' % (s(s_rb), s(s_rb)))
        a('s_lshr_b32 %s, %s, 1' % (s(s_rb), s(s_rb)))
        a('s_add_u32 %s, %s, %s' % (s(s_rb), s(s_rb), s(s_t2)))
        a('s_cmp_ge_u32 %s, %s' % (s(s_rb), s(s_t4)))
        a('s_cbranch_scc1 %s' % L('end'))
        a('s_and_b32 %s, %s, 1' % (s(s_cb), s(s_t0)))
        a('s_mul_i32 %s, %s, 5' % (s(s_cb), s(s_cb)))
        a('s_add_u32 %s, %s, %s' % (s(s_cb), s(s_cb), s(s_t3)))
        rot_max = c['rot'][0] * 5 + c['rot'][1] * 4
    a('v_lshrrev_b32 v1, 6, v0')
    a('v_and_b32 v0, 63, v0')
    a('v_readfirstlane_b32 %s, v1' % s(s_wave))
    a('s_mul_i32 %s, %s, %d' % (s(s_tok0), s(s_rb), BM))
    a('s_mul_i32 %s, %s, %d' % (s(s_col0), s(s_cb), BN))
    a('s_cmp_ge_u32 %s, 4' % s(s_wave))
    a('s_cbranch_scc1 %s' % L('loader'))

    R = Regs(1, 256, 'v')
    vg, vi, vt0, vt1, vt2, vt3 = [R.alloc() for _ in range(6)]
    a('v_lshrrev_b32 %s, 4, v0' % v(vg))
    a('v_and_b32 %s, 15, v0' % v(vi))
    if WN == 1:
        a('s_mov_b32 %s, %s' % (s(s_wm), s(s_wave)))
        a('s_mov_b32 %s, 0' % s(s_wn))
    else:
        assert WN == 2
        a('s_lshr_b32 %s, %s, 1' % (s(s_wm), s(s_wave)))
        a('s_and_b32 %s, %s, 1' % (s(s_wn), s(s_wave)))
    vXa = [R.alloc() for _ in range(2)]
    vXs = [R.alloc() for _ in range(2)]
    a('s_mul_i32 %s, %s, %d' % (s(s_t0), s(s_wm), MT * 16 * 128))
    a('v_lshrrev_b32 %s, 1, %s' % (v(vt0), v(vi)))
    a('v_lshlrev_b32 %s, 7, %s' % (v(vt1), v(vi)))
    a('v_add_u32 %s, %s, %s' % (v(vt1), s(s_t0), v(vt1)))
    for ks in range(2):
        a('v_add_u32 %s, %d, %s' % (v(vt2), 4 * ks, v(vg)))
        a('v_xor_b32 %s, %s, %s' % (v(vt2), v(vt2), v(vt0)))
        a('v_lshl_add_u32 %s, %s, 4, %s' % (v(vXa[ks]), v(vt2), v(vt1)))
    vWa = [R.alloc() for _ in range(NT)]
    vWs = [R.alloc() for _ in range(NT)]
    a('v_lshrrev_b32 %s, 2, %s' % (v(vt0), v(vi)))
    a('v_and_b32 %s, 1, %s' % (v(vt1), v(vg)))
    a('v_lshl_add_u32 %s, %s, 2, %s' % (v(vt0), v(vt1), v(vt0)))
    a('v_lshrrev_b32 %s, 1, %s' % (v(vt1), v(vg)))
    a('v_lshl_add_u32 %s, %s, 4, %s' % (v(vt1), v(vt1), v(vt0)))
    a('v_mul_u32_u24 %s, %d, %s' % (v(vt1), rowW, v(vt1)))
    a('v_and_b32 %s, 1, %s' % (v(vt2), v(vi)))
    a('v_lshl_add_u32 %s, %s, 3, %s' % (v(vt1), v(vt2), v(vt1)))
    a('v_bfe_u32 %s, %s, 1, 1' % (v(vt2), v(vi)))
    a('v_lshl_add_u32 %s, %s, 4, %s' % (v(vt1), v(vt2), v(vt1)))
    a('v_add_u32 %s, %d, %s' % (v(vt1), XB, v(vt1)))
    if rowW == 256:
        a('v_lshlrev_b32 %s, 1, %s' % (v(vt0), v(vt0)))
    else:
        a('v_and_b32 %s, 6, %s' % (v(vt0), v(vt0)))
    for nt in range(NT):
        if LN:
            a('s_lshl_b32 %s, %s, 1' % (s(s_t0), s(s_wave)))
            a('s_add_u32 %s, %s, %d' % (s(s_t0), s(s_t0), nt))
            a('s_and_b32 %s, %s, 7' % (s(s_slot + nt), s(s_t0)))
        else:
            a('s_mul_i32 %s, %s, %d' % (s(s_t0), s(s_wn), NT))
            a('s_add_u32 %s, %s, %d' % (s(s_slot + nt), s(s_t0), nt))
        a('s_lshl_b32 %s, %s, 1' % (s(s_t0), s(s_slot + nt)))
        a('v_xor_b32 %s, %s, %s' % (v(vt2), s(s_t0), v(vt0)))
        a('v_lshl_add_u32 %s, %s, 4, %s' % (v(vWa[nt]), v(vt2), v(vt1)))
    a('s_waitcnt lgkmcnt(0)')
    build_srd(a, sO, pO, c['o'][1], c['obytes'])

    if epi == 'resid':
        build_srd(a, sR, pR, c['r'][1], 2048 * 1280)
        NCH = BM * 8 // 64 // 4
        vOut = [R.alloc() for _ in range(NCH)]
        vRes = [R.alloc(4, 4) for _ in range(NCH)]
        a('s_mul_i32 %s, %s, %d' % (s(s_t0), s(s_wave), NCH * 8))
        a('s_add_u32 %s, %s, %s' % (s(s_t0), s(s_t0), s(s_tok0)))
        a('v_lshrrev_b32 %s, 3, v0' % v(vt0))
        a('v_add_u32 %s, %s, %s' % (v(vt0), s(s_t0), v(vt0)))
        a('v_mul_u32_u24 %s, 1280, %s' % (v(vt0), v(vt0)))
        a('v_and_b32 %s, 7, v0' % v(vt1))
        a('v_lshl_add_u32 %s, %s, 4, %s' % (v(vt0), v(vt1), v(vt0)))
        a('s_lshl_b32 %s, %s, 1' % (s(s_t0), s(s_col0)))
        a('v_add_u32 %s, %s, %s' % (v(vOut[0]), s(s_t0), v(vt0)))
        for j in range(1, NCH):
            a('v_add_u32 %s, %d, %s' % (v(vOut[j]), j * 8 * 1280, v(vOut[0])))
        for j in range(NCH):
            a('buffer_load_dwordx4 %s, %s, %s, 0 offen' % (v(vRes[j], 4), v(vOut[j]), s(sR, 4)))

    acc = [[R.alloc(4, 4) for nt in range(NT)] for mt in range(MT)]
    NS = PD + 1
    fX = [[R.alloc(4, 4) for mt in range(MT)] for _ in range(NS)]
    fW = [[R.alloc(4, 4) for nt in range(NT)] for _ in range(NS)]
    nreads = MT + 2 * NT

    def addr(u):
        base = (u % D) * SLOT
        out = []
        for ks in range(2):
            out.append('v_add_u32 %s, 0x%x, %s' % (v(vXs[ks]), base, v(vXa[ks])))
        for j in range(NT):
            out.append('v_add_u32 %s, 0x%x, %s' % (v(vWs[j]), base, v(vWa[j])))
        return out

    def reads(j):
        u, ks = j // 2, j % 2
        setn = j % NS
        out = addr(u) if ks == 0 else []
        if c.get('nocompute') or c.get('noreads'):
            return out
        for mt in range(MT):
            out.append('ds_read_b128 %s, %s offset:%d' % (v(fX[setn][mt], 4), v(vXs[ks]), mt * 2048))
        for nt in range(NT):
            for hf in range(2):
                off = (32 * ks + 8 * hf) * rowW
                out.append('ds_read_b64_tr_b16 %s, %s offset:%d' % (v(fW[setn][nt] + 2 * hf, 2), v(vWs[nt]), off))
        return out

    if LN:
        assert WN == 1 and NT == 8
        vones = R.alloc(4, 4)
        for r in range(4):
            a('v_mov_b32 %s, 0x3f803f80' % v(vones + r))
        accC = [R.alloc(4, 4) for _ in range(2)]
        accS = [R.alloc(4, 4) for _ in range(MT)]
        accG = [R.alloc(4, 4) for _ in range(MT)]

    def mfmas(j):
        setn = j % NS
        first = j == 0
        out = []
        if (c.get('nocompute') or c.get('nomfma')) and not first:
            return out
        M = 'v_mfma_f32_16x16x32_bf16 %s, %s, %s, %s'
        for nt in range(NT):
            for mt in range(MT):
                cc = '0' if first else v(acc[mt][nt], 4)
                out.append(M % (v(acc[mt][nt], 4), v(fW[setn][nt], 4), v(fX[setn][mt], 4), cc))
            if LN:
                if nt < 2:
                    cc = '0' if first else v(accC[nt], 4)
                    out.append(M % (v(accC[nt], 4), v(fW[setn][nt], 4), v(vones, 4), cc))
                elif nt < 2 + MT:
                    mt = nt - 2
                    cc = '0' if first else v(accS[mt], 4)
                    out.append(M % (v(accS[mt], 4), v(vones, 4), v(fX[setn][mt], 4), cc))
                elif nt < 2 + 2 * MT:
                    mt = nt - 2 - MT
                    cc = '0' if first else v(accG[mt], 4)
                    out.append(M % (v(accG[mt], 4), v(fX[setn][mt], 4), v(fX[setn][mt], 4), cc))
        return out

    J = 2 * S
    a('s_barrier')
    stamp(a, ST, 1)
    for j in range(min(PD, J)):
        assert j < 2 * GRP
        for x in reads(j):
            a(x)
    for j in range(J):
        younger = min(J - 1, j + PD - 1) - j
        a('s_waitcnt lgkmcnt(%d)' % min(15, younger * nreads))
        M = mfmas(j)
        jn = j + PD
        Rd = reads(jn) if jn < J else []
        need_bar = jn < J and jn % (2 * GRP) == 0
        k = 0
        if need_bar:
            pre = len(M) // 4
            for x in M[:pre]:
                a(x)
            k = pre
            a('s_waitcnt lgkmcnt(0)')
            a('s_barrier')
        rest = M[k:]
        span = max(1, (len(rest) * 3) // 4)
        ri = 0
        for i, x in enumerate(rest):
            a(x)
            want = (len(Rd) * (i + 1) + span - 1) // span if i < span else len(Rd)
            while ri < min(want, len(Rd)):
                a(Rd[ri])
                ri += 1
        while ri < len(Rd):
            a(Rd[ri])
            ri += 1

    stamp(a, ST, 2)
    if LN:
        vmean = [R.alloc(2) for _ in range(MT)]
        vrinv = [R.alloc(2) for _ in range(MT)]
        vcs = [R.alloc(4, 4) for _ in range(NT)]
        T0, T1 = fW[0][0], fW[0][1]
        for j in range(2):
            a('s_lshl_b32 %s, %s, 6' % (s(s_t0), s(s_slot + j)))
            a('v_lshl_add_u32 %s, %s, 4, %s' % (v(vt0), v(vg), s(s_t0)))
            a('v_add_u32 %s, 0x%x, %s' % (v(vt0), SCOL, v(vt0)))
            a('ds_write_b128 %s, %s' % (v(vt0), v(accC[j], 4)))
        a('v_and_b32 %s, 3, %s' % (v(vt0), v(vi)))
        a('v_lshrrev_b32 %s, 2, %s' % (v(vt1), v(vi)))
        a('v_cmp_eq_u32 %s, 1, %s' % (s(s_ex, 2), v(vt0)))
        a('v_cmp_eq_u32 %s, 2, %s' % (s(s_ex + 2, 2), v(vt0)))
        a('v_cmp_eq_u32 vcc, 3, %s' % v(vt0))
        a('v_cmp_eq_u32 %s, %s, %s' % (s(s_m4, 2), v(vt1), v(vg)))
        a('s_mov_b32 %s, 0x3acccccd' % s(s_t1))
        a('v_mov_b32 %s, 0' % v(vt2))
        a('s_waitcnt lgkmcnt(0)')
        a('s_barrier')
        for nt in range(NT):
            a('s_lshl_b32 %s, %s, 6' % (s(s_t0), s(s_slot + nt)))
            a('v_lshl_add_u32 %s, %s, 4, %s' % (v(vt0), v(vg), s(s_t0)))
            a('v_add_u32 %s, 0x%x, %s' % (v(vt0), SCOL, v(vt0)))
            a('ds_read_b128 %s, %s' % (v(vcs[nt], 4), v(vt0)))
        for mt in range(MT):
            Gm = accG[mt]
            a('v_cndmask_b32 %s, %s, %s, %s' % (v(T1), v(Gm), v(Gm + 1), s(s_ex, 2)))
            a('v_cndmask_b32 %s, %s, %s, %s' % (v(T1), v(T1), v(Gm + 2), s(s_ex + 2, 2)))
            a('v_cndmask_b32 %s, %s, %s, vcc' % (v(T1), v(T1), v(Gm + 3)))
            a('v_cndmask_b32 %s, %s, %s, %s' % (v(T1), v(vt2), v(T1), s(s_m4, 2)))
            a('v_mov_b32 %s, %s' % (v(T0), v(T1)))
            a('v_permlane32_swap_b32 %s, %s' % (v(T1), v(T0)))
            a('v_add_f32 %s, %s, %s' % (v(T1), v(T1), v(T0)))
            a('v_mov_b32 %s, %s' % (v(T0), v(T1)))
            a('v_permlane16_swap_b32 %s, %s' % (v(T1), v(T0)))
            a('v_add_f32 %s, %s, %s' % (v(T1), v(T1), v(T0)))
            a('v_mul_f32 %s, %s, %s' % (v(T0), s(s_t1), v(accS[mt])))
            a('v_mul_f32 %s, %s, %s' % (v(T1), s(s_t1), v(T1)))
            a('v_fma_f32 %s, -%s, %s, %s' % (v(T1), v(T0), v(T0), v(T1)))
            a('v_max_f32 %s, 0, %s' % (v(T1), v(T1)))
            bf16_round(a, vmean[mt], T0)
            a('v_xor_b32 %s, 0x80000000, %s' % (v(vmean[mt]), v(vmean[mt])))
            bf16_round(a, T1, T1)
            a('v_add_f32 %s, 0x3727c5ac, %s' % (v(T1), v(T1)))
            bf16_round(a, T1, T1)
            a('v_sqrt_f32 %s, %s' % (v(T1), v(T1)))
            bf16_round(a, T1, T1)
            a('v_rcp_f32 %s, %s' % (v(vrinv[mt]), v(T1)))
        a('s_waitcnt lgkmcnt(0)')
        stamp(a, ST, 4)

    def ln_apply(A, mt, nt, relu):
        for h in range(2):
            a('v_pk_fma_f32 %s, %s, %s, %s op_sel_hi:[1,0,1]' % (v(A + 2 * h, 2), v(vcs[nt] + 2 * h, 2), v(vmean[mt], 2), v(A + 2 * h, 2)))
        for h in range(2):
            a('v_pk_mul_f32 %s, %s, %s op_sel_hi:[1,0]' % (v(A + 2 * h, 2), v(A + 2 * h, 2), v(vrinv[mt], 2)))
        a('v_cvt_pk_bf16_f32 %s, %s, %s' % (v(A), v(A), v(A + 1)))
        a('v_cvt_pk_bf16_f32 %s, %s, %s' % (v(A + 1), v(A + 2), v(A + 3)))
        if relu:
            a('v_pk_max_i16 %s, %s, 0' % (v(A), v(A)))
            a('v_pk_max_i16 %s, %s, 0' % (v(A + 1), v(A + 1)))

    cbuf = [fX[0][0], fX[0][1], fX[1][0], fX[1][1]] + [fW[1][j] for j in range(NT)] + [fW[0][j] for j in range(NT)]

    if epi == 'qkv':
        assert 4 * 10240 <= STG_ROOM
        s_hd0, s_r0, s_hf0, s_hfe, s_rL, s_wb, s_tw = s_kx, s_kw, s_ldsX, s_ldsW, s_st, s_t4, s_t5
        a('s_lshl_b32 %s, %s, 5' % (s(s_t0), s(s_cb)))
        a('s_mul_i32 %s, %s, 205' % (s(s_hd0), s(s_t0)))
        a('s_lshr_b32 %s, %s, 10' % (s(s_hd0), s(s_hd0)))
        a('s_mul_i32 %s, %s, 5' % (s(s_t1), s(s_hd0)))
        a('s_sub_u32 %s, %s, %s' % (s(s_r0), s(s_t0), s(s_t1)))
        a('s_cmp_lg_u32 %s, 0' % s(s_r0))
        a('s_addc_u32 %s, %s, 0' % (s(s_hf0), s(s_hd0)))
        a('s_add_u32 %s, %s, 32' % (s(s_t0), s(s_t0)))
        a('s_mul_i32 %s, %s, 205' % (s(s_hfe), s(s_t0)))
        a('s_lshr_b32 %s, %s, 10' % (s(s_hfe), s(s_hfe)))
        a('s_mul_i32 %s, %s, 5' % (s(s_t1), s(s_hfe)))
        a('s_sub_u32 %s, %s, %s' % (s(s_rL), s(s_t0), s(s_t1)))
        a('s_mul_i32 %s, %s, 10240' % (s(s_wb), s(s_wave)))
        a('s_add_u32 %s, %s, 0x%x' % (s(s_wb), s(s_wb), STG))
        a('s_lshl_b32 %s, %s, 5' % (s(s_tw), s(s_wave)))
        a('s_add_u32 %s, %s, %s' % (s(s_tw), s(s_tw), s(s_tok0)))
        a('s_mul_i32 %s, %s, 40' % (s(s_tw), s(s_tw)))
        vtok = R.alloc()
        vo = vWa
        a('v_mul_u32_u24 %s, 40, %s' % (v(vtok), v(vi)))
        a('v_add_u32 %s, %s, %s' % (v(vtok), s(s_wb), v(vtok)))
        for nt in range(NT):
            a('s_lshl_b32 %s, %s, 2' % (s(s_t0), s(s_slot + nt)))
            a('s_lshl_b32 %s, %s, 5' % (s(s_t1), s(s_cb)))
            a('s_add_u32 %s, %s, %s' % (s(s_t0), s(s_t0), s(s_t1)))
            a('v_add_u32 %s, %s, %s' % (v(vt0), s(s_t0), v(vg)))
            a('v_mul_u32_u24 %s, 205, %s' % (v(vt1), v(vt0)))
            a('v_lshrrev_b32 %s, 10, %s' % (v(vt1), v(vt1)))
            a('v_mul_u32_u24 %s, 5, %s' % (v(vt2), v(vt1)))
            a('v_sub_u32 %s, %s, %s' % (v(vt2), v(vt0), v(vt2)))
            a('v_subrev_u32 %s, %s, %s' % (v(vt1), s(s_hd0), v(vt1)))
            a('v_mul_u32_u24 %s, 1280, %s' % (v(vt1), v(vt1)))
            a('v_lshl_add_u32 %s, %s, 3, %s' % (v(vt1), v(vt2), v(vt1)))
            a('v_add_u32 %s, %s, %s' % (v(vo[nt]), v(vt1), v(vtok)))
        for nt in range(NT):
            for mt in range(MT):
                A = acc[mt][nt]
                ln_apply(A, mt, nt, False)
                a('ds_write_b64 %s, %s offset:%d' % (v(vo[nt]), v(A, 2), mt * 640))
        for q in range(512):
            assert (q * 205) >> 14 == q // 80
        a('s_sub_u32 %s, %s, %s' % (s(s_t0), s(s_hfe), s(s_hf0)))
        a('s_mul_i32 %s, %s, 80' % (s(s_t0), s(s_t0)))
        a('s_sub_u32 %s, %s, %s' % (s(s_t1), s(s_hf0), s(s_hd0)))
        a('s_mul_i32 %s, %s, 1280' % (s(s_t1), s(s_t1)))
        a('s_add_u32 %s, %s, %s' % (s(s_t1), s(s_t1), s(s_wb)))
        a('s_mul_i32 %s, %s, 81920' % (s(s_t2), s(s_hf0)))
        a('s_add_u32 %s, %s, %s' % (s(s_t2), s(s_t2), s(s_tw)))
        vga = vWs
        vla = vo
        for it in range(8):
            a('v_add_u32 %s, %d, v0' % (v(vt0), 64 * it))
            a('v_mul_u32_u24 %s, 205, %s' % (v(vt1), v(vt0)))
            a('v_lshrrev_b32 %s, 14, %s' % (v(vt1), v(vt1)))
            a('v_mul_u32_u24 %s, 80, %s' % (v(vt2), v(vt1)))
            a('v_sub_u32 %s, %s, %s' % (v(vt2), v(vt0), v(vt2)))
            a('v_lshlrev_b32 %s, 4, %s' % (v(vt2), v(vt2)))
            a('v_mul_u32_u24 %s, 81920, %s' % (v(vt3), v(vt1)))
            a('v_add3_u32 %s, %s, %s, %s' % (v(vga[it]), v(vt3), v(vt2), s(s_t2)))
        a('s_waitcnt lgkmcnt(0)')
        stamp(a, ST, 5)
        for it in range(8):
            a('v_lshl_add_u32 %s, v0, 4, %s' % (v(vt0), s(s_t1)))
            a('ds_read_b128 %s, %s offset:%d' % (v(cbuf[it], 4), v(vt0), it * 1024))
        for it in range(8):
            a('s_waitcnt lgkmcnt(%d)' % (7 - it))
            if it >= 6:
                a('v_add_u32 %s, %d, v0' % (v(vt0), 64 * it))
                a('v_cmp_gt_u32 vcc, %s, %s' % (s(s_t0), v(vt0)))
                a('s_and_saveexec_b64 %s, vcc' % s(s_ex, 2))
                a('s_cbranch_execz %s' % L('fs%d' % it))
            a('buffer_store_dwordx4 %s, %s, %s, 0 offen%s' % (v(cbuf[it], 4), v(vga[it]), s(sO, 4), stf))
            if it >= 6:
                a.label(L('fs%d' % it))
                a('s_mov_b64 exec, %s' % s(s_ex, 2))
        for which in range(2):
            if which == 0:
                a('s_cmp_eq_u32 %s, 0' % s(s_r0))
                a('s_cbranch_scc1 %s' % L('pd0'))
                a('s_sub_u32 %s, 5, %s' % (s(s_t0), s(s_r0)))
                a('s_lshl_b32 %s, %s, 3' % (s(s_t1), s(s_r0)))
                a('s_mul_i32 %s, %s, 81920' % (s(s_t2), s(s_hd0)))
                a('s_add_u32 %s, %s, %s' % (s(s_t2), s(s_t2), s(s_t1)))
                a('s_add_u32 %s, %s, %s' % (s(s_t1), s(s_t1), s(s_wb)))
            else:
                a('s_cmp_eq_u32 %s, 0' % s(s_rL))
                a('s_cbranch_scc1 %s' % L('pd1'))
                a('s_mov_b32 %s, %s' % (s(s_t0), s(s_rL)))
                a('s_sub_u32 %s, %s, %s' % (s(s_t1), s(s_hfe), s(s_hd0)))
                a('s_mul_i32 %s, %s, 1280' % (s(s_t1), s(s_t1)))
                a('s_add_u32 %s, %s, %s' % (s(s_t1), s(s_t1), s(s_wb)))
                a('s_mul_i32 %s, %s, 81920' % (s(s_t2), s(s_hfe)))
            a('s_add_u32 %s, %s, %s' % (s(s_t2), s(s_t2), s(s_tw)))
            for it in range(2):
                a('v_and_b32 %s, 31, v0' % v(vt0))
                a('v_mul_u32_u24 %s, 40, %s' % (v(vt0), v(vt0)))
                a('v_lshrrev_b32 %s, 5, v0' % v(vt1))
                a('v_add_u32 %s, %d, %s' % (v(vt1), 2 * it, v(vt1)))
                a('v_lshl_add_u32 %s, %s, 3, %s' % (v(vt0), v(vt1), v(vt0)))
                a('v_add_u32 %s, %s, %s' % (v(vt2), s(s_t1), v(vt0)))
                a('v_add_u32 %s, %s, %s' % (v(vt3), s(s_t2), v(vt0)))
                a('v_cmp_gt_u32 vcc, %s, %s' % (s(s_t0), v(vt1)))
                a('s_and_saveexec_b64 %s, vcc' % s(s_ex, 2))
                a('s_cbranch_execz %s' % L('ps%d%d' % (which, it)))
                a('ds_read_b64 %s, %s' % (v(vga[0 + 2 * it], 2) if False else v(cbuf[8 + 2 * which + it], 2), v(vt2)))
                a('s_waitcnt lgkmcnt(0)')
                a('buffer_store_dwordx2 %s, %s, %s, 0 offen%s' % (v(cbuf[8 + 2 * which + it], 2), v(vt3), s(sO, 4), stf))
                a.label(L('ps%d%d' % (which, it)))
                a('s_mov_b64 exec, %s' % s(s_ex, 2))
            a.label(L('pd%d' % which))
    elif epi == 'relu':
        RS = 272
        assert 4 * 32 * RS <= STG_ROOM
        s_wb = s_kx
        a('s_mul_i32 %s, %s, %d' % (s(s_wb), s(s_wave), 32 * RS))
        a('s_add_u32 %s, %s, 0x%x' % (s(s_wb), s(s_wb), STG))
        vw = R.alloc()
        a('v_mul_u32_u24 %s, %d, %s' % (v(vw), RS, v(vi)))
        a('v_lshl_add_u32 %s, %s, 3, %s' % (v(vw), v(vg), v(vw)))
        a('v_add_u32 %s, %s, %s' % (v(vw), s(s_wb), v(vw)))
        vws = vWa
        for nt in range(NT):
            a('s_lshl_b32 %s, %s, 5' % (s(s_t0), s(s_slot + nt)))
            a('v_add_u32 %s, %s, %s' % (v(vws[nt]), s(s_t0), v(vw)))
        for nt in range(NT):
            for mt in range(MT):
                A = acc[mt][nt]
                ln_apply(A, mt, nt, True)
                a('ds_write_b64 %s, %s offset:%d' % (v(vws[nt]), v(A, 2), mt * 16 * RS))
        vr, vgo = R.alloc(), R.alloc()
        a('v_mul_u32_u24 %s, %d, %s' % (v(vr), RS, v(vg)))
        a('v_lshl_add_u32 %s, %s, 4, %s' % (v(vr), v(vi), v(vr)))
        a('v_add_u32 %s, %s, %s' % (v(vr), s(s_wb), v(vr)))
        a('s_lshl_b32 %s, %s, 5' % (s(s_t0), s(s_wave)))
        a('s_add_u32 %s, %s, %s' % (s(s_t0), s(s_t0), s(s_tok0)))
        a('v_add_u32 %s, %s, %s' % (v(vgo), s(s_t0), v(vg)))
        a('v_mul_u32_u24 %s, %d, %s' % (v(vgo), N * 2, v(vgo)))
        a('v_lshl_add_u32 %s, %s, 4, %s' % (v(vgo), v(vi), v(vgo)))
        a('s_lshl_b32 %s, %s, 1' % (s(s_t0), s(s_col0)))
        a('v_add_u32 %s, %s, %s' % (v(vgo), s(s_t0), v(vgo)))
        nvalid_chunks = (N - (c['NB'] - 1) * BN) // 8
        a('s_cmp_eq_u32 %s, %d' % (s(s_cb), c['NB'] - 1))
        a('s_cselect_b32 %s, %d, 16' % (s(s_t1), nvalid_chunks))
        a('v_cmp_gt_u32 vcc, %s, %s' % (s(s_t1), v(vi)))
        a('s_waitcnt lgkmcnt(0)')
        stamp(a, ST, 5)
        for it in range(8):
            a('ds_read_b128 %s, %s offset:%d' % (v(cbuf[it], 4), v(vr), it * 4 * RS))
        a('s_and_saveexec_b64 %s, vcc' % s(s_ex, 2))
        for it in range(8):
            a('s_mov_b32 %s, %d' % (s(s_t0), it * 4 * N * 2))
            a('s_waitcnt lgkmcnt(%d)' % (7 - it))
            a('buffer_store_dwordx4 %s, %s, %s, %s offen%s' % (v(cbuf[it], 4), v(vgo), s(sO, 4), s(s_t0), stf))
        a('s_mov_b64 exec, %s' % s(s_ex, 2))
    elif epi == 'resid':
        RS = 144
        assert BM * RS <= STG_ROOM
        vw = R.alloc()
        a('s_mul_i32 %s, %s, %d' % (s(s_t0), s(s_wm), MT * 16 * RS))
        a('s_mul_i32 %s, %s, %d' % (s(s_t1), s(s_wn), NT * 32))
        a('s_add_u32 %s, %s, %s' % (s(s_t0), s(s_t0), s(s_t1)))
        a('s_add_u32 %s, %s, 0x%x' % (s(s_t0), s(s_t0), STG))
        a('v_mul_u32_u24 %s, %d, %s' % (v(vw), RS, v(vi)))
        a('v_lshl_add_u32 %s, %s, 3, %s' % (v(vw), v(vg), v(vw)))
        a('v_add_u32 %s, %s, %s' % (v(vw), s(s_t0), v(vw)))
        for nt in range(NT):
            for mt in range(MT):
                A = acc[mt][nt]
                a('v_cvt_pk_bf16_f32 %s, %s, %s' % (v(A), v(A), v(A + 1)))
                a('v_cvt_pk_bf16_f32 %s, %s, %s' % (v(A + 1), v(A + 2), v(A + 3)))
                a('ds_write_b64 %s, %s offset:%d' % (v(vw), v(A, 2), mt * 16 * RS + nt * 32))
        vr = R.alloc()
        a('s_mul_i32 %s, %s, %d' % (s(s_t0), s(s_wave), NCH * 8 * RS))
        a('s_add_u32 %s, %s, 0x%x' % (s(s_t0), s(s_t0), STG))
        a('v_lshrrev_b32 %s, 3, v0' % v(vr))
        a('v_mul_u32_u24 %s, %d, %s' % (v(vr), RS, v(vr)))
        a('v_and_b32 %s, 7, v0' % v(vt0))
        a('v_lshl_add_u32 %s, %s, 4, %s' % (v(vr), v(vt0), v(vr)))
        a('v_add_u32 %s, %s, %s' % (v(vr), s(s_t0), v(vr)))
        a('s_mov_b32 %s, 0xffff0000' % s(s_t0))
        a('s_waitcnt lgkmcnt(0)')
        a('s_barrier')
        for j in range(NCH):
            a('ds_read_b128 %s, %s offset:%d' % (v(cbuf[j], 4), v(vr), j * 8 * RS))
        a('s_waitcnt vmcnt(0)')
        for j in range(NCH):
            a('s_waitcnt lgkmcnt(%d)' % (NCH - 1 - j))
            Cb, Rr = cbuf[j], vRes[j]
            for h in range(4):
                a('v_lshlrev_b32 %s, 16, %s' % (v(vt0), v(Cb + h)))
                a('v_and_b32 %s, %s, %s' % (v(vt1), s(s_t0), v(Cb + h)))
                a('v_lshlrev_b32 %s, 16, %s' % (v(vt2), v(Rr + h)))
                a('v_and_b32 %s, %s, %s' % (v(vt3), s(s_t0), v(Rr + h)))
                a('v_add_f32 %s, %s, %s' % (v(vt0), v(vt0), v(vt2)))
                a('v_add_f32 %s, %s, %s' % (v(vt1), v(vt1), v(vt3)))
                a('v_cvt_pk_bf16_f32 %s, %s, %s' % (v(Cb + h), v(vt0), v(vt1)))
            a('buffer_store_dwordx4 %s, %s, %s, 0 offen%s' % (v(Cb, 4), v(vOut[j]), s(sO, 4), stf if c['o'][0] == 'ws' else ''))
    stamp_flush(a, ST, c.get('kidx', 0), 3, s_wave, L('sdone'))
    a('s_endpgm')
    vmax = 254 if ST else R.hi

    a.label(L('loader'))
    R = Regs(1, 256, 'v')
    vt0, vt1, vt2, vt3, vl3, vl7 = [R.alloc() for _ in range(6)]
    s_lw = s_wave
    a('s_sub_u32 %s, %s, 4' % (s(s_lw), s(s_wave)))
    a('v_lshrrev_b32 %s, 3, v0' % v(vl3))
    a('v_and_b32 %s, 7, v0' % v(vl7))
    vX = [R.alloc() for _ in range(nX)]
    vXj = [R.alloc() for _ in range(nX)]
    vXo = [R.alloc() for _ in range(nX)]
    vW = [R.alloc() for _ in range(nW)]
    a('s_mul_i32 %s, %s, %d' % (s(s_t0), s(s_lw), BM // 4))
    for j in range(nX):
        a('s_add_u32 %s, %s, %d' % (s(s_t1), s(s_t0), 8 * j))
        a('v_add_u32 %s, %s, %s' % (v(vt0), s(s_t1), v(vl3)))
        a('v_bfe_u32 %s, %s, 1, 3' % (v(vt1), v(vt0)))
        a('v_xor_b32 %s, %s, %s' % (v(vt1), v(vt1), v(vl7)))
        a('v_add_u32 %s, %s, %s' % (v(vt0), s(s_tok0), v(vt0)))
        if pairX:
            a('v_mul_u32_u24 %s, 80, %s' % (v(vX[j]), v(vt0)))
            a('v_mov_b32 %s, %s' % (v(vXj[j]), v(vt1)))
        else:
            a('v_mul_u32_u24 %s, %d, %s' % (v(vt0), strideX, v(vt0)))
            a('v_lshl_add_u32 %s, %s, 4, %s' % (v(vX[j]), v(vt1), v(vt0)))
    lg = G.bit_length() - 1
    a('s_lshl_b32 %s, %s, 4' % (s(s_t0), s(s_lw)))
    a('s_lshl_b32 %s, %s, 1' % (s(s_t1), s(s_col0)))
    for j in range(nW):
        a('v_add_u32 %s, %d, v0' % (v(vt0), 64 * j))
        a('v_lshrrev_b32 %s, %d, %s' % (v(vt1), lg, v(vt0)))
        a('v_and_b32 %s, %d, %s' % (v(vt0), G - 1, v(vt0)))
        if rowW == 256:
            a('v_and_b32 %s, 7, %s' % (v(vt2), v(vt1)))
            a('v_lshlrev_b32 %s, 1, %s' % (v(vt2), v(vt2)))
        else:
            a('v_and_b32 %s, 6, %s' % (v(vt2), v(vt1)))
        a('v_xor_b32 %s, %s, %s' % (v(vt0), v(vt0), v(vt2)))
        a('v_and_b32 %s, 3, %s' % (v(vt2), v(vt1)))
        a('v_bfe_u32 %s, %s, 3, 1' % (v(vt3), v(vt1)))
        a('v_lshl_add_u32 %s, %s, 2, %s' % (v(vt2), v(vt3), v(vt2)))
        a('v_bfe_u32 %s, %s, 2, 1' % (v(vt3), v(vt1)))
        a('v_lshl_add_u32 %s, %s, 3, %s' % (v(vt2), v(vt3), v(vt2)))
        a('v_add_u32 %s, %s, %s' % (v(vt2), s(s_t0), v(vt2)))
        a('v_mul_u32_u24 %s, %d, %s' % (v(vt2), strideW, v(vt2)))
        a('v_lshl_add_u32 %s, %s, 4, %s' % (v(vt2), v(vt0), v(vt2)))
        a('v_add_u32 %s, %s, %s' % (v(vW[j]), s(s_t1), v(vt2)))
    a('s_mul_i32 %s, %s, %d' % (s(s_ldsX), s(s_lw), (BM // 4) * 128))
    a('s_mul_i32 %s, %s, %d' % (s(s_ldsW), s(s_lw), 16 * rowW))
    ra, rc = c['rot']
    a('s_mul_i32 %s, %s, %d' % (s(s_t2), s(s_t2), ra))
    a('s_mul_i32 %s, %s, %d' % (s(s_t3), s(s_t3), rc))
    a('s_add_u32 %s, %s, %s' % (s(s_st), s(s_t2), s(s_t3)))
    for _ in range(rot_max // S):
        a('s_cmp_ge_u32 %s, %d' % (s(s_st), S))
        a('s_cselect_b32 %s, %d, 0' % (s(s_t1), S))
        a('s_sub_u32 %s, %s, %s' % (s(s_st), s(s_st), s(s_t1)))
    a('s_lshl_b32 %s, %s, 7' % (s(s_kx), s(s_st)))
    a('s_mul_i32 %s, %s, %d' % (s(s_kw), s(s_st), 64 * strideW))
    a('s_waitcnt lgkmcnt(0)')
    build_srd(a, sX, pX, c['x'][1], c.get('xbytes', 2048 * strideX))
    build_srd(a, sW, pW, 0, K * strideW)

    def issue(st):
        base = (st % D) * SLOT
        for j in range(nW):
            a('s_add_u32 m0, %s, 0x%x' % (s(s_ldsW), base + XB + j * 1024))
            a('buffer_load_dwordx4 %s, %s, %s offen lds' % (v(vW[j]), s(sW, 4), s(s_kw)))
        for j in range(nX):
            if pairX:
                a('s_lshr_b32 %s, %s, 4' % (s(s_t0), s(s_kx)))
                a('v_add_u32 %s, %s, %s' % (v(vt0), s(s_t0), v(vXj[j])))
                a('v_mul_u32_u24 %s, 205, %s' % (v(vt1), v(vt0)))
                a('v_lshrrev_b32 %s, 10, %s' % (v(vt1), v(vt1)))
                a('v_mul_u32_u24 %s, 5, %s' % (v(vt2), v(vt1)))
                a('v_sub_u32 %s, %s, %s' % (v(vt0), v(vt0), v(vt2)))
                a('v_mul_u32_u24 %s, 163840, %s' % (v(vt1), v(vt1)))
                a('v_lshl_add_u32 %s, %s, 4, %s' % (v(vt1), v(vt0), v(vt1)))
                a('v_add_u32 %s, %s, %s' % (v(vXo[j]), v(vt1), v(vX[j])))
                a('s_add_u32 m0, %s, 0x%x' % (s(s_ldsX), base + j * 1024))
                a('buffer_load_dwordx4 %s, %s, 0 offen lds' % (v(vXo[j]), s(sX, 4)))
            else:
                a('s_add_u32 m0, %s, 0x%x' % (s(s_ldsX), base + j * 1024))
                a('buffer_load_dwordx4 %s, %s, %s offen lds' % (v(vX[j]), s(sX, 4), s(s_kx)))
        a('s_add_u32 %s, %s, 128' % (s(s_kx), s(s_kx)))
        a('s_add_u32 %s, %s, %d' % (s(s_kw), s(s_kw), 64 * strideW))
        a('s_cmp_eq_u32 %s, %d' % (s(s_kx), S * 128))
        a('s_cselect_b32 %s, 0, %s' % (s(s_kx), s(s_kx)))
        a('s_cselect_b32 %s, 0, %s' % (s(s_kw), s(s_kw)))

    issued = 0
    for _ in range(min(D - GRP, S, c.get('pro', 3))):
        issue(issued)
        issued += 1
    for g in range(NG):
        last_needed = min(S, (g + 1) * GRP) - 1
        while issued <= last_needed:
            issue(issued)
            issued += 1
        a('s_waitcnt vmcnt(%d)' % min(63, (issued - 1 - last_needed) * nDMA))
        a('s_barrier')
        n = 0
        while issued < S and issued < (g + DG) * GRP and n < 2 * GRP:
            issue(issued)
            issued += 1
            n += 1
    if LN:
        a('s_barrier')
    for wn in c.get('pfw', ()):
        vtid = R.alloc()
        a('v_lshl_add_u32 %s, %s, 6, v0' % (v(vtid), s(s_lw)))
        weight_prefetch(a, wn, vtid, 256, [vt0, vt1, vt2], vt3, sO, pO, [s_t0, s_t1, s_t2])
    a.label(L('end'))
    a('s_endpgm')
    vmax = max(vmax, R.hi)
    return dict(name=name, vgpr=vmax, sgpr=90 if ST else 60, lds=lds_total, block=512, grid=256)


CFG_QKV = dict(name='qkv_kernel', kidx=0, BM=128, BN=128, K=640, N=1920, WM=4, WN=1, D=4, LN=True, epi='qkv',
               x=('x', 0), w='wqkv', o=('ws', WS_QKV), obytes=QKV_BYTES, NB=15, map='p2', rb_per_xcd=4, cb_stride=8, rot=(3, 1), pfw=('wo',))
CFG_WO = dict(name='wo_kernel', kidx=2, BM=96, BN=64, K=640, N=640, WM=2, WN=2, D=8, GRP=2, PD=3, pro=4, epi='resid', pairX=True, xbytes=16 * 163840,
              x=('ws', WS_O), w='wo', o=('ws', WS_H), obytes=2048 * 1280, r=('x', 0), map='22x10', rot=(2, 2), pf_parts=(5, 5))
CFG_W1 = dict(name='w1_kernel', kidx=3, BM=128, BN=128, K=640, N=1728, WM=4, WN=1, D=4, LN=True, epi='relu',
              x=('ws', WS_H), w='w1', o=('ws', WS_H1), obytes=2048 * 3456, NB=14, map='p2', rb_per_xcd=4, cb_stride=7, rot=(3, 1), pfw=('w2',))
CFG_W2 = dict(name='w2_kernel', kidx=4, BM=96, BN=64, K=1728, N=640, WM=2, WN=2, D=8, GRP=2, PD=3, pro=4, epi='resid',
              x=('ws', WS_H1), w='w2', o=('out', 0), obytes=2048 * 1280, r=('ws', WS_H), map='22x10', rot=(4, 5), pf_parts=(5, 5))
```

```python
import math
import struct
from asmlib import Asm, Regs, v, s
from gemm import build_srd, KA, WS_QKV, WS_O, QKV_BYTES, stamp, stamp_flush, STFLAG, weight_prefetch, MP, M_WAVE, mega_wait, mega_signal, mstamp, mflush


def f32bits(x):
    return struct.unpack('<I', struct.pack('<f', x))[0]


def gen_attn(a, ST=False, mega=False):
    name = 'attn_kernel'
    L = lambda x: '%s_%s' % (name, x)
    HB = 43008
    KIMG, V0, V1 = 0, 24576, 36864
    STG = 2 * HB
    LDS = STG + 10240
    HS = 81920
    KBASE = 32 * HS
    VBASE = 64 * HS
    sQ, sO = 4, 8
    pWS = 12
    s_head, s_qb, s_wave, s_t0, s_t1, s_hk, s_c, s_nm = 14, 15, 16, 17, 18, 19, 20, 21
    sM = [22, 24, 26, 28]
    s_m3, s_m2 = 30, 32
    s_pair, s_wq, s_hh, s_lb = 34, 35, 36, 37

    ldf = ' sc1' if mega else ''
    stf = ' sc1' if mega else STFLAG
    if mega:
        ST = False
        pWS = MP['ws']
        a.label(name)
        mstamp(a, 0)
    else:
        a.raw('.p2align 8')
        a.raw('.globl %s' % name)
        a.raw('.type %s,@function' % name)
        a.label(name)
        stamp(a, ST, 0)
        a('s_load_dwordx2 %s, s[0:1], %d' % (s(pWS, 2), KA['ws']))
        a('s_load_dwordx2 s[44:45], s[0:1], %d' % KA['w1'])
        a('s_cmp_ge_u32 s2, 256')
        a('s_cbranch_scc1 %s' % L('end'))
    a('s_and_b32 %s, s2, 7' % s(s_t0))
    a('s_lshr_b32 %s, s2, 3' % s(s_t1))
    a('s_lshl_b32 %s, %s, 1' % (s(s_pair), s(s_t0)))
    a('s_and_b32 %s, %s, 1' % (s(s_t0), s(s_t1)))
    a('s_add_u32 %s, %s, %s' % (s(s_pair), s(s_pair), s(s_t0)))
    a('s_lshr_b32 %s, %s, 1' % (s(s_qb), s(s_t1)))
    if mega:
        a('s_mov_b32 %s, %s' % (s(s_wave), s(M_WAVE)))
    else:
        a('v_lshrrev_b32 v1, 6, v0')
        a('v_and_b32 v0, 63, v0')
        a('v_readfirstlane_b32 %s, v1' % s(s_wave))
    R = Regs(1, 256, 'v')
    vg, vi, vt0, vt1, vt2, vt3, vg2 = [R.alloc() for _ in range(7)]
    a('v_lshrrev_b32 %s, 4, v0' % v(vg))
    a('v_and_b32 %s, 15, v0' % v(vi))
    a('v_min_u32 %s, 2, %s' % (v(vg2), v(vg)))
    a('s_and_b32 %s, %s, 3' % (s(s_wq), s(s_wave)))
    a('s_mov_b32 s38, -1')
    a('s_mov_b32 s39, 0')
    a('s_lshr_b32 %s, %s, 2' % (s(s_hh), s(s_wave)))
    a('s_lshl_b32 %s, %s, 1' % (s(s_head), s(s_pair)))
    a('s_add_u32 %s, %s, %s' % (s(s_head), s(s_head), s(s_hh)))
    a('s_mul_i32 %s, %s, %d' % (s(s_lb), s(s_hh), HB))
    a('s_mul_i32 %s, %s, %d' % (s(s_hk), s(s_head), HS))
    a('s_mul_i32 %s, %s, %d' % (s(s_t0), s(s_qb), 128 * 40))
    a('s_add_u32 %s, %s, %s' % (s(s_hk), s(s_hk), s(s_t0)))
    a('s_sub_u32 %s, %s, %d' % (s(s_hk), s(s_hk), 256 * 40))
    a('v_mul_u32_u24 %s, 40, %s' % (v(vt0), v(vi)))
    a('v_lshl_add_u32 %s, %s, 4, %s' % (v(vt0), v(vg2), v(vt0)))
    a('v_lshrrev_b32 %s, 1, v0' % v(vt1))
    a('v_mul_u32_u24 %s, 40, %s' % (v(vt1), v(vt1)))
    a('v_and_b32 %s, 1, v0' % v(vt2))
    a('v_lshl_add_u32 %s, %s, 4, %s' % (v(vt1), v(vt2), v(vt1)))
    a('v_mul_u32_u24 %s, 40, v0' % v(vt2))
    a('s_mul_i32 %s, %s, %d' % (s(s_t0), s(s_wq), 96 * 40))
    a('s_add_u32 %s, %s, %s' % (s(s_nm), s(s_t0), s(s_hk)))
    a('s_add_u32 %s, %s, %d' % (s(s_t0), s(s_nm), KBASE))
    a('s_mul_i32 %s, %s, %d' % (s(s_t1), s(s_wq), 6 * 1024))
    a('s_add_u32 %s, %s, %s' % (s(s_t1), s(s_t1), s(s_lb)))
    a('s_waitcnt lgkmcnt(0)')
    build_srd(a, sQ, pWS, WS_QKV, QKV_BYTES + 64)
    if mega:
        vd = [R.alloc() for _ in range(3)]
        a('s_sub_u32 s40, %s, 2' % s(s_qb))
        mega_wait(a, 'qkv', 40, s_qb, 15, vd, [41, 42], L('dep'))
        a('s_barrier')
        mstamp(a, 1)
    for j in range(6):
        a('s_add_u32 m0, %s, %d' % (s(s_t1), KIMG + j * 1024))
        a('buffer_load_dwordx4 %s, %s, %s offen lds%s' % (v(vt0), s(sQ, 4), s(s_t0), ldf))
        if j < 5:
            a('s_add_u32 %s, %s, 640' % (s(s_t0), s(s_t0)))
    fQ = [R.alloc(4, 4) for _ in range(2)]
    a('s_mul_i32 %s, %s, %d' % (s(s_t0), s(s_wq), 32 * 40))
    a('s_add_u32 %s, %s, %s' % (s(s_t0), s(s_t0), s(s_hk)))
    a('s_add_u32 %s, %s, %d' % (s(s_t0), s(s_t0), 256 * 40))
    for aa in range(2):
        a('buffer_load_dwordx4 %s, %s, %s, %s offen offset:%d%s' % (v(fQ[aa], 4), v(vt0), s(sQ, 4), s(s_t0), aa * 640, ldf))
    a('s_add_u32 %s, %s, %d' % (s(s_t0), s(s_nm), VBASE))
    a('s_mul_i32 %s, %s, %d' % (s(s_t1), s(s_wq), 3 * 1024))
    a('s_add_u32 %s, %s, %s' % (s(s_t1), s(s_t1), s(s_lb)))
    for j in range(3):
        a('s_add_u32 m0, %s, %d' % (s(s_t1), V0 + j * 1024))
        a('buffer_load_dwordx4 %s, %s, %s offen lds%s' % (v(vt1), s(sQ, 4), s(s_t0), ldf))
        a('s_add_u32 %s, %s, %d' % (s(s_t0), s(s_t0), 32 * 40))
    a('s_add_u32 %s, %s, %d' % (s(s_t0), s(s_nm), VBASE + 32))
    a('s_mul_i32 %s, %s, %d' % (s(s_t1), s(s_wq), 96 * 16))
    a('s_add_u32 %s, %s, %s' % (s(s_t1), s(s_t1), s(s_lb)))
    a('s_add_u32 m0, %s, %d' % (s(s_t1), V1))
    a('buffer_load_dwordx4 %s, %s, %s offen lds%s' % (v(vt2), s(sQ, 4), s(s_t0), ldf))
    a('s_add_u32 %s, %s, %d' % (s(s_t0), s(s_t0), 64 * 40))
    a('s_add_u32 m0, %s, %d' % (s(s_t1), V1 + 1024))
    a('s_mov_b64 exec, s[38:39]')
    a('buffer_load_dwordx4 %s, %s, %s offen lds%s' % (v(vt2), s(sQ, 4), s(s_t0), ldf))
    a('s_mov_b64 exec, -1')
    build_srd(a, sO, pWS, WS_O, 16 * 163840)
    for r in range(4):
        a('v_lshl_add_u32 %s, %s, 2, %d' % (v(vt3), v(vg), r))
        a('v_cmp_le_u32 %s, %s, %s' % (s(sM[r], 2), v(vt3), v(vi)))
    a('v_cmp_eq_u32 %s, 3, %s' % (s(s_m3, 2), v(vg)))
    a('v_cmp_le_u32 %s, 2, %s' % (s(s_m2, 2), v(vg)))
    vML = [R.alloc() for _ in range(2)]
    vMH = [R.alloc() for _ in range(2)]
    vz = R.alloc()
    a('v_mov_b32 %s, 0' % v(vz))
    a('v_mov_b32 %s, 0xffff' % v(vt3))
    vhi16 = R.alloc()
    a('v_mov_b32 %s, 0xffff0000' % v(vhi16))
    for h in range(2):
        a('v_cndmask_b32 %s, %s, %s, %s' % (v(vML[h]), v(vz), v(vt3), s(sM[2 * h], 2)))
        a('v_cndmask_b32 %s, %s, %s, %s' % (v(vMH[h]), v(vz), v(vhi16), s(sM[2 * h + 1], 2)))
        a('v_or_b32 %s, %s, %s' % (v(vML[h]), v(vML[h]), v(vMH[h])))
        a('v_not_b32 %s, %s' % (v(vMH[h]), v(vML[h])))
    a('s_mov_b32 %s, 0x%x' % (s(s_c), f32bits(20 ** -0.5 * math.log2(math.e))))
    vKa, vV0a, vV1a, vP = R.alloc(), R.alloc(), R.alloc(), R.alloc()
    a('s_lshl_b32 %s, %s, 11' % (s(s_t0), s(s_wq)))
    a('s_add_u32 %s, %s, %s' % (s(s_t0), s(s_t0), s(s_lb)))
    a('v_lshlrev_b32 %s, 4, v0' % v(vKa))
    a('v_add_u32 %s, %s, %s' % (v(vKa), s(s_t0), v(vKa)))
    a('s_lshl_b32 %s, %s, 10' % (s(s_t0), s(s_wq)))
    a('s_add_u32 %s, %s, %d' % (s(s_t0), s(s_t0), V0))
    a('s_add_u32 %s, %s, %s' % (s(s_t0), s(s_t0), s(s_lb)))
    a('v_lshlrev_b32 %s, 3, v0' % v(vV0a))
    a('v_add_u32 %s, %s, %s' % (v(vV0a), s(s_t0), v(vV0a)))
    a('s_lshl_b32 %s, %s, 9' % (s(s_t0), s(s_wq)))
    a('s_add_u32 %s, %s, %d' % (s(s_t0), s(s_t0), V1))
    a('s_add_u32 %s, %s, %s' % (s(s_t0), s(s_t0), s(s_lb)))
    a('v_lshrrev_b32 %s, 2, v0' % v(vV1a))
    a('v_lshlrev_b32 %s, 4, %s' % (v(vV1a), v(vV1a)))
    a('v_and_b32 %s, 1, v0' % v(vt3))
    a('v_lshl_add_u32 %s, %s, 3, %s' % (v(vV1a), v(vt3), v(vV1a)))
    a('v_add_u32 %s, %s, %s' % (v(vV1a), s(s_t0), v(vV1a)))
    a('s_add_u32 %s, %s, %d' % (s(s_t0), s(s_t1), V1 + 8))
    a('v_lshlrev_b32 %s, 4, v0' % v(vP))
    a('v_add_u32 %s, %s, %s' % (v(vP), s(s_t0), v(vP)))
    vone = R.alloc(2)
    a('v_mov_b32 %s, 0x3f80' % v(vone))
    a('v_mov_b32 %s, 0' % v(vone + 1))
    a('s_waitcnt vmcnt(0)')
    a('ds_write_b64 %s, %s' % (v(vP), v(vone, 2)))
    a('s_mov_b64 exec, s[38:39]')
    a('ds_write_b64 %s, %s offset:1024' % (v(vP), v(vone, 2)))
    a('s_mov_b64 exec, -1')
    for aa in range(2):
        for r in range(2):
            a('v_cndmask_b32 %s, %s, %s, %s' % (v(fQ[aa] + r), v(fQ[aa] + r), v(vz), s(s_m3, 2)))
        for r in range(2, 4):
            a('v_cndmask_b32 %s, %s, %s, %s' % (v(fQ[aa] + r), v(fQ[aa] + r), v(vz), s(s_m2, 2)))
    a('s_waitcnt lgkmcnt(0)')
    a('s_barrier')
    stamp(a, ST, 1)
    if mega:
        mstamp(a, 2)

    Sreg = [[R.alloc(4, 4) for t in range(17)] for aa in range(2)]
    NKB = 6
    fK = [R.alloc(4, 4) for _ in range(NKB)]
    for t in range(min(NKB, 18)):
        a('ds_read_b128 %s, %s offset:%d' % (v(fK[t % NKB], 4), v(vKa), t * 1024))
    for t in range(18):
        outstanding_after = min(17, t + NKB - 1) - t
        a('s_waitcnt lgkmcnt(%d)' % outstanding_after)
        if t <= 16:
            a('v_mfma_f32_16x16x32_bf16 %s, %s, %s, 0' % (v(Sreg[0][t], 4), v(fK[t % NKB], 4), v(fQ[0], 4)))
        if t >= 1:
            a('v_mfma_f32_16x16x32_bf16 %s, %s, %s, 0' % (v(Sreg[1][t - 1], 4), v(fK[t % NKB], 4), v(fQ[1], 4)))
        if t + NKB < 18:
            a('ds_read_b128 %s, %s offset:%d' % (v(fK[t % NKB], 4), v(vKa), (t + NKB) * 1024))
    a('s_nop 7')
    a('s_cmp_ge_u32 %s, 2' % s(s_qb))
    a('s_cbranch_scc1 %s' % L('nomask'))
    for aa in range(2):
        a('s_lshl_b32 %s, %s, 1' % (s(s_nm), s(s_wq)))
        a('s_lshl_b32 %s, %s, 3' % (s(s_t0), s(s_qb)))
        a('s_add_u32 %s, %s, %s' % (s(s_nm), s(s_nm), s(s_t0)))
        a('s_sub_u32 %s, %d, %s' % (s(s_nm), 16 - aa, s(s_nm)))
        for t in range(16):
            a('s_cmp_gt_u32 %s, %d' % (s(s_nm), t))
            a('s_cbranch_scc0 %s' % L('mdone%d' % aa))
            for r in range(4):
                a('v_mov_b32 %s, 0xf149f2ca' % v(Sreg[aa][t] + r))
        a.label(L('mdone%d' % aa))
    a.label(L('nomask'))

    vmx, vmx2 = R.alloc(), R.alloc()
    Oacc = [[R.alloc(4, 4) for dt in range(2)] for aa in range(2)]

    def softmax(aa):
        Sg = Sreg[aa]
        for r in range(4):
            a('v_cndmask_b32 %s, %s, %s, %s' % (v(Sg[16] + r), v(Sg[0] + r), v(Sg[16] + r), s(sM[r], 2)))
        vals = [Sg[t] + r for t in range(1, 17) for r in range(4)]
        a('v_max3_f32 %s, %s, %s, %s' % (v(vmx), v(vals[0]), v(vals[1]), v(vals[2])))
        a('v_max3_f32 %s, %s, %s, %s' % (v(vmx2), v(vals[3]), v(vals[4]), v(vals[5])))
        k = 6
        tog = 0
        while k + 1 < len(vals):
            d = vmx if tog == 0 else vmx2
            a('v_max3_f32 %s, %s, %s, %s' % (v(d), v(d), v(vals[k]), v(vals[k + 1])))
            k += 2
            tog ^= 1
        assert k == len(vals)
        a('v_max_f32 %s, %s, %s' % (v(vmx), v(vmx), v(vmx2)))
        a('v_mov_b32 %s, %s' % (v(vmx2), v(vmx)))
        a('v_permlane32_swap_b32 %s, %s' % (v(vmx), v(vmx2)))
        a('v_max_f32 %s, %s, %s' % (v(vmx), v(vmx), v(vmx2)))
        a('v_mov_b32 %s, %s' % (v(vmx2), v(vmx)))
        a('v_permlane16_swap_b32 %s, %s' % (v(vmx), v(vmx2)))
        a('v_max_f32 %s, %s, %s' % (v(vmx), v(vmx), v(vmx2)))
        a('v_mul_f32 %s, %s, %s' % (v(vmx), s(s_c), v(vmx)))
        if aa == 0:
            dst = {t: Sg[t & ~1] + 2 * (t & 1) for t in range(2, 16)}
            dst[1] = Sg[0] + 2
            dhi, dlo = Sg[0], Sg[16]
        else:
            dst = {t: Sg[t - ((t - 1) & 1)] + 2 * ((t - 1) & 1) for t in range(1, 15)}
            dst[15] = Sg[15]
            dhi, dlo = Sg[0], Sg[15] + 2
        order = list(range(1, 16)) + [16]
        for t in order:
            b = Sg[t]
            for r in range(4):
                a('v_fma_f32 %s, %s, %s, -%s' % (v(b + r), v(b + r), s(s_c), v(vmx)))
            for r in range(4):
                a('v_exp_f32 %s, %s' % (v(b + r), v(b + r)))
            if t < 16:
                a('v_cvt_pk_bf16_f32 %s, %s, %s' % (v(dst[t]), v(b), v(b + 1)))
                a('v_cvt_pk_bf16_f32 %s, %s, %s' % (v(dst[t] + 1), v(b + 2), v(b + 3)))
            else:
                a('v_cvt_pk_bf16_f32 %s, %s, %s' % (v(vt0), v(b), v(b + 1)))
                a('v_cvt_pk_bf16_f32 %s, %s, %s' % (v(vt1), v(b + 2), v(b + 3)))
                a('v_and_b32 %s, %s, %s' % (v(dlo), v(vt0), v(vML[0])))
                a('v_and_b32 %s, %s, %s' % (v(dlo + 1), v(vt1), v(vML[1])))
                a('v_and_b32 %s, %s, %s' % (v(dhi), v(vt0), v(vMH[0])))
                a('v_and_b32 %s, %s, %s' % (v(dhi + 1), v(vt1), v(vMH[1])))

    stamp(a, ST, 2)
    softmax(0)
    vtid = R.alloc()
    a('v_lshl_add_u32 %s, %s, 6, v0' % (v(vtid), s(s_wave)))
    weight_prefetch(a, 'w1', vtid, 512, [vt0, vt1, vt2], vt3, 40, MP['w1'] if mega else 44, [s_t0, s_t1, s_nm], preloaded=True)
    softmax(1)
    stamp(a, ST, 3)

    Vb = [(fK[0], fK[1]), (fK[2], fK[3]), (fK[4], fK[5])]

    def vreads(slot, kta, ktb):
        for dt in range(2):
            base, stride = (vV0a, 512) if dt == 0 else (vV1a, 256)
            a('ds_read_b64_tr_b16 %s, %s offset:%d' % (v(Vb[slot][dt], 2), v(base), kta * stride))
            a('ds_read_b64_tr_b16 %s, %s offset:%d' % (v(Vb[slot][dt] + 2, 2), v(base), ktb * stride))

    steps = [(0, 1)] + [(t, t + 1) for t in range(2, 16, 2)] + [(16, 17)]
    vreads(0, *steps[0])
    vreads(1, *steps[1])
    first = [[True, True], [True, True]]

    def pv(aa, dt, vreg, preg, wide):
        cc = '0' if first[aa][dt] else v(Oacc[aa][dt], 4)
        first[aa][dt] = False
        if wide:
            a('v_mfma_f32_16x16x32_bf16 %s, %s, %s, %s' % (v(Oacc[aa][dt], 4), v(vreg, 4), v(preg, 4), cc))
        else:
            a('v_mfma_f32_16x16x16_bf16 %s, %s, %s, %s' % (v(Oacc[aa][dt], 4), v(vreg, 2), v(preg, 2), cc))

    for si, (ta, tb) in enumerate(steps):
        if si + 2 < len(steps):
            vreads((si + 2) % 3, *steps[si + 2])
        nafter = min(len(steps) - 1, si + 2) - si
        a('s_waitcnt lgkmcnt(%d)' % (4 * nafter))
        sl = Vb[si % 3]
        for dt in range(2):
            if si == 0:
                pv(0, dt, sl[dt], Sreg[0][0], True)
                pv(1, dt, sl[dt] + 2, Sreg[1][0], False)
            elif si == len(steps) - 1:
                pv(0, dt, sl[dt], Sreg[0][16], False)
                pv(1, dt, sl[dt], Sreg[1][15], True)
            else:
                pv(0, dt, sl[dt], Sreg[0][ta], True)
                pv(1, dt, sl[dt], Sreg[1][ta - 1], True)

    stamp(a, ST, 4)
    if mega:
        mstamp(a, 3)
    vo = R.alloc()
    a('s_mul_i32 %s, %s, %d' % (s(s_t0), s(s_wq), 32 * 80))
    a('s_mul_i32 %s, %s, 40' % (s(s_t1), s(s_hh)))
    a('s_add_u32 %s, %s, %s' % (s(s_t0), s(s_t0), s(s_t1)))
    a('s_add_u32 %s, %s, %d' % (s(s_t0), s(s_t0), STG))
    a('v_mul_u32_u24 %s, 80, %s' % (v(vo), v(vi)))
    a('v_lshl_add_u32 %s, %s, 3, %s' % (v(vo), v(vg), v(vo)))
    a('v_add_u32 %s, %s, %s' % (v(vo), s(s_t0), v(vo)))
    for aa in range(2):
        O0, O1 = Oacc[aa]
        a('v_mov_b32 %s, %s' % (v(vt0), v(O1)))
        a('v_mov_b32 %s, %s' % (v(vt1), v(O1)))
        a('v_permlane16_swap_b32 %s, %s' % (v(vt0), v(vt1)))
        a('v_mov_b32 %s, %s' % (v(vt0), v(vt1)))
        a('v_permlane32_swap_b32 %s, %s' % (v(vt0), v(vt1)))
        a('v_rcp_f32 %s, %s' % (v(vt0), v(vt0)))
        for r in range(4):
            a('v_mul_f32 %s, %s, %s' % (v(O0 + r), v(vt0), v(O0 + r)))
            a('v_mul_f32 %s, %s, %s' % (v(O1 + r), v(vt0), v(O1 + r)))
        a('v_cvt_pk_bf16_f32 %s, %s, %s' % (v(O0), v(O0), v(O0 + 1)))
        a('v_cvt_pk_bf16_f32 %s, %s, %s' % (v(O0 + 1), v(O0 + 2), v(O0 + 3)))
        a('v_cvt_pk_bf16_f32 %s, %s, %s' % (v(O1), v(O1), v(O1 + 1)))
        a('v_cvt_pk_bf16_f32 %s, %s, %s' % (v(O1 + 1), v(O1 + 2), v(O1 + 3)))
        a('ds_write_b64 %s, %s offset:%d' % (v(vo), v(O0, 2), aa * 16 * 80))
        a('s_mov_b64 exec, 0xffff')
        a('ds_write_b64 %s, %s offset:%d' % (v(vo), v(O1, 2), aa * 16 * 80 + 32))
        a('s_mov_b64 exec, -1')
    a('s_mul_i32 %s, %s, 1280' % (s(s_t0), s(s_wave)))
    a('v_lshl_add_u32 %s, v0, 4, %s' % (v(vt0), s(s_t0)))
    a('v_add_u32 %s, %d, %s' % (v(vt1), STG, v(vt0)))
    a('s_mul_i32 %s, %s, 163840' % (s(s_t0), s(s_pair)))
    a('s_mul_i32 %s, %s, 10240' % (s(s_t1), s(s_qb)))
    a('s_add_u32 %s, %s, %s' % (s(s_t0), s(s_t0), s(s_t1)))
    a('s_waitcnt lgkmcnt(0)')
    a('s_barrier')
    a('ds_read_b128 %s, %s' % (v(fK[0], 4), v(vt1)))
    a('ds_read_b128 %s, %s offset:1024' % (v(fK[1], 4), v(vt1)))
    a('s_waitcnt lgkmcnt(1)')
    a('buffer_store_dwordx4 %s, %s, %s, %s offen%s' % (v(fK[0], 4), v(vt0), s(sO, 4), s(s_t0), stf))
    a('s_waitcnt lgkmcnt(0)')
    a('s_mov_b64 exec, 0xffff')
    a('buffer_store_dwordx4 %s, %s, %s, %s offen offset:1024%s' % (v(fK[1], 4), v(vt0), s(sO, 4), s(s_t0), stf))
    a('s_mov_b64 exec, -1')
    if mega:
        mstamp(a, 4)
        a('s_waitcnt vmcnt(0)')
        a('s_barrier')
        mega_signal(a, 'attn', s_qb, s_pair, vt0, s_t0, L('sig'))
        mflush(a, 1, L('mfl'))
        a.label(L('end'))
    else:
        stamp_flush(a, ST, 1, 5, s_wave, L('sdone'))
        a.label(L('end'))
        a('s_endpgm')
    return dict(name=name, vgpr=254 if ST else R.hi, sgpr=90 if ST else 48, lds=LDS, block=512, grid=256)
```

```python
from asmlib import Asm, Regs, v, s

WS_QKV = 0
WS_O = 0x800000
WS_H = 0xB00000
WS_H1 = 0x1000000
QKV_BYTES = 96 * 81920
WS_STAMP = 0x3000000
STAMP_S = 60

KA = dict(x=0, wqkv=8, wo=16, bx=24, w1=32, w2=40, out=48, dbg=56, ws=64)
STFLAG = ''


def build_srd(a, sr, sptr, off, nbytes):
    if off:
        a('s_add_u32 %s, %s, 0x%x' % (s(sr), s(sptr), off))
        a('s_addc_u32 %s, %s, 0' % (s(sr + 1), s(sptr + 1)))
        a('s_and_b32 %s, %s, 0xffff' % (s(sr + 1), s(sr + 1)))
    else:
        a('s_mov_b32 %s, %s' % (s(sr), s(sptr)))
        a('s_and_b32 %s, %s, 0xffff' % (s(sr + 1), s(sptr + 1)))
    a('s_mov_b32 %s, 0x%x' % (s(sr + 2), nbytes))
    a('s_mov_b32 %s, 0x20000' % s(sr + 3))


def stamp(a, on, i):
    if on:
        a('s_memrealtime %s' % s(STAMP_S + 2 * i, 2))


def stamp_flush(a, on, kidx, n, s_wave, lbl):
    if not on:
        return
    a('s_waitcnt vmcnt(0)')
    stamp(a, on, n)
    a('s_load_dwordx2 s[80:81], s[0:1], %d' % KA['ws'])
    a('s_waitcnt lgkmcnt(0)')
    a('s_cmp_lg_u32 %s, 0' % s(s_wave))
    a('s_cbranch_scc1 %s' % lbl)
    build_srd(a, 76, 80, WS_STAMP + kidx * 16384, 16384)
    a('s_lshl_b32 s82, s2, 6')
    a('v_mov_b32 v250, s82')
    a('s_mov_b64 exec, 1')
    for i in range(6):
        a('v_mov_b32 v252, %s' % s(STAMP_S + 2 * i))
        a('v_mov_b32 v253, %s' % s(STAMP_S + 2 * i + 1))
        a('buffer_store_dwordx2 v[252:253], v250, s[76:79], 0 offen offset:%d' % (8 * i))
        a('s_nop 1')
    a('s_mov_b64 exec, -1')
    a.label(lbl)


PF = dict(wo=(640, 1280, 5, 640), w1=(640, 3456, 14, 1792), w2=(1728, 1280, 5, 640))


def weight_prefetch(a, wname, vtid, nthreads, vt, vdst, sr, sp, st, preloaded=False):
    nrows, stride, lpr, half = PF[wname]
    total = nrows * lpr
    per = (total + 31) // 32
    if not preloaded:
        a('s_load_dwordx2 %s, s[0:1], %d' % (s(sp, 2), KA[wname]))
    a('s_lshr_b32 %s, s2, 3' % s(st[0]))
    a('s_mul_i32 %s, %s, %d' % (s(st[0]), s(st[0]), per))
    a('s_add_u32 %s, %s, %d' % (s(st[1]), s(st[0]), per))
    a('s_min_u32 %s, %s, %d' % (s(st[1]), s(st[1]), total))
    a('s_and_b32 %s, s2, 1' % s(st[2]))
    a('s_mul_i32 %s, %s, %d' % (s(st[2]), s(st[2]), half))
    sh = 16
    while True:
        magic = ((1 << sh) + lpr - 1) // lpr
        if all((f * magic) >> sh == f // lpr for f in range(0, total + 2048)) and (total + 2048) * magic < (1 << 32):
            break
        sh += 1
    if not preloaded:
        a('s_waitcnt lgkmcnt(0)')
    build_srd(a, sr, sp, 0, nrows * stride)
    for it in range((per + nthreads - 1) // nthreads):
        a('v_add_u32 %s, %s, %s' % (v(vt[0]), s(st[0]), v(vtid)))
        if it:
            a('v_add_u32 %s, %d, %s' % (v(vt[0]), it * nthreads, v(vt[0])))
        a('v_mul_u32_u24 %s, %d, %s' % (v(vt[1]), magic, v(vt[0])))
        a('v_lshrrev_b32 %s, %d, %s' % (v(vt[1]), sh, v(vt[1])))
        a('v_mul_u32_u24 %s, %d, %s' % (v(vt[2]), lpr, v(vt[1])))
        a('v_sub_u32 %s, %s, %s' % (v(vt[2]), v(vt[0]), v(vt[2])))
        a('v_mul_u32_u24 %s, %d, %s' % (v(vt[1]), stride, v(vt[1])))
        a('v_lshl_add_u32 %s, %s, 7, %s' % (v(vt[1]), v(vt[2]), v(vt[1])))
        a('v_cmp_gt_u32 vcc, %s, %s' % (s(st[1]), v(vt[0])))
        a('v_mov_b32 %s, -1' % v(vt[2]))
        a('v_cndmask_b32 %s, %s, %s, vcc' % (v(vt[1]), v(vt[2]), v(vt[1])))
        a('buffer_load_dword %s, %s, %s, %s offen' % (v(vdst), v(vt[1]), s(sr, 4), s(st[2])))


WS_FLAG = 0x2000000
MP = dict(x=64, wqkv=66, wo=68, w1=70, w2=72, out=74, dbg=76, ws=78)
M_WAVE, M_NONCE, M_FSRD, M_STAMP = 80, 81, 84, 90
FLAG_OFF = dict(qkv=0, attn=1024, wo=2048, w1=4096)
POLL_LIMIT = 200000


MST = [False]


def mstamp(a, i):
    if MST[0]:
        a('s_memrealtime %s' % s(M_STAMP + 2 * i, 2))


def mflush(a, phase, lbl):
    if not MST[0]:
        return
    mstamp(a, 5)
    a('s_waitcnt lgkmcnt(0)')
    a('s_cmp_lg_u32 %s, 0' % s(M_WAVE))
    a('s_cbranch_scc1 %s' % lbl)
    build_srd(a, 4, MP['ws'], WS_STAMP + phase * 16384, 16384)
    a('s_lshl_b32 s8, s2, 6')
    a('v_mov_b32 v250, s8')
    a('s_mov_b64 exec, 1')
    for i in range(6):
        a('v_mov_b32 v252, %s' % s(M_STAMP + 2 * i))
        a('v_mov_b32 v253, %s' % s(M_STAMP + 2 * i + 1))
        a('buffer_store_dwordx2 v[252:253], v250, s[4:7], 0 offen offset:%d' % (8 * i))
        a('s_nop 1')
    a('s_mov_b64 exec, -1')
    a.label(lbl)


def mega_nonce(a):
    a('s_waitcnt vmcnt(0)')
    a('v_readfirstlane_b32 %s, v248' % s(M_NONCE))
    a('s_cmp_eq_u32 %s, 0' % s(M_NONCE))
    a('s_cselect_b32 %s, s82, %s' % (s(M_NONCE), s(M_NONCE)))


def mega_signal(a, table, s_row, s_col, vtmp, stmp, lbl):
    a('s_cmp_lg_u32 %s, 0' % s(M_WAVE))
    a('s_cbranch_scc1 %s' % lbl)
    mega_nonce(a)
    a('s_lshl_b32 %s, %s, 4' % (s(stmp), s(s_row)))
    a('s_add_u32 %s, %s, %s' % (s(stmp), s(stmp), s(s_col)))
    a('s_lshl_b32 %s, %s, 2' % (s(stmp), s(stmp)))
    a('s_add_u32 %s, %s, %d' % (s(stmp), s(stmp), FLAG_OFF[table]))
    a('v_mov_b32 %s, %s' % (v(vtmp), s(stmp)))
    a('v_mov_b32 %s, %s' % (v(vtmp + 1), s(M_NONCE)))
    a('s_mov_b64 exec, 1')
    a('buffer_store_dword %s, %s, %s, 0 offen sc1' % (v(vtmp + 1), v(vtmp), s(M_FSRD, 4)))
    a('s_mov_b64 exec, -1')
    a.label(lbl)


def mega_wait(a, table, s_r0, s_r1, ncol, vt, st, lbl):
    a('s_cmp_lg_u32 %s, 0' % s(M_WAVE))
    a('s_cbranch_scc1 %s' % (lbl + '_done'))
    mega_nonce(a)
    a('v_lshrrev_b32 %s, 4, v0' % v(vt[0]))
    a('v_add_u32 %s, %s, %s' % (v(vt[0]), s(s_r0), v(vt[0])))
    a('v_and_b32 %s, 15, v0' % v(vt[1]))
    a('v_cmp_gt_u32 %s, %d, %s' % (s(st[1], 2), ncol, v(vt[1])))
    a('v_cmp_le_i32 vcc, 0, %s' % v(vt[0]))
    a('s_and_b64 %s, %s, vcc' % (s(st[1], 2), s(st[1], 2)))
    a('v_cmp_ge_i32 vcc, %s, %s' % (s(s_r1), v(vt[0])))
    a('s_and_b64 %s, %s, vcc' % (s(st[1], 2), s(st[1], 2)))
    a('v_lshl_add_u32 %s, %s, 4, %s' % (v(vt[0]), v(vt[0]), v(vt[1])))
    a('v_lshlrev_b32 %s, 2, %s' % (v(vt[0]), v(vt[0])))
    a('v_add_u32 %s, %d, %s' % (v(vt[0]), FLAG_OFF[table], v(vt[0])))
    a('s_mov_b32 %s, 0' % s(st[0]))
    a('s_mov_b64 exec, %s' % s(st[1], 2))
    a.label(lbl + '_loop')
    a('buffer_load_dword %s, %s, %s, 0 offen sc1' % (v(vt[1]), v(vt[0]), s(M_FSRD, 4)))
    a('s_waitcnt vmcnt(0)')
    a('v_cmp_ne_u32 vcc, %s, %s' % (s(M_NONCE), v(vt[1])))
    a('s_nop 1')
    a('s_cbranch_vccz %s' % (lbl + '_ok'))
    a('s_sleep 1')
    a('s_add_u32 %s, %s, 1' % (s(st[0]), s(st[0])))
    a('s_cmp_lt_u32 %s, %d' % (s(st[0]), POLL_LIMIT))
    a('s_cbranch_scc1 %s' % (lbl + '_loop'))
    a.label(lbl + '_ok')
    a('s_mov_b64 exec, -1')
    a.label(lbl + '_done')


def bf16_round(a, dst, src):
    a('v_cvt_pk_bf16_f32 %s, %s, %s' % (v(dst), v(src), v(src)))
    a('v_lshlrev_b32 %s, 16, %s' % (v(dst), v(dst)))


def gen_gemm(a, c):
    name = c['name']
    BM, BN, K, N = c['BM'], c['BN'], c['K'], c['N']
    WM, WN = c['WM'], c['WN']
    D = c['D']
    LN = c.get('LN', False)
    epi = c['epi']
    ST = c.get('stamps', False)
    MT = BM // 16 // WM
    NT = BN // 16 // WN
    S = K // 64
    G = BN // 8
    rowW = BN * 2
    assert rowW in (128, 256)
    XB = BM * 128
    WB = 64 * rowW
    SLOT = XB + WB
    SCOL = D * SLOT
    SROW = SCOL + BN * 4
    lds_total = SROW + BM * 8 if LN else SCOL
    strideX = K * 2
    strideW = N * 2
    nX = BM // 32
    nW = 16 * G // 64
    nDMA = nX + nW
    pairX = c.get('pairX', False)
    GRP = c.get('GRP', 1)
    PD = c.get('PD', 1)
    assert D % GRP == 0
    DG = D // GRP
    NG = (S + GRP - 1) // GRP
    last_g = (NG - 1) % DG
    GS = GRP * SLOT
    STG = (last_g + 1) * GS if last_g + 1 < DG else 0
    STG_ROOM = (DG - last_g - 1) * GS if last_g + 1 < DG else last_g * GS
    mega = c.get('mega', False)
    stf = ' sc1' if mega else STFLAG
    ldf = ' sc1' if (mega and c['x'][0] == 'ws') else ''
    L = lambda x: '%s_%s' % (name, x)

    sX, sW, sO, sR = 4, 8, 12, 16
    pX, pW, pO, pR = 20, 22, 24, 26
    s_rb, s_cb, s_wave, s_t0, s_t1, s_kx, s_kw, s_ldsX, s_ldsW, s_st = 28, 29, 30, 31, 32, 33, 34, 35, 36, 37
    s_wm, s_wn, s_tok0, s_col0 = 38, 39, 40, 41
    s_ex = 42
    s_slot = 46
    s_t2, s_t3, s_t4, s_t5 = 54, 55, 56, 57
    s_m4 = 58

    if mega:
        ST = False
        pX, pW, pO = MP[c['x'][0]], MP[c['w']], MP[c['o'][0]]
        if epi == 'resid':
            pR = MP[c['r'][0]]
        a.label(name)
        mstamp(a, 0)
    else:
        a.raw('.p2align 8')
        a.raw('.globl %s' % name)
        a.raw('.type %s,@function' % name)
        a.label(name)
        stamp(a, ST, 0)
        a('s_load_dwordx2 %s, s[0:1], %d' % (s(pX, 2), KA[c['x'][0]]))
        a('s_load_dwordx2 %s, s[0:1], %d' % (s(pW, 2), KA[c['w']]))
        a('s_load_dwordx2 %s, s[0:1], %d' % (s(pO, 2), KA[c['o'][0]]))
        if epi == 'resid':
            a('s_load_dwordx2 %s, s[0:1], %d' % (s(pR, 2), KA[c['r'][0]]))
        a('s_cmp_ge_u32 s2, 256')
        a('s_cbranch_scc1 %s' % L('end'))
    a('s_and_b32 %s, s2, 7' % s(s_t0))
    a('s_lshr_b32 %s, s2, 3' % s(s_t1))
    if c['map'] == 'p2':
        RBX = c['rb_per_xcd']
        a('s_and_b32 %s, %s, %d' % (s(s_t2), s(s_t1), RBX - 1))
        a('s_lshr_b32 %s, %s, %d' % (s(s_t3), s(s_t1), RBX.bit_length() - 1))
        a('s_lshr_b32 %s, %s, 1' % (s(s_rb), s(s_t0)))
        a('s_mul_i32 %s, %s, %d' % (s(s_rb), s(s_rb), RBX))
        a('s_add_u32 %s, %s, %s' % (s(s_rb), s(s_rb), s(s_t2)))
        a('s_and_b32 %s, %s, 1' % (s(s_cb), s(s_t0)))
        a('s_mul_i32 %s, %s, %d' % (s(s_cb), s(s_cb), c['cb_stride']))
        a('s_cmp_ge_u32 %s, %d' % (s(s_t3), c['cb_stride']))
        a('s_cbranch_scc1 %s' % L('end'))
        a('s_add_u32 %s, %s, %s' % (s(s_cb), s(s_cb), s(s_t3)))
        a('s_cmp_ge_u32 %s, %d' % (s(s_cb), c['NB']))
        a('s_cbranch_scc1 %s' % L('end'))
        rot_max = c['rot'][0] * (RBX - 1) + c['rot'][1] * (c['cb_stride'] - 1)
    else:
        a('s_mul_i32 %s, %s, 205' % (s(s_t2), s(s_t1)))
        a('s_lshr_b32 %s, %s, 10' % (s(s_t2), s(s_t2)))
        a('s_mul_i32 %s, %s, 5' % (s(s_t3), s(s_t2)))
        a('s_sub_u32 %s, %s, %s' % (s(s_t3), s(s_t1), s(s_t3)))
        a('s_lshr_b32 %s, %s, 1' % (s(s_t1), s(s_t0)))
        a('s_mul_i32 %s, %s, 11' % (s(s_rb), s(s_t1)))
        a('s_add_u32 %s, %s, 12' % (s(s_t4), s(s_rb)))
        a('s_lshr_b32 %s, %s, 1' % (s(s_t4), s(s_t4)))
        a('s_add_u32 %s, %s, 1' % (s(s_rb), s(s_rb)))
        a('s_lshr_b32 %s, %s, 1' % (s(s_rb), s(s_rb)))
        a('s_add_u32 %s, %s, %s' % (s(s_rb), s(s_rb), s(s_t2)))
        a('s_cmp_ge_u32 %s, %s' % (s(s_rb), s(s_t4)))
        a('s_cbranch_scc1 %s' % L('end'))
        a('s_and_b32 %s, %s, 1' % (s(s_cb), s(s_t0)))
        a('s_mul_i32 %s, %s, 5' % (s(s_cb), s(s_cb)))
        a('s_add_u32 %s, %s, %s' % (s(s_cb), s(s_cb), s(s_t3)))
        rot_max = c['rot'][0] * 5 + c['rot'][1] * 4
    if mega:
        a('s_mov_b32 %s, %s' % (s(s_wave), s(M_WAVE)))
    else:
        a('v_lshrrev_b32 v1, 6, v0')
        a('v_and_b32 v0, 63, v0')
        a('v_readfirstlane_b32 %s, v1' % s(s_wave))
    a('s_mul_i32 %s, %s, %d' % (s(s_tok0), s(s_rb), BM))
    a('s_mul_i32 %s, %s, %d' % (s(s_col0), s(s_cb), BN))
    a('s_cmp_ge_u32 %s, 4' % s(s_wave))
    a('s_cbranch_scc1 %s' % L('loader'))

    R = Regs(1, 256, 'v')
    vg, vi, vt0, vt1, vt2, vt3 = [R.alloc() for _ in range(6)]
    a('v_lshrrev_b32 %s, 4, v0' % v(vg))
    a('v_and_b32 %s, 15, v0' % v(vi))
    if WN == 1:
        a('s_mov_b32 %s, %s' % (s(s_wm), s(s_wave)))
        a('s_mov_b32 %s, 0' % s(s_wn))
    else:
        assert WN == 2
        a('s_lshr_b32 %s, %s, 1' % (s(s_wm), s(s_wave)))
        a('s_and_b32 %s, %s, 1' % (s(s_wn), s(s_wave)))
    vXa = [R.alloc() for _ in range(2)]
    vXs = [R.alloc() for _ in range(2)]
    a('s_mul_i32 %s, %s, %d' % (s(s_t0), s(s_wm), MT * 16 * 128))
    a('v_lshrrev_b32 %s, 1, %s' % (v(vt0), v(vi)))
    a('v_lshlrev_b32 %s, 7, %s' % (v(vt1), v(vi)))
    a('v_add_u32 %s, %s, %s' % (v(vt1), s(s_t0), v(vt1)))
    for ks in range(2):
        a('v_add_u32 %s, %d, %s' % (v(vt2), 4 * ks, v(vg)))
        a('v_xor_b32 %s, %s, %s' % (v(vt2), v(vt2), v(vt0)))
        a('v_lshl_add_u32 %s, %s, 4, %s' % (v(vXa[ks]), v(vt2), v(vt1)))
    vWa = [R.alloc() for _ in range(NT)]
    vWs = [R.alloc() for _ in range(NT)]
    a('v_lshrrev_b32 %s, 2, %s' % (v(vt0), v(vi)))
    a('v_and_b32 %s, 1, %s' % (v(vt1), v(vg)))
    a('v_lshl_add_u32 %s, %s, 2, %s' % (v(vt0), v(vt1), v(vt0)))
    a('v_lshrrev_b32 %s, 1, %s' % (v(vt1), v(vg)))
    a('v_lshl_add_u32 %s, %s, 4, %s' % (v(vt1), v(vt1), v(vt0)))
    a('v_mul_u32_u24 %s, %d, %s' % (v(vt1), rowW, v(vt1)))
    a('v_and_b32 %s, 1, %s' % (v(vt2), v(vi)))
    a('v_lshl_add_u32 %s, %s, 3, %s' % (v(vt1), v(vt2), v(vt1)))
    a('v_bfe_u32 %s, %s, 1, 1' % (v(vt2), v(vi)))
    a('v_lshl_add_u32 %s, %s, 4, %s' % (v(vt1), v(vt2), v(vt1)))
    a('v_add_u32 %s, %d, %s' % (v(vt1), XB, v(vt1)))
    if rowW == 256:
        a('v_lshlrev_b32 %s, 1, %s' % (v(vt0), v(vt0)))
    else:
        a('v_and_b32 %s, 6, %s' % (v(vt0), v(vt0)))
    for nt in range(NT):
        if LN:
            a('s_lshl_b32 %s, %s, 1' % (s(s_t0), s(s_wave)))
            a('s_add_u32 %s, %s, %d' % (s(s_t0), s(s_t0), nt))
            a('s_and_b32 %s, %s, 7' % (s(s_slot + nt), s(s_t0)))
        else:
            a('s_mul_i32 %s, %s, %d' % (s(s_t0), s(s_wn), NT))
            a('s_add_u32 %s, %s, %d' % (s(s_slot + nt), s(s_t0), nt))
        a('s_lshl_b32 %s, %s, 1' % (s(s_t0), s(s_slot + nt)))
        a('v_xor_b32 %s, %s, %s' % (v(vt2), s(s_t0), v(vt0)))
        a('v_lshl_add_u32 %s, %s, 4, %s' % (v(vWa[nt]), v(vt2), v(vt1)))
    a('s_waitcnt lgkmcnt(0)')
    build_srd(a, sO, pO, c['o'][1], c['obytes'])

    if epi == 'resid':
        build_srd(a, sR, pR, c['r'][1], 2048 * 1280)
        NCH = BM * 8 // 64 // 4
        vOut = [R.alloc() for _ in range(NCH)]
        vRes = [R.alloc(4, 4) for _ in range(NCH)]
        a('s_mul_i32 %s, %s, %d' % (s(s_t0), s(s_wave), NCH * 8))
        a('s_add_u32 %s, %s, %s' % (s(s_t0), s(s_t0), s(s_tok0)))
        a('v_lshrrev_b32 %s, 3, v0' % v(vt0))
        a('v_add_u32 %s, %s, %s' % (v(vt0), s(s_t0), v(vt0)))
        a('v_mul_u32_u24 %s, 1280, %s' % (v(vt0), v(vt0)))
        a('v_and_b32 %s, 7, v0' % v(vt1))
        a('v_lshl_add_u32 %s, %s, 4, %s' % (v(vt0), v(vt1), v(vt0)))
        a('s_lshl_b32 %s, %s, 1' % (s(s_t0), s(s_col0)))
        a('v_add_u32 %s, %s, %s' % (v(vOut[0]), s(s_t0), v(vt0)))
        for j in range(1, NCH):
            a('v_add_u32 %s, %d, %s' % (v(vOut[j]), j * 8 * 1280, v(vOut[0])))
        for j in range(NCH):
            a('buffer_load_dwordx4 %s, %s, %s, 0 offen%s' % (v(vRes[j], 4), v(vOut[j]), s(sR, 4), ' sc1' if (mega and c['r'][0] == 'ws') else ''))

    acc = [[R.alloc(4, 4) for nt in range(NT)] for mt in range(MT)]
    NS = PD + 1
    fX = [[R.alloc(4, 4) for mt in range(MT)] for _ in range(NS)]
    fW = [[R.alloc(4, 4) for nt in range(NT)] for _ in range(NS)]
    nreads = MT + 2 * NT

    def addr(u):
        base = (u % D) * SLOT
        out = []
        for ks in range(2):
            out.append('v_add_u32 %s, 0x%x, %s' % (v(vXs[ks]), base, v(vXa[ks])))
        for j in range(NT):
            out.append('v_add_u32 %s, 0x%x, %s' % (v(vWs[j]), base, v(vWa[j])))
        return out

    def reads(j):
        u, ks = j // 2, j % 2
        setn = j % NS
        out = addr(u) if ks == 0 else []
        if c.get('nocompute') or c.get('noreads'):
            return out
        for mt in range(MT):
            out.append('ds_read_b128 %s, %s offset:%d' % (v(fX[setn][mt], 4), v(vXs[ks]), mt * 2048))
        for nt in range(NT):
            for hf in range(2):
                off = (32 * ks + 8 * hf) * rowW
                out.append('ds_read_b64_tr_b16 %s, %s offset:%d' % (v(fW[setn][nt] + 2 * hf, 2), v(vWs[nt]), off))
        return out

    if LN:
        assert WN == 1 and NT == 8
        vones = R.alloc(4, 4)
        for r in range(4):
            a('v_mov_b32 %s, 0x3f803f80' % v(vones + r))
        accC = [R.alloc(4, 4) for _ in range(2)]
        accS = [R.alloc(4, 4) for _ in range(MT)]
        accG = [R.alloc(4, 4) for _ in range(MT)]

    def mfmas(j):
        setn = j % NS
        first = j == 0
        out = []
        if (c.get('nocompute') or c.get('nomfma')) and not first:
            return out
        M = 'v_mfma_f32_16x16x32_bf16 %s, %s, %s, %s'
        for nt in range(NT):
            for mt in range(MT):
                cc = '0' if first else v(acc[mt][nt], 4)
                out.append(M % (v(acc[mt][nt], 4), v(fW[setn][nt], 4), v(fX[setn][mt], 4), cc))
            if LN:
                if nt < 2:
                    cc = '0' if first else v(accC[nt], 4)
                    out.append(M % (v(accC[nt], 4), v(fW[setn][nt], 4), v(vones, 4), cc))
                elif nt < 2 + MT:
                    mt = nt - 2
                    cc = '0' if first else v(accS[mt], 4)
                    out.append(M % (v(accS[mt], 4), v(vones, 4), v(fX[setn][mt], 4), cc))
                elif nt < 2 + 2 * MT:
                    mt = nt - 2 - MT
                    cc = '0' if first else v(accG[mt], 4)
                    out.append(M % (v(accG[mt], 4), v(fX[setn][mt], 4), v(fX[setn][mt], 4), cc))
        return out

    J = 2 * S
    dep = c.get('dep') if mega else None
    if dep:
        table, rowsz, ncol, nrow_max = dep
        mg = (1 << 20) // rowsz + 1
        a('s_mul_i32 %s, %s, %d' % (s(s_t0), s(s_tok0), mg))
        a('s_lshr_b32 %s, %s, 20' % (s(s_t0), s(s_t0)))
        a('s_add_u32 %s, %s, %d' % (s(s_t1), s(s_tok0), BM - 1))
        a('s_mul_i32 %s, %s, %d' % (s(s_t1), s(s_t1), mg))
        a('s_lshr_b32 %s, %s, 20' % (s(s_t1), s(s_t1)))
        a('s_min_u32 %s, %s, %d' % (s(s_t1), s(s_t1), nrow_max - 1))
        for tk in range(0, 2200):
            assert (tk * mg) >> 20 == tk // rowsz
        mega_wait(a, table, s_t0, s_t1, ncol, [vt0, vt1, vt2], [s_t4, s_ex], L('dep'))
        a('s_barrier')
    if mega:
        mstamp(a, 1)
    a('s_barrier')
    if mega:
        mstamp(a, 2)
    stamp(a, ST, 1)
    for j in range(min(PD, J)):
        assert j < 2 * GRP
        for x in reads(j):
            a(x)
    for j in range(J):
        younger = min(J - 1, j + PD - 1) - j
        a('s_waitcnt lgkmcnt(%d)' % min(15, younger * nreads))
        M = mfmas(j)
        jn = j + PD
        Rd = reads(jn) if jn < J else []
        need_bar = jn < J and jn % (2 * GRP) == 0
        k = 0
        if need_bar:
            pre = len(M) // 4
            for x in M[:pre]:
                a(x)
            k = pre
            a('s_waitcnt lgkmcnt(0)')
            a('s_barrier')
        rest = M[k:]
        span = max(1, (len(rest) * 3) // 4)
        ri = 0
        for i, x in enumerate(rest):
            a(x)
            want = (len(Rd) * (i + 1) + span - 1) // span if i < span else len(Rd)
            while ri < min(want, len(Rd)):
                a(Rd[ri])
                ri += 1
        while ri < len(Rd):
            a(Rd[ri])
            ri += 1

    stamp(a, ST, 2)
    if mega:
        mstamp(a, 3)
    if LN:
        vmean = [R.alloc(2) for _ in range(MT)]
        vrinv = [R.alloc(2) for _ in range(MT)]
        vcs = [R.alloc(4, 4) for _ in range(NT)]
        T0, T1 = fW[0][0], fW[0][1]
        for j in range(2):
            a('s_lshl_b32 %s, %s, 6' % (s(s_t0), s(s_slot + j)))
            a('v_lshl_add_u32 %s, %s, 4, %s' % (v(vt0), v(vg), s(s_t0)))
            a('v_add_u32 %s, 0x%x, %s' % (v(vt0), SCOL, v(vt0)))
            a('ds_write_b128 %s, %s' % (v(vt0), v(accC[j], 4)))
        a('v_and_b32 %s, 3, %s' % (v(vt0), v(vi)))
        a('v_lshrrev_b32 %s, 2, %s' % (v(vt1), v(vi)))
        a('v_cmp_eq_u32 %s, 1, %s' % (s(s_ex, 2), v(vt0)))
        a('v_cmp_eq_u32 %s, 2, %s' % (s(s_ex + 2, 2), v(vt0)))
        a('v_cmp_eq_u32 vcc, 3, %s' % v(vt0))
        a('v_cmp_eq_u32 %s, %s, %s' % (s(s_m4, 2), v(vt1), v(vg)))
        a('s_mov_b32 %s, 0x3acccccd' % s(s_t1))
        a('v_mov_b32 %s, 0' % v(vt2))
        a('s_waitcnt lgkmcnt(0)')
        a('s_barrier')
        for nt in range(NT):
            a('s_lshl_b32 %s, %s, 6' % (s(s_t0), s(s_slot + nt)))
            a('v_lshl_add_u32 %s, %s, 4, %s' % (v(vt0), v(vg), s(s_t0)))
            a('v_add_u32 %s, 0x%x, %s' % (v(vt0), SCOL, v(vt0)))
            a('ds_read_b128 %s, %s' % (v(vcs[nt], 4), v(vt0)))
        for mt in range(MT):
            Gm = accG[mt]
            a('v_cndmask_b32 %s, %s, %s, %s' % (v(T1), v(Gm), v(Gm + 1), s(s_ex, 2)))
            a('v_cndmask_b32 %s, %s, %s, %s' % (v(T1), v(T1), v(Gm + 2), s(s_ex + 2, 2)))
            a('v_cndmask_b32 %s, %s, %s, vcc' % (v(T1), v(T1), v(Gm + 3)))
            a('v_cndmask_b32 %s, %s, %s, %s' % (v(T1), v(vt2), v(T1), s(s_m4, 2)))
            a('v_mov_b32 %s, %s' % (v(T0), v(T1)))
            a('v_permlane32_swap_b32 %s, %s' % (v(T1), v(T0)))
            a('v_add_f32 %s, %s, %s' % (v(T1), v(T1), v(T0)))
            a('v_mov_b32 %s, %s' % (v(T0), v(T1)))
            a('v_permlane16_swap_b32 %s, %s' % (v(T1), v(T0)))
            a('v_add_f32 %s, %s, %s' % (v(T1), v(T1), v(T0)))
            a('v_mul_f32 %s, %s, %s' % (v(T0), s(s_t1), v(accS[mt])))
            a('v_mul_f32 %s, %s, %s' % (v(T1), s(s_t1), v(T1)))
            a('v_fma_f32 %s, -%s, %s, %s' % (v(T1), v(T0), v(T0), v(T1)))
            a('v_max_f32 %s, 0, %s' % (v(T1), v(T1)))
            bf16_round(a, vmean[mt], T0)
            a('v_xor_b32 %s, 0x80000000, %s' % (v(vmean[mt]), v(vmean[mt])))
            bf16_round(a, T1, T1)
            a('v_add_f32 %s, 0x3727c5ac, %s' % (v(T1), v(T1)))
            bf16_round(a, T1, T1)
            a('v_sqrt_f32 %s, %s' % (v(T1), v(T1)))
            bf16_round(a, T1, T1)
            a('v_rcp_f32 %s, %s' % (v(vrinv[mt]), v(T1)))
        a('s_waitcnt lgkmcnt(0)')
        stamp(a, ST, 4)

    def ln_apply(A, mt, nt, relu):
        for h in range(2):
            a('v_pk_fma_f32 %s, %s, %s, %s op_sel_hi:[1,0,1]' % (v(A + 2 * h, 2), v(vcs[nt] + 2 * h, 2), v(vmean[mt], 2), v(A + 2 * h, 2)))
        for h in range(2):
            a('v_pk_mul_f32 %s, %s, %s op_sel_hi:[1,0]' % (v(A + 2 * h, 2), v(A + 2 * h, 2), v(vrinv[mt], 2)))
        a('v_cvt_pk_bf16_f32 %s, %s, %s' % (v(A), v(A), v(A + 1)))
        a('v_cvt_pk_bf16_f32 %s, %s, %s' % (v(A + 1), v(A + 2), v(A + 3)))
        if relu:
            a('v_pk_max_i16 %s, %s, 0' % (v(A), v(A)))
            a('v_pk_max_i16 %s, %s, 0' % (v(A + 1), v(A + 1)))

    cbuf = [fX[0][0], fX[0][1], fX[1][0], fX[1][1]] + [fW[1][j] for j in range(NT)] + [fW[0][j] for j in range(NT)]

    if epi == 'qkv':
        assert 4 * 10240 <= STG_ROOM
        s_hd0, s_r0, s_hf0, s_hfe, s_rL, s_wb, s_tw = s_kx, s_kw, s_ldsX, s_ldsW, s_st, s_t4, s_t5
        a('s_lshl_b32 %s, %s, 5' % (s(s_t0), s(s_cb)))
        a('s_mul_i32 %s, %s, 205' % (s(s_hd0), s(s_t0)))
        a('s_lshr_b32 %s, %s, 10' % (s(s_hd0), s(s_hd0)))
        a('s_mul_i32 %s, %s, 5' % (s(s_t1), s(s_hd0)))
        a('s_sub_u32 %s, %s, %s' % (s(s_r0), s(s_t0), s(s_t1)))
        a('s_cmp_lg_u32 %s, 0' % s(s_r0))
        a('s_addc_u32 %s, %s, 0' % (s(s_hf0), s(s_hd0)))
        a('s_add_u32 %s, %s, 32' % (s(s_t0), s(s_t0)))
        a('s_mul_i32 %s, %s, 205' % (s(s_hfe), s(s_t0)))
        a('s_lshr_b32 %s, %s, 10' % (s(s_hfe), s(s_hfe)))
        a('s_mul_i32 %s, %s, 5' % (s(s_t1), s(s_hfe)))
        a('s_sub_u32 %s, %s, %s' % (s(s_rL), s(s_t0), s(s_t1)))
        a('s_mul_i32 %s, %s, 10240' % (s(s_wb), s(s_wave)))
        a('s_add_u32 %s, %s, 0x%x' % (s(s_wb), s(s_wb), STG))
        a('s_lshl_b32 %s, %s, 5' % (s(s_tw), s(s_wave)))
        a('s_add_u32 %s, %s, %s' % (s(s_tw), s(s_tw), s(s_tok0)))
        a('s_mul_i32 %s, %s, 40' % (s(s_tw), s(s_tw)))
        vtok = R.alloc()
        vo = vWa
        a('v_mul_u32_u24 %s, 40, %s' % (v(vtok), v(vi)))
        a('v_add_u32 %s, %s, %s' % (v(vtok), s(s_wb), v(vtok)))
        for nt in range(NT):
            a('s_lshl_b32 %s, %s, 2' % (s(s_t0), s(s_slot + nt)))
            a('s_lshl_b32 %s, %s, 5' % (s(s_t1), s(s_cb)))
            a('s_add_u32 %s, %s, %s' % (s(s_t0), s(s_t0), s(s_t1)))
            a('v_add_u32 %s, %s, %s' % (v(vt0), s(s_t0), v(vg)))
            a('v_mul_u32_u24 %s, 205, %s' % (v(vt1), v(vt0)))
            a('v_lshrrev_b32 %s, 10, %s' % (v(vt1), v(vt1)))
            a('v_mul_u32_u24 %s, 5, %s' % (v(vt2), v(vt1)))
            a('v_sub_u32 %s, %s, %s' % (v(vt2), v(vt0), v(vt2)))
            a('v_subrev_u32 %s, %s, %s' % (v(vt1), s(s_hd0), v(vt1)))
            a('v_mul_u32_u24 %s, 1280, %s' % (v(vt1), v(vt1)))
            a('v_lshl_add_u32 %s, %s, 3, %s' % (v(vt1), v(vt2), v(vt1)))
            a('v_add_u32 %s, %s, %s' % (v(vo[nt]), v(vt1), v(vtok)))
        for nt in range(NT):
            for mt in range(MT):
                A = acc[mt][nt]
                ln_apply(A, mt, nt, False)
                a('ds_write_b64 %s, %s offset:%d' % (v(vo[nt]), v(A, 2), mt * 640))
        for q in range(512):
            assert (q * 205) >> 14 == q // 80
        a('s_sub_u32 %s, %s, %s' % (s(s_t0), s(s_hfe), s(s_hf0)))
        a('s_mul_i32 %s, %s, 80' % (s(s_t0), s(s_t0)))
        a('s_sub_u32 %s, %s, %s' % (s(s_t1), s(s_hf0), s(s_hd0)))
        a('s_mul_i32 %s, %s, 1280' % (s(s_t1), s(s_t1)))
        a('s_add_u32 %s, %s, %s' % (s(s_t1), s(s_t1), s(s_wb)))
        a('s_mul_i32 %s, %s, 81920' % (s(s_t2), s(s_hf0)))
        a('s_add_u32 %s, %s, %s' % (s(s_t2), s(s_t2), s(s_tw)))
        vga = vWs
        vla = vo
        for it in range(8):
            a('v_add_u32 %s, %d, v0' % (v(vt0), 64 * it))
            a('v_mul_u32_u24 %s, 205, %s' % (v(vt1), v(vt0)))
            a('v_lshrrev_b32 %s, 14, %s' % (v(vt1), v(vt1)))
            a('v_mul_u32_u24 %s, 80, %s' % (v(vt2), v(vt1)))
            a('v_sub_u32 %s, %s, %s' % (v(vt2), v(vt0), v(vt2)))
            a('v_lshlrev_b32 %s, 4, %s' % (v(vt2), v(vt2)))
            a('v_mul_u32_u24 %s, 81920, %s' % (v(vt3), v(vt1)))
            a('v_add3_u32 %s, %s, %s, %s' % (v(vga[it]), v(vt3), v(vt2), s(s_t2)))
        a('s_waitcnt lgkmcnt(0)')
        stamp(a, ST, 5)
        for it in range(8):
            a('v_lshl_add_u32 %s, v0, 4, %s' % (v(vt0), s(s_t1)))
            a('ds_read_b128 %s, %s offset:%d' % (v(cbuf[it], 4), v(vt0), it * 1024))
        for it in range(8):
            a('s_waitcnt lgkmcnt(%d)' % (7 - it))
            if it >= 6:
                a('v_add_u32 %s, %d, v0' % (v(vt0), 64 * it))
                a('v_cmp_gt_u32 vcc, %s, %s' % (s(s_t0), v(vt0)))
                a('s_and_saveexec_b64 %s, vcc' % s(s_ex, 2))
                a('s_cbranch_execz %s' % L('fs%d' % it))
            a('buffer_store_dwordx4 %s, %s, %s, 0 offen%s' % (v(cbuf[it], 4), v(vga[it]), s(sO, 4), stf))
            if it >= 6:
                a.label(L('fs%d' % it))
                a('s_mov_b64 exec, %s' % s(s_ex, 2))
        for which in range(2):
            if which == 0:
                a('s_cmp_eq_u32 %s, 0' % s(s_r0))
                a('s_cbranch_scc1 %s' % L('pd0'))
                a('s_sub_u32 %s, 5, %s' % (s(s_t0), s(s_r0)))
                a('s_lshl_b32 %s, %s, 3' % (s(s_t1), s(s_r0)))
                a('s_mul_i32 %s, %s, 81920' % (s(s_t2), s(s_hd0)))
                a('s_add_u32 %s, %s, %s' % (s(s_t2), s(s_t2), s(s_t1)))
                a('s_add_u32 %s, %s, %s' % (s(s_t1), s(s_t1), s(s_wb)))
            else:
                a('s_cmp_eq_u32 %s, 0' % s(s_rL))
                a('s_cbranch_scc1 %s' % L('pd1'))
                a('s_mov_b32 %s, %s' % (s(s_t0), s(s_rL)))
                a('s_sub_u32 %s, %s, %s' % (s(s_t1), s(s_hfe), s(s_hd0)))
                a('s_mul_i32 %s, %s, 1280' % (s(s_t1), s(s_t1)))
                a('s_add_u32 %s, %s, %s' % (s(s_t1), s(s_t1), s(s_wb)))
                a('s_mul_i32 %s, %s, 81920' % (s(s_t2), s(s_hfe)))
            a('s_add_u32 %s, %s, %s' % (s(s_t2), s(s_t2), s(s_tw)))
            for it in range(2):
                a('v_and_b32 %s, 31, v0' % v(vt0))
                a('v_mul_u32_u24 %s, 40, %s' % (v(vt0), v(vt0)))
                a('v_lshrrev_b32 %s, 5, v0' % v(vt1))
                a('v_add_u32 %s, %d, %s' % (v(vt1), 2 * it, v(vt1)))
                a('v_lshl_add_u32 %s, %s, 3, %s' % (v(vt0), v(vt1), v(vt0)))
                a('v_add_u32 %s, %s, %s' % (v(vt2), s(s_t1), v(vt0)))
                a('v_add_u32 %s, %s, %s' % (v(vt3), s(s_t2), v(vt0)))
                a('v_cmp_gt_u32 vcc, %s, %s' % (s(s_t0), v(vt1)))
                a('s_and_saveexec_b64 %s, vcc' % s(s_ex, 2))
                a('s_cbranch_execz %s' % L('ps%d%d' % (which, it)))
                a('ds_read_b64 %s, %s' % (v(vga[0 + 2 * it], 2) if False else v(cbuf[8 + 2 * which + it], 2), v(vt2)))
                a('s_waitcnt lgkmcnt(0)')
                a('buffer_store_dwordx2 %s, %s, %s, 0 offen%s' % (v(cbuf[8 + 2 * which + it], 2), v(vt3), s(sO, 4), stf))
                a.label(L('ps%d%d' % (which, it)))
                a('s_mov_b64 exec, %s' % s(s_ex, 2))
            a.label(L('pd%d' % which))
    elif epi == 'relu':
        RS = 272
        assert 4 * 32 * RS <= STG_ROOM
        s_wb = s_kx
        a('s_mul_i32 %s, %s, %d' % (s(s_wb), s(s_wave), 32 * RS))
        a('s_add_u32 %s, %s, 0x%x' % (s(s_wb), s(s_wb), STG))
        vw = R.alloc()
        a('v_mul_u32_u24 %s, %d, %s' % (v(vw), RS, v(vi)))
        a('v_lshl_add_u32 %s, %s, 3, %s' % (v(vw), v(vg), v(vw)))
        a('v_add_u32 %s, %s, %s' % (v(vw), s(s_wb), v(vw)))
        vws = vWa
        for nt in range(NT):
            a('s_lshl_b32 %s, %s, 5' % (s(s_t0), s(s_slot + nt)))
            a('v_add_u32 %s, %s, %s' % (v(vws[nt]), s(s_t0), v(vw)))
        for nt in range(NT):
            for mt in range(MT):
                A = acc[mt][nt]
                ln_apply(A, mt, nt, True)
                a('ds_write_b64 %s, %s offset:%d' % (v(vws[nt]), v(A, 2), mt * 16 * RS))
        vr, vgo = R.alloc(), R.alloc()
        a('v_mul_u32_u24 %s, %d, %s' % (v(vr), RS, v(vg)))
        a('v_lshl_add_u32 %s, %s, 4, %s' % (v(vr), v(vi), v(vr)))
        a('v_add_u32 %s, %s, %s' % (v(vr), s(s_wb), v(vr)))
        a('s_lshl_b32 %s, %s, 5' % (s(s_t0), s(s_wave)))
        a('s_add_u32 %s, %s, %s' % (s(s_t0), s(s_t0), s(s_tok0)))
        a('v_add_u32 %s, %s, %s' % (v(vgo), s(s_t0), v(vg)))
        a('v_mul_u32_u24 %s, %d, %s' % (v(vgo), N * 2, v(vgo)))
        a('v_lshl_add_u32 %s, %s, 4, %s' % (v(vgo), v(vi), v(vgo)))
        a('s_lshl_b32 %s, %s, 1' % (s(s_t0), s(s_col0)))
        a('v_add_u32 %s, %s, %s' % (v(vgo), s(s_t0), v(vgo)))
        nvalid_chunks = (N - (c['NB'] - 1) * BN) // 8
        a('s_cmp_eq_u32 %s, %d' % (s(s_cb), c['NB'] - 1))
        a('s_cselect_b32 %s, %d, 16' % (s(s_t1), nvalid_chunks))
        a('v_cmp_gt_u32 vcc, %s, %s' % (s(s_t1), v(vi)))
        a('s_waitcnt lgkmcnt(0)')
        stamp(a, ST, 5)
        for it in range(8):
            a('ds_read_b128 %s, %s offset:%d' % (v(cbuf[it], 4), v(vr), it * 4 * RS))
        a('s_and_saveexec_b64 %s, vcc' % s(s_ex, 2))
        for it in range(8):
            a('s_mov_b32 %s, %d' % (s(s_t0), it * 4 * N * 2))
            a('s_waitcnt lgkmcnt(%d)' % (7 - it))
            a('buffer_store_dwordx4 %s, %s, %s, %s offen%s' % (v(cbuf[it], 4), v(vgo), s(sO, 4), s(s_t0), stf))
        a('s_mov_b64 exec, %s' % s(s_ex, 2))
    elif epi == 'resid':
        RS = 144
        assert BM * RS <= STG_ROOM
        vw = R.alloc()
        a('s_mul_i32 %s, %s, %d' % (s(s_t0), s(s_wm), MT * 16 * RS))
        a('s_mul_i32 %s, %s, %d' % (s(s_t1), s(s_wn), NT * 32))
        a('s_add_u32 %s, %s, %s' % (s(s_t0), s(s_t0), s(s_t1)))
        a('s_add_u32 %s, %s, 0x%x' % (s(s_t0), s(s_t0), STG))
        a('v_mul_u32_u24 %s, %d, %s' % (v(vw), RS, v(vi)))
        a('v_lshl_add_u32 %s, %s, 3, %s' % (v(vw), v(vg), v(vw)))
        a('v_add_u32 %s, %s, %s' % (v(vw), s(s_t0), v(vw)))
        for nt in range(NT):
            for mt in range(MT):
                A = acc[mt][nt]
                a('v_cvt_pk_bf16_f32 %s, %s, %s' % (v(A), v(A), v(A + 1)))
                a('v_cvt_pk_bf16_f32 %s, %s, %s' % (v(A + 1), v(A + 2), v(A + 3)))
                a('ds_write_b64 %s, %s offset:%d' % (v(vw), v(A, 2), mt * 16 * RS + nt * 32))
        vr = R.alloc()
        a('s_mul_i32 %s, %s, %d' % (s(s_t0), s(s_wave), NCH * 8 * RS))
        a('s_add_u32 %s, %s, 0x%x' % (s(s_t0), s(s_t0), STG))
        a('v_lshrrev_b32 %s, 3, v0' % v(vr))
        a('v_mul_u32_u24 %s, %d, %s' % (v(vr), RS, v(vr)))
        a('v_and_b32 %s, 7, v0' % v(vt0))
        a('v_lshl_add_u32 %s, %s, 4, %s' % (v(vr), v(vt0), v(vr)))
        a('v_add_u32 %s, %s, %s' % (v(vr), s(s_t0), v(vr)))
        a('s_mov_b32 %s, 0xffff0000' % s(s_t0))
        a('s_waitcnt lgkmcnt(0)')
        a('s_barrier')
        for j in range(NCH):
            a('ds_read_b128 %s, %s offset:%d' % (v(cbuf[j], 4), v(vr), j * 8 * RS))
        a('s_waitcnt vmcnt(0)')
        for j in range(NCH):
            a('s_waitcnt lgkmcnt(%d)' % (NCH - 1 - j))
            Cb, Rr = cbuf[j], vRes[j]
            for h in range(4):
                a('v_lshlrev_b32 %s, 16, %s' % (v(vt0), v(Cb + h)))
                a('v_and_b32 %s, %s, %s' % (v(vt1), s(s_t0), v(Cb + h)))
                a('v_lshlrev_b32 %s, 16, %s' % (v(vt2), v(Rr + h)))
                a('v_and_b32 %s, %s, %s' % (v(vt3), s(s_t0), v(Rr + h)))
                a('v_add_f32 %s, %s, %s' % (v(vt0), v(vt0), v(vt2)))
                a('v_add_f32 %s, %s, %s' % (v(vt1), v(vt1), v(vt3)))
                a('v_cvt_pk_bf16_f32 %s, %s, %s' % (v(Cb + h), v(vt0), v(vt1)))
            a('buffer_store_dwordx4 %s, %s, %s, 0 offen%s' % (v(Cb, 4), v(vOut[j]), s(sO, 4), stf if c['o'][0] == 'ws' else ''))
    if mega:
        mstamp(a, 4)
        a('s_waitcnt vmcnt(0)')
        a('s_barrier')
        if c.get('sig'):
            mega_signal(a, c['sig'], s_rb, s_cb, vt0, s_t0, L('sig'))
        mflush(a, c['kidx'], L('mfl'))
        a('s_branch %s' % L('end'))
    else:
        stamp_flush(a, ST, c.get('kidx', 0), 3, s_wave, L('sdone'))
        a('s_endpgm')
    vmax = 254 if ST else R.hi

    a.label(L('loader'))
    R = Regs(1, 256, 'v')
    vt0, vt1, vt2, vt3, vl3, vl7 = [R.alloc() for _ in range(6)]
    s_lw = s_wave
    a('s_sub_u32 %s, %s, 4' % (s(s_lw), s(s_wave)))
    a('v_lshrrev_b32 %s, 3, v0' % v(vl3))
    a('v_and_b32 %s, 7, v0' % v(vl7))
    vX = [R.alloc() for _ in range(nX)]
    vXj = [R.alloc() for _ in range(nX)]
    vXo = [R.alloc() for _ in range(nX)]
    vW = [R.alloc() for _ in range(nW)]
    a('s_mul_i32 %s, %s, %d' % (s(s_t0), s(s_lw), BM // 4))
    for j in range(nX):
        a('s_add_u32 %s, %s, %d' % (s(s_t1), s(s_t0), 8 * j))
        a('v_add_u32 %s, %s, %s' % (v(vt0), s(s_t1), v(vl3)))
        a('v_bfe_u32 %s, %s, 1, 3' % (v(vt1), v(vt0)))
        a('v_xor_b32 %s, %s, %s' % (v(vt1), v(vt1), v(vl7)))
        a('v_add_u32 %s, %s, %s' % (v(vt0), s(s_tok0), v(vt0)))
        if pairX:
            a('v_mul_u32_u24 %s, 80, %s' % (v(vX[j]), v(vt0)))
            a('v_mov_b32 %s, %s' % (v(vXj[j]), v(vt1)))
        else:
            a('v_mul_u32_u24 %s, %d, %s' % (v(vt0), strideX, v(vt0)))
            a('v_lshl_add_u32 %s, %s, 4, %s' % (v(vX[j]), v(vt1), v(vt0)))
    lg = G.bit_length() - 1
    a('s_lshl_b32 %s, %s, 4' % (s(s_t0), s(s_lw)))
    a('s_lshl_b32 %s, %s, 1' % (s(s_t1), s(s_col0)))
    for j in range(nW):
        a('v_add_u32 %s, %d, v0' % (v(vt0), 64 * j))
        a('v_lshrrev_b32 %s, %d, %s' % (v(vt1), lg, v(vt0)))
        a('v_and_b32 %s, %d, %s' % (v(vt0), G - 1, v(vt0)))
        if rowW == 256:
            a('v_and_b32 %s, 7, %s' % (v(vt2), v(vt1)))
            a('v_lshlrev_b32 %s, 1, %s' % (v(vt2), v(vt2)))
        else:
            a('v_and_b32 %s, 6, %s' % (v(vt2), v(vt1)))
        a('v_xor_b32 %s, %s, %s' % (v(vt0), v(vt0), v(vt2)))
        a('v_and_b32 %s, 3, %s' % (v(vt2), v(vt1)))
        a('v_bfe_u32 %s, %s, 3, 1' % (v(vt3), v(vt1)))
        a('v_lshl_add_u32 %s, %s, 2, %s' % (v(vt2), v(vt3), v(vt2)))
        a('v_bfe_u32 %s, %s, 2, 1' % (v(vt3), v(vt1)))
        a('v_lshl_add_u32 %s, %s, 3, %s' % (v(vt2), v(vt3), v(vt2)))
        a('v_add_u32 %s, %s, %s' % (v(vt2), s(s_t0), v(vt2)))
        a('v_mul_u32_u24 %s, %d, %s' % (v(vt2), strideW, v(vt2)))
        a('v_lshl_add_u32 %s, %s, 4, %s' % (v(vt2), v(vt0), v(vt2)))
        a('v_add_u32 %s, %s, %s' % (v(vW[j]), s(s_t1), v(vt2)))
    a('s_mul_i32 %s, %s, %d' % (s(s_ldsX), s(s_lw), (BM // 4) * 128))
    a('s_mul_i32 %s, %s, %d' % (s(s_ldsW), s(s_lw), 16 * rowW))
    ra, rc = c['rot']
    a('s_mul_i32 %s, %s, %d' % (s(s_t2), s(s_t2), ra))
    a('s_mul_i32 %s, %s, %d' % (s(s_t3), s(s_t3), rc))
    a('s_add_u32 %s, %s, %s' % (s(s_st), s(s_t2), s(s_t3)))
    for _ in range(rot_max // S):
        a('s_cmp_ge_u32 %s, %d' % (s(s_st), S))
        a('s_cselect_b32 %s, %d, 0' % (s(s_t1), S))
        a('s_sub_u32 %s, %s, %s' % (s(s_st), s(s_st), s(s_t1)))
    a('s_lshl_b32 %s, %s, 7' % (s(s_kx), s(s_st)))
    a('s_mul_i32 %s, %s, %d' % (s(s_kw), s(s_st), 64 * strideW))
    a('s_waitcnt lgkmcnt(0)')
    build_srd(a, sX, pX, c['x'][1], c.get('xbytes', 2048 * strideX))
    build_srd(a, sW, pW, 0, K * strideW)

    ops = []
    s_kx2 = s_t4

    def issueW(st):
        base = (st % D) * SLOT
        for j in range(nW):
            a('s_add_u32 m0, %s, 0x%x' % (s(s_ldsW), base + XB + j * 1024))
            a('buffer_load_dwordx4 %s, %s, %s offen lds' % (v(vW[j]), s(sW, 4), s(s_kw)))
            ops.append(st)
        a('s_add_u32 %s, %s, %d' % (s(s_kw), s(s_kw), 64 * strideW))
        a('s_cmp_eq_u32 %s, %d' % (s(s_kw), S * 64 * strideW))
        a('s_cselect_b32 %s, 0, %s' % (s(s_kw), s(s_kw)))

    def issueX(st):
        base = (st % D) * SLOT
        for j in range(nX):
            if pairX:
                a('s_lshr_b32 %s, %s, 4' % (s(s_t0), s(s_kx)))
                a('v_add_u32 %s, %s, %s' % (v(vt0), s(s_t0), v(vXj[j])))
                a('v_mul_u32_u24 %s, 205, %s' % (v(vt1), v(vt0)))
                a('v_lshrrev_b32 %s, 10, %s' % (v(vt1), v(vt1)))
                a('v_mul_u32_u24 %s, 5, %s' % (v(vt2), v(vt1)))
                a('v_sub_u32 %s, %s, %s' % (v(vt0), v(vt0), v(vt2)))
                a('v_mul_u32_u24 %s, 163840, %s' % (v(vt1), v(vt1)))
                a('v_lshl_add_u32 %s, %s, 4, %s' % (v(vt1), v(vt0), v(vt1)))
                a('v_add_u32 %s, %s, %s' % (v(vXo[j]), v(vt1), v(vX[j])))
                a('s_add_u32 m0, %s, 0x%x' % (s(s_ldsX), base + j * 1024))
                a('buffer_load_dwordx4 %s, %s, 0 offen lds%s' % (v(vXo[j]), s(sX, 4), ldf))
            else:
                a('s_add_u32 m0, %s, 0x%x' % (s(s_ldsX), base + j * 1024))
                a('buffer_load_dwordx4 %s, %s, %s offen lds%s' % (v(vX[j]), s(sX, 4), s(s_kx), ldf))
            ops.append(st)
        a('s_add_u32 %s, %s, 128' % (s(s_kx), s(s_kx)))
        a('s_cmp_eq_u32 %s, %d' % (s(s_kx), S * 128))
        a('s_cselect_b32 %s, 0, %s' % (s(s_kx), s(s_kx)))

    def issue(st):
        issueW(st)
        issueX(st)

    def wait_stage(last_needed):
        n = 0
        for tag in reversed(ops):
            if tag <= last_needed:
                break
            n += 1
        a('s_waitcnt vmcnt(%d)' % min(63, n))

    issued = 0
    npro = max(GRP, min(D - GRP, S, c.get('pro', 3)))
    if dep:
        for u in range(npro):
            issueW(u)
        a('s_barrier')
        for u in range(npro):
            issueX(u)
        issued = npro
    else:
        for _ in range(npro):
            issue(issued)
            issued += 1
    for g in range(NG):
        last_needed = min(S, (g + 1) * GRP) - 1
        while issued <= last_needed:
            issue(issued)
            issued += 1
        wait_stage(last_needed)
        a('s_barrier')
        n = 0
        while issued < S and issued < (g + DG) * GRP and n < 2 * GRP:
            issue(issued)
            issued += 1
            n += 1
    if LN:
        a('s_barrier')
    for wn in c.get('pfw', ()):
        vtid = R.alloc()
        a('v_lshl_add_u32 %s, %s, 6, v0' % (v(vtid), s(s_lw)))
        if mega:
            weight_prefetch(a, wn, vtid, 256, [vt0, vt1, vt2], vt3, sO, MP[wn], [s_t0, s_t1, s_t2], preloaded=True)
        else:
            weight_prefetch(a, wn, vtid, 256, [vt0, vt1, vt2], vt3, sO, pO, [s_t0, s_t1, s_t2])
    if mega:
        if epi == 'resid':
            a('s_barrier')
        a('s_barrier')
        a.label(L('end'))
    else:
        a.label(L('end'))
        a('s_endpgm')
    vmax = max(vmax, R.hi)
    return dict(name=name, vgpr=vmax, sgpr=90 if ST else 60, lds=lds_total, block=512, grid=256)


CFG_QKV = dict(name='qkv_kernel', kidx=0, BM=128, BN=128, K=640, N=1920, WM=4, WN=1, D=4, LN=True, epi='qkv',
               x=('x', 0), w='wqkv', o=('ws', WS_QKV), obytes=QKV_BYTES, NB=15, map='p2', rb_per_xcd=4, cb_stride=8, rot=(3, 1), pfw=('wo',), sig='qkv')
CFG_WO = dict(name='wo_kernel', kidx=2, BM=96, BN=64, K=640, N=640, WM=2, WN=2, D=8, GRP=2, PD=3, pro=4, epi='resid', pairX=True, xbytes=16 * 163840,
              x=('ws', WS_O), w='wo', o=('ws', WS_H), obytes=2048 * 1280, r=('x', 0), map='22x10', rot=(2, 2), dep=('attn', 128, 16, 16), sig='wo')
CFG_W1 = dict(name='w1_kernel', kidx=3, BM=128, BN=128, K=640, N=1728, WM=4, WN=1, D=4, LN=True, epi='relu',
              x=('ws', WS_H), w='w1', o=('ws', WS_H1), obytes=2048 * 3456, NB=14, map='p2', rb_per_xcd=4, cb_stride=7, rot=(3, 1), pfw=('w2',), dep=('wo', 96, 10, 22), sig='w1')
CFG_W2 = dict(name='w2_kernel', kidx=4, BM=96, BN=64, K=1728, N=640, WM=2, WN=2, D=8, GRP=2, PD=3, pro=4, epi='resid',
              x=('ws', WS_H1), w='w2', o=('out', 0), obytes=2048 * 1280, r=('ws', WS_H), map='22x10', rot=(4, 5), dep=('w1', 128, 14, 16))
```

```python
import sys, os
sys.path.insert(0, os.path.dirname(os.path.abspath(__file__)))
from asmlib import Asm
import gemm, attn

HEADER = """; Kernarg layout for this problem (72 bytes, ptrs only, base s[0:1]):
"""

KN = 'sequential_preLN__sliding_block__dense_activation_relu__prompt_kernel'


def build_mega(path, opts=()):
    from gemm import MP, M_WAVE, M_NONCE, M_FSRD, M_STAMP, WS_FLAG, WS_STAMP, build_srd
    from asmlib import s, v
    ST = 'stamps' in opts
    a = Asm()
    a.raw('.globl %s' % KN)
    a.raw('.p2align 8')
    a.raw('.type %s,@function' % KN)
    a.label(KN)
    a('s_cmp_ge_u32 s2, 256')
    a('s_cbranch_scc1 mega_end')
    a('s_load_dwordx4 s[64:67], s[0:1], 0')
    a('s_load_dwordx2 s[68:69], s[0:1], 16')
    a('s_load_dwordx4 s[70:73], s[0:1], 32') if False else None
    a('s_load_dwordx2 s[70:71], s[0:1], 32')
    a('s_load_dwordx2 s[72:73], s[0:1], 40')
    a('s_load_dwordx2 s[74:75], s[0:1], 48')
    a('s_load_dwordx2 s[76:77], s[0:1], 56')
    a('s_load_dwordx2 s[78:79], s[0:1], 64')
    a('s_memrealtime s[82:83]')
    gemm.MST[0] = ST
    a('v_lshrrev_b32 v1, 6, v0')
    a('v_and_b32 v0, 63, v0')
    a('v_readfirstlane_b32 %s, v1' % s(M_WAVE))
    a('s_waitcnt lgkmcnt(0)')
    build_srd(a, M_FSRD, MP['ws'], WS_FLAG, 8192)
    build_srd(a, 4, MP['dbg'], 0, 256)
    a('s_or_b32 s82, s82, 1')
    a('s_cmp_lg_u32 %s, 0' % s(M_WAVE))
    a('s_cbranch_scc1 mega_nn')
    a('v_mov_b32 v248, s82')
    a('v_mov_b32 v249, 0')
    a('v_mov_b32 v250, 0')
    a('s_mov_b64 exec, 1')
    a('buffer_atomic_cmpswap v[248:249], v250, s[4:7], 0 offen sc0 sc1')
    a('s_mov_b64 exec, -1')
    a.label('mega_nn')
    infos = []
    phases = [('g', gemm.CFG_QKV), ('a', None), ('g', gemm.CFG_WO), ('g', gemm.CFG_W1), ('g', gemm.CFG_W2)]
    for pi, (k, cfg) in enumerate(phases):
        if k == 'g':
            cfg['mega'] = True
            if pi == 0:
                cfg['pre_sig'] = True
            infos.append(gemm.gen_gemm(a, cfg))
        else:
            infos.append(attn.gen_attn(a, False, True))
        if pi == 0:
            pass
    a.label('mega_end')
    a('s_endpgm')
    lds = max(i['lds'] for i in infos)
    out = HEADER
    out += '; @launch grid=(256,1,1) block=(512,1,1) lds=%d\n' % lds
    out += '.amdgcn_target "amdgcn-amd-amdhsa--gfx950"\n.text\n'
    out += a.text()
    out += '.section .rodata,"a"\n.p2align 6\n.amdhsa_kernel %s\n' % KN
    out += '  .amdhsa_next_free_vgpr 256\n  .amdhsa_next_free_sgpr 102\n  .amdhsa_accum_offset 256\n'
    out += '  .amdhsa_group_segment_fixed_size 0\n  .amdhsa_kernarg_size 72\n  .amdhsa_user_sgpr_count 2\n'
    out += '  .amdhsa_user_sgpr_kernarg_segment_ptr 1\n  .amdhsa_system_sgpr_workgroup_id_x 1\n.end_amdhsa_kernel\n'
    open(path, 'w').write(out)
    print(infos)
    print('nops inserted', a.nops_inserted, 'lines', len(a.lines))


def build(path, opts=()):
    if 'mega' in opts:
        return build_mega(path, opts)
    a = Asm()
    for cfg in (gemm.CFG_QKV, gemm.CFG_WO, gemm.CFG_W1, gemm.CFG_W2):
        for o in opts:
            cfg[o] = True
    infos = []
    infos.append(gemm.gen_gemm(a, gemm.CFG_QKV))
    infos.append(attn.gen_attn(a, 'stamps' in opts))
    infos.append(gemm.gen_gemm(a, gemm.CFG_WO))
    infos.append(gemm.gen_gemm(a, gemm.CFG_W1))
    infos.append(gemm.gen_gemm(a, gemm.CFG_W2))
    out = HEADER
    for i in infos:
        out += '; @launch kernel=%s grid=(%d,1,1) block=(%d,1,1) lds=%d\n' % (i['name'], i['grid'], i['block'], i['lds'])
    out += '.amdgcn_target "amdgcn-amd-amdhsa--gfx950"\n.text\n'
    out += a.text()
    out += '.section .rodata,"a"\n'
    for i in infos:
        nv = (i['vgpr'] + 7) // 8 * 8
        out += '.p2align 6\n.amdhsa_kernel %s\n' % i['name']
        out += '  .amdhsa_next_free_vgpr %d\n' % nv
        out += '  .amdhsa_next_free_sgpr %d\n' % i['sgpr']
        out += '  .amdhsa_accum_offset %d\n' % nv
        out += '  .amdhsa_group_segment_fixed_size 0\n  .amdhsa_kernarg_size 72\n  .amdhsa_user_sgpr_count 2\n'
        out += '  .amdhsa_user_sgpr_kernarg_segment_ptr 1\n  .amdhsa_system_sgpr_workgroup_id_x 1\n.end_amdhsa_kernel\n'
    open(path, 'w').write(out)
    for i in infos:
        print(i)
    print('nops inserted', a.nops_inserted, 'lines', len(a.lines))

if __name__ == '__main__':
    p = sys.argv[1] if len(sys.argv) > 1 else 'sequential_preLN__sliding_block__dense_activation_relu__prompt.s'
    build(p, sys.argv[2:])
```

```python
import math
import struct
from asmlib import Asm, Regs, v, s
from gemm import build_srd, KA, WS_QKV, WS_O, QKV_BYTES, stamp, stamp_flush, STFLAG, weight_prefetch, MP, M_WAVE, mega_wait, mega_signal, mstamp, mflush


def f32bits(x):
    return struct.unpack('<I', struct.pack('<f', x))[0]


def gen_attn(a, ST=False, mega=False):
    name = 'attn_kernel'
    L = lambda x: '%s_%s' % (name, x)
    PL = 3136
    HB = 11 * PL
    KP, VP = 0, 5 * PL
    STG = 2 * HB
    LDS = STG + 10240
    sQ, sO = 4, 8
    pWS = 12
    s_head, s_qb, s_wave, s_t0, s_t1, s_hk, s_c, s_nm = 14, 15, 16, 17, 18, 19, 20, 21
    sM = [22, 24, 26, 28]
    s_m3, s_m2 = 30, 32
    s_pair, s_wq, s_hh, s_lb = 34, 35, 36, 37

    ldf = ' sc1' if mega else ''
    stf = ' sc1' if mega else STFLAG
    if mega:
        ST = False
        pWS = MP['ws']
        a.label(name)
        mstamp(a, 0)
    else:
        a.raw('.p2align 8')
        a.raw('.globl %s' % name)
        a.raw('.type %s,@function' % name)
        a.label(name)
        stamp(a, ST, 0)
        a('s_load_dwordx2 %s, s[0:1], %d' % (s(pWS, 2), KA['ws']))
        a('s_load_dwordx2 s[44:45], s[0:1], %d' % KA['w1'])
        a('s_cmp_ge_u32 s2, 256')
        a('s_cbranch_scc1 %s' % L('end'))
    a('s_and_b32 %s, s2, 7' % s(s_t0))
    a('s_lshr_b32 %s, s2, 3' % s(s_t1))
    a('s_lshl_b32 %s, %s, 1' % (s(s_pair), s(s_t0)))
    a('s_and_b32 %s, %s, 1' % (s(s_t0), s(s_t1)))
    a('s_add_u32 %s, %s, %s' % (s(s_pair), s(s_pair), s(s_t0)))
    a('s_lshr_b32 %s, %s, 1' % (s(s_qb), s(s_t1)))
    if mega:
        a('s_mov_b32 %s, %s' % (s(s_wave), s(M_WAVE)))
    else:
        a('v_lshrrev_b32 v1, 6, v0')
        a('v_and_b32 v0, 63, v0')
        a('v_readfirstlane_b32 %s, v1' % s(s_wave))
    R = Regs(1, 256, 'v')
    vg, vi, vt0, vt1, vt2, vt3, vg2 = [R.alloc() for _ in range(7)]
    a('v_lshrrev_b32 %s, 4, v0' % v(vg))
    a('v_and_b32 %s, 15, v0' % v(vi))
    a('v_min_u32 %s, 2, %s' % (v(vg2), v(vg)))
    a('s_and_b32 %s, %s, 3' % (s(s_wq), s(s_wave)))
    a('s_lshr_b32 %s, %s, 2' % (s(s_hh), s(s_wave)))
    a('s_lshl_b32 %s, %s, 1' % (s(s_head), s(s_pair)))
    a('s_add_u32 %s, %s, %s' % (s(s_head), s(s_head), s(s_hh)))
    a('s_mul_i32 %s, %s, %d' % (s(s_lb), s(s_hh), HB))
    a('s_mul_i32 %s, %s, %d' % (s(s_hk), s(s_head), 5 * 16384))
    a('s_lshl_b32 %s, %s, 10' % (s(s_t0), s(s_qb)))
    a('s_add_u32 %s, %s, %s' % (s(s_hk), s(s_hk), s(s_t0)))
    a('s_sub_u32 %s, %s, %d' % (s(s_hk), s(s_hk), 2048))
    a('v_lshlrev_b32 %s, 4, v0' % v(vt0))
    a('s_mul_i32 %s, %s, 768' % (s(s_t1), s(s_wq)))
    vkey = R.alloc()
    a('s_lshl_b32 %s, %s, 10' % (s(s_nm), s(s_qb)))
    a('s_add_u32 %s, %s, %s' % (s(s_nm), s(s_nm), s(s_t1)))
    a('s_sub_u32 %s, %s, 2048' % (s(s_nm), s(s_nm)))
    a('v_add_u32 %s, %s, %s' % (v(vkey), s(s_nm), v(vt0)))
    a('v_max_i32 %s, 0, %s' % (v(vkey), v(vkey)))
    a('s_mul_i32 %s, %s, %d' % (s(s_nm), s(s_head), 5 * 16384))
    a('s_add_u32 %s, %s, %s' % (s(s_t1), s(s_t1), s(s_lb)))
    a('s_mov_b32 s38, -1')
    a('s_mov_b32 s39, 0xffff')
    vq0, vq1 = R.alloc(), R.alloc()
    a('v_lshlrev_b32 %s, 1, %s' % (v(vt1), v(vg)))
    a('v_min_u32 %s, 4, %s' % (v(vt2), v(vt1)))
    a('v_add_u32 %s, 1, %s' % (v(vt1), v(vt1)))
    a('v_min_u32 %s, 4, %s' % (v(vt1), v(vt1)))
    vp0, vp1 = R.alloc(), R.alloc()
    a('v_mov_b32 %s, %s' % (v(vp0), v(vt2)))
    a('v_mov_b32 %s, %s' % (v(vp1), v(vt1)))
    a('v_lshlrev_b32 %s, 14, %s' % (v(vq0), v(vt2)))
    a('v_lshl_add_u32 %s, %s, 3, %s' % (v(vq0), v(vi), v(vq0)))
    a('v_lshlrev_b32 %s, 14, %s' % (v(vq1), v(vt1)))
    a('v_lshl_add_u32 %s, %s, 3, %s' % (v(vq1), v(vi), v(vq1)))
    a('s_waitcnt lgkmcnt(0)')
    build_srd(a, sQ, pWS, WS_QKV, QKV_BYTES)
    if mega:
        vd = [R.alloc() for _ in range(3)]
        a('s_sub_u32 s40, %s, 2' % s(s_qb))
        mega_wait(a, 'qkv', 40, s_qb, 15, vd, [41, 42], L('dep'))
        a('s_barrier')
        mstamp(a, 1)
    a('s_mov_b64 exec, s[38:39]')
    for pc in range(5):
        a('s_add_u32 %s, %s, %d' % (s(s_t0), s(s_nm), (160 + pc) * 16384))
        a('s_add_u32 m0, %s, %d' % (s(s_t1), KP + pc * PL))
        a('buffer_load_dwordx4 %s, %s, %s offen lds%s' % (v(vkey), s(sQ, 4), s(s_t0), ldf))
    a('s_mov_b64 exec, -1')
    fQ = [R.alloc(4, 4) for _ in range(2)]
    a('s_lshl_b32 %s, %s, 8' % (s(s_t0), s(s_wq)))
    a('s_add_u32 %s, %s, %s' % (s(s_t0), s(s_t0), s(s_hk)))
    a('s_add_u32 %s, %s, 2048' % (s(s_t0), s(s_t0)))
    for aa in range(2):
        a('buffer_load_dwordx2 %s, %s, %s, %s offen offset:%d%s' % (v(fQ[aa], 2), v(vq0), s(sQ, 4), s(s_t0), aa * 128, ldf))
        a('buffer_load_dwordx2 %s, %s, %s, %s offen offset:%d%s' % (v(fQ[aa] + 2, 2), v(vq1), s(sQ, 4), s(s_t0), aa * 128, ldf))
    a('s_mov_b64 exec, s[38:39]')
    for pc in range(5):
        a('s_add_u32 %s, %s, %d' % (s(s_t0), s(s_nm), (320 + pc) * 16384))
        a('s_add_u32 m0, %s, %d' % (s(s_t1), VP + pc * PL))
        a('buffer_load_dwordx4 %s, %s, %s offen lds%s' % (v(vkey), s(sQ, 4), s(s_t0), ldf))
    vone = R.alloc(4, 4)
    a('v_mov_b32 %s, 0x3f80' % v(vone))
    a('v_mov_b32 %s, 0' % v(vone + 1))
    a('v_mov_b32 %s, 0x3f80' % v(vone + 2))
    a('v_mov_b32 %s, 0' % v(vone + 3))
    a('v_add_u32 %s, %s, %s' % (v(vt1), s(s_t1), v(vt0)))
    a('ds_write_b128 %s, %s offset:%d' % (v(vt1), v(vone, 4), 10 * PL))
    a('s_mov_b64 exec, -1')
    build_srd(a, sO, pWS, WS_O, 16 * 163840)
    for r in range(4):
        a('v_lshl_add_u32 %s, %s, 2, %d' % (v(vt3), v(vg), r))
        a('v_cmp_le_u32 %s, %s, %s' % (s(sM[r], 2), v(vt3), v(vi)))
    a('v_cmp_eq_u32 %s, 3, %s' % (s(s_m3, 2), v(vg)))
    a('v_cmp_le_u32 %s, 2, %s' % (s(s_m2, 2), v(vg)))
    vML = [R.alloc() for _ in range(2)]
    vMH = [R.alloc() for _ in range(2)]
    vz = R.alloc()
    a('v_mov_b32 %s, 0' % v(vz))
    a('v_mov_b32 %s, 0xffff' % v(vt3))
    vhi16 = R.alloc()
    a('v_mov_b32 %s, 0xffff0000' % v(vhi16))
    for h in range(2):
        a('v_cndmask_b32 %s, %s, %s, %s' % (v(vML[h]), v(vz), v(vt3), s(sM[2 * h], 2)))
        a('v_cndmask_b32 %s, %s, %s, %s' % (v(vMH[h]), v(vz), v(vhi16), s(sM[2 * h + 1], 2)))
        a('v_or_b32 %s, %s, %s' % (v(vML[h]), v(vML[h]), v(vMH[h])))
        a('v_not_b32 %s, %s' % (v(vMH[h]), v(vML[h])))
    a('s_mov_b32 %s, 0x%x' % (s(s_c), f32bits(20 ** -0.5 * math.log2(math.e))))
    vKa0, vKa1, vV0a, vV1a = R.alloc(), R.alloc(), R.alloc(), R.alloc()
    a('s_lshl_b32 %s, %s, 8' % (s(s_t0), s(s_wq)))
    a('s_add_u32 %s, %s, %s' % (s(s_t0), s(s_t0), s(s_lb)))
    a('v_lshl_add_u32 %s, %s, 3, %s' % (v(vt3), v(vi), s(s_t0)))
    a('v_mul_u32_u24 %s, %d, %s' % (v(vKa0), PL, v(vp0)))
    a('v_add_u32 %s, %s, %s' % (v(vKa0), v(vKa0), v(vt3)))
    a('v_mul_u32_u24 %s, %d, %s' % (v(vKa1), PL, v(vp1)))
    a('v_add_u32 %s, %s, %s' % (v(vKa1), v(vKa1), v(vt3)))
    a('s_add_u32 %s, %s, %d' % (s(s_t0), s(s_t0), VP))
    a('v_lshrrev_b32 %s, 2, v0' % v(vt3))
    a('v_lshl_add_u32 %s, %s, 3, %s' % (v(vt3), v(vt3), s(s_t0)))
    a('v_and_b32 %s, 3, v0' % v(vV0a))
    a('v_mul_u32_u24 %s, %d, %s' % (v(vV0a), PL, v(vV0a)))
    a('v_add_u32 %s, %s, %s' % (v(vV0a), v(vV0a), v(vt3)))
    a('v_and_b32 %s, 1, v0' % v(vV1a))
    a('v_mul_u32_u24 %s, %d, %s' % (v(vV1a), PL, v(vV1a)))
    a('v_add_u32 %s, %s, %s' % (v(vV1a), v(vV1a), v(vt3)))
    a('v_add_u32 %s, %d, %s' % (v(vV1a), 4 * PL, v(vV1a)))
    a('s_waitcnt vmcnt(5)')
    for aa in range(2):
        for r in range(2):
            a('v_cndmask_b32 %s, %s, %s, %s' % (v(fQ[aa] + r), v(fQ[aa] + r), v(vz), s(s_m3, 2)))
        for r in range(2, 4):
            a('v_cndmask_b32 %s, %s, %s, %s' % (v(fQ[aa] + r), v(fQ[aa] + r), v(vz), s(s_m2, 2)))
    a('s_waitcnt lgkmcnt(0)')
    a('s_barrier')
    stamp(a, ST, 1)
    if mega:
        mstamp(a, 2)

    Sreg = [[R.alloc(4, 4) for t in range(17)] for aa in range(2)]
    NKB = 6
    fK = [R.alloc(4, 4) for _ in range(NKB)]
    def kread(t):
        a('ds_read_b64 %s, %s offset:%d' % (v(fK[t % NKB], 2), v(vKa0), t * 128))
        a('ds_read_b64 %s, %s offset:%d' % (v(fK[t % NKB] + 2, 2), v(vKa1), t * 128))
    for t in range(min(NKB, 18)):
        kread(t)
    for t in range(18):
        outstanding_after = min(17, t + NKB - 1) - t
        a('s_waitcnt lgkmcnt(%d)' % (2 * outstanding_after))
        if t <= 16:
            a('v_mfma_f32_16x16x32_bf16 %s, %s, %s, 0' % (v(Sreg[0][t], 4), v(fK[t % NKB], 4), v(fQ[0], 4)))
        if t >= 1:
            a('v_mfma_f32_16x16x32_bf16 %s, %s, %s, 0' % (v(Sreg[1][t - 1], 4), v(fK[t % NKB], 4), v(fQ[1], 4)))
        if t + NKB < 18:
            kread(t + NKB)
    a('s_nop 7')
    a('s_cmp_ge_u32 %s, 2' % s(s_qb))
    a('s_cbranch_scc1 %s' % L('nomask'))
    for aa in range(2):
        a('s_lshl_b32 %s, %s, 1' % (s(s_nm), s(s_wq)))
        a('s_lshl_b32 %s, %s, 3' % (s(s_t0), s(s_qb)))
        a('s_add_u32 %s, %s, %s' % (s(s_nm), s(s_nm), s(s_t0)))
        a('s_sub_u32 %s, %d, %s' % (s(s_nm), 16 - aa, s(s_nm)))
        for t in range(16):
            a('s_cmp_gt_u32 %s, %d' % (s(s_nm), t))
            a('s_cbranch_scc0 %s' % L('mdone%d' % aa))
            for r in range(4):
                a('v_mov_b32 %s, 0xf149f2ca' % v(Sreg[aa][t] + r))
        a.label(L('mdone%d' % aa))
    a.label(L('nomask'))

    vmx, vmx2 = R.alloc(), R.alloc()
    Oacc = [[R.alloc(4, 4) for dt in range(2)] for aa in range(2)]

    def softmax(aa):
        Sg = Sreg[aa]
        for r in range(4):
            a('v_cndmask_b32 %s, %s, %s, %s' % (v(Sg[16] + r), v(Sg[0] + r), v(Sg[16] + r), s(sM[r], 2)))
        vals = [Sg[t] + r for t in range(1, 17) for r in range(4)]
        a('v_max3_f32 %s, %s, %s, %s' % (v(vmx), v(vals[0]), v(vals[1]), v(vals[2])))
        a('v_max3_f32 %s, %s, %s, %s' % (v(vmx2), v(vals[3]), v(vals[4]), v(vals[5])))
        k = 6
        tog = 0
        while k + 1 < len(vals):
            d = vmx if tog == 0 else vmx2
            a('v_max3_f32 %s, %s, %s, %s' % (v(d), v(d), v(vals[k]), v(vals[k + 1])))
            k += 2
            tog ^= 1
        assert k == len(vals)
        a('v_max_f32 %s, %s, %s' % (v(vmx), v(vmx), v(vmx2)))
        a('v_mov_b32 %s, %s' % (v(vmx2), v(vmx)))
        a('v_permlane32_swap_b32 %s, %s' % (v(vmx), v(vmx2)))
        a('v_max_f32 %s, %s, %s' % (v(vmx), v(vmx), v(vmx2)))
        a('v_mov_b32 %s, %s' % (v(vmx2), v(vmx)))
        a('v_permlane16_swap_b32 %s, %s' % (v(vmx), v(vmx2)))
        a('v_max_f32 %s, %s, %s' % (v(vmx), v(vmx), v(vmx2)))
        a('v_mul_f32 %s, %s, %s' % (v(vmx), s(s_c), v(vmx)))
        if aa == 0:
            dst = {t: Sg[t & ~1] + 2 * (t & 1) for t in range(2, 16)}
            dst[1] = Sg[0] + 2
            dhi, dlo = Sg[0], Sg[16]
        else:
            dst = {t: Sg[t - ((t - 1) & 1)] + 2 * ((t - 1) & 1) for t in range(1, 15)}
            dst[15] = Sg[15]
            dhi, dlo = Sg[0], Sg[15] + 2
        order = list(range(1, 16)) + [16]
        for t in order:
            b = Sg[t]
            for r in range(4):
                a('v_fma_f32 %s, %s, %s, -%s' % (v(b + r), v(b + r), s(s_c), v(vmx)))
            for r in range(4):
                a('v_exp_f32 %s, %s' % (v(b + r), v(b + r)))
            if t < 16:
                a('v_cvt_pk_bf16_f32 %s, %s, %s' % (v(dst[t]), v(b), v(b + 1)))
                a('v_cvt_pk_bf16_f32 %s, %s, %s' % (v(dst[t] + 1), v(b + 2), v(b + 3)))
            else:
                a('v_cvt_pk_bf16_f32 %s, %s, %s' % (v(vt0), v(b), v(b + 1)))
                a('v_cvt_pk_bf16_f32 %s, %s, %s' % (v(vt1), v(b + 2), v(b + 3)))
                a('v_and_b32 %s, %s, %s' % (v(dlo), v(vt0), v(vML[0])))
                a('v_and_b32 %s, %s, %s' % (v(dlo + 1), v(vt1), v(vML[1])))
                a('v_and_b32 %s, %s, %s' % (v(dhi), v(vt0), v(vMH[0])))
                a('v_and_b32 %s, %s, %s' % (v(dhi + 1), v(vt1), v(vMH[1])))

    stamp(a, ST, 2)
    softmax(0)
    vtid = R.alloc()
    a('v_lshl_add_u32 %s, %s, 6, v0' % (v(vtid), s(s_wave)))
    weight_prefetch(a, 'w1', vtid, 512, [vt0, vt1, vt2], vt3, 40, MP['w1'] if mega else 44, [s_t0, s_t1, s_nm], preloaded=True)
    if mega:
        weight_prefetch(a, 'w2', vtid, 512, [vt0, vt1, vt2], vt3, 40, MP['w2'], [s_t0, s_t1, s_nm], preloaded=True)
    softmax(1)
    stamp(a, ST, 3)

    a('s_waitcnt vmcnt(%d)' % (2 if mega else 1))
    a('s_barrier')
    Vb = [(fK[0], fK[1]), (fK[2], fK[3]), (fK[4], fK[5])]

    def vreads(slot, kta, ktb):
        for dt in range(2):
            base, stride = (vV0a, 128) if dt == 0 else (vV1a, 128)
            a('ds_read_b64_tr_b16 %s, %s offset:%d' % (v(Vb[slot][dt], 2), v(base), kta * stride))
            a('ds_read_b64_tr_b16 %s, %s offset:%d' % (v(Vb[slot][dt] + 2, 2), v(base), ktb * stride))

    steps = [(0, 1)] + [(t, t + 1) for t in range(2, 16, 2)] + [(16, 17)]
    vreads(0, *steps[0])
    vreads(1, *steps[1])
    first = [[True, True], [True, True]]

    def pv(aa, dt, vreg, preg, wide):
        cc = '0' if first[aa][dt] else v(Oacc[aa][dt], 4)
        first[aa][dt] = False
        if wide:
            a('v_mfma_f32_16x16x32_bf16 %s, %s, %s, %s' % (v(Oacc[aa][dt], 4), v(vreg, 4), v(preg, 4), cc))
        else:
            a('v_mfma_f32_16x16x16_bf16 %s, %s, %s, %s' % (v(Oacc[aa][dt], 4), v(vreg, 2), v(preg, 2), cc))

    for si, (ta, tb) in enumerate(steps):
        if si + 2 < len(steps):
            vreads((si + 2) % 3, *steps[si + 2])
        nafter = min(len(steps) - 1, si + 2) - si
        a('s_waitcnt lgkmcnt(%d)' % (4 * nafter))
        sl = Vb[si % 3]
        for dt in range(2):
            if si == 0:
                pv(0, dt, sl[dt], Sreg[0][0], True)
                pv(1, dt, sl[dt] + 2, Sreg[1][0], False)
            elif si == len(steps) - 1:
                pv(0, dt, sl[dt], Sreg[0][16], False)
                pv(1, dt, sl[dt], Sreg[1][15], True)
            else:
                pv(0, dt, sl[dt], Sreg[0][ta], True)
                pv(1, dt, sl[dt], Sreg[1][ta - 1], True)

    stamp(a, ST, 4)
    if mega:
        mstamp(a, 3)
    vo = R.alloc()
    a('s_mul_i32 %s, %s, %d' % (s(s_t0), s(s_wq), 32 * 80))
    a('s_mul_i32 %s, %s, 40' % (s(s_t1), s(s_hh)))
    a('s_add_u32 %s, %s, %s' % (s(s_t0), s(s_t0), s(s_t1)))
    a('s_add_u32 %s, %s, %d' % (s(s_t0), s(s_t0), STG))
    a('v_mul_u32_u24 %s, 80, %s' % (v(vo), v(vi)))
    a('v_lshl_add_u32 %s, %s, 3, %s' % (v(vo), v(vg), v(vo)))
    a('v_add_u32 %s, %s, %s' % (v(vo), s(s_t0), v(vo)))
    for aa in range(2):
        O0, O1 = Oacc[aa]
        a('v_mov_b32 %s, %s' % (v(vt0), v(O1)))
        a('v_mov_b32 %s, %s' % (v(vt1), v(O1)))
        a('v_permlane16_swap_b32 %s, %s' % (v(vt0), v(vt1)))
        a('v_mov_b32 %s, %s' % (v(vt0), v(vt1)))
        a('v_permlane32_swap_b32 %s, %s' % (v(vt0), v(vt1)))
        a('v_rcp_f32 %s, %s' % (v(vt0), v(vt0)))
        for r in range(4):
            a('v_mul_f32 %s, %s, %s' % (v(O0 + r), v(vt0), v(O0 + r)))
            a('v_mul_f32 %s, %s, %s' % (v(O1 + r), v(vt0), v(O1 + r)))
        a('v_cvt_pk_bf16_f32 %s, %s, %s' % (v(O0), v(O0), v(O0 + 1)))
        a('v_cvt_pk_bf16_f32 %s, %s, %s' % (v(O0 + 1), v(O0 + 2), v(O0 + 3)))
        a('v_cvt_pk_bf16_f32 %s, %s, %s' % (v(O1), v(O1), v(O1 + 1)))
        a('v_cvt_pk_bf16_f32 %s, %s, %s' % (v(O1 + 1), v(O1 + 2), v(O1 + 3)))
        a('ds_write_b64 %s, %s offset:%d' % (v(vo), v(O0, 2), aa * 16 * 80))
        a('s_mov_b64 exec, 0xffff')
        a('ds_write_b64 %s, %s offset:%d' % (v(vo), v(O1, 2), aa * 16 * 80 + 32))
        a('s_mov_b64 exec, -1')
    a('s_mul_i32 %s, %s, 1280' % (s(s_t0), s(s_wave)))
    a('v_lshl_add_u32 %s, v0, 4, %s' % (v(vt0), s(s_t0)))
    a('v_add_u32 %s, %d, %s' % (v(vt1), STG, v(vt0)))
    a('s_mul_i32 %s, %s, 163840' % (s(s_t0), s(s_pair)))
    a('s_mul_i32 %s, %s, 10240' % (s(s_t1), s(s_qb)))
    a('s_add_u32 %s, %s, %s' % (s(s_t0), s(s_t0), s(s_t1)))
    a('s_waitcnt lgkmcnt(0)')
    a('s_barrier')
    a('ds_read_b128 %s, %s' % (v(fK[0], 4), v(vt1)))
    a('ds_read_b128 %s, %s offset:1024' % (v(fK[1], 4), v(vt1)))
    a('s_waitcnt lgkmcnt(1)')
    a('buffer_store_dwordx4 %s, %s, %s, %s offen%s' % (v(fK[0], 4), v(vt0), s(sO, 4), s(s_t0), stf))
    a('s_waitcnt lgkmcnt(0)')
    a('s_mov_b64 exec, 0xffff')
    a('buffer_store_dwordx4 %s, %s, %s, %s offen offset:1024%s' % (v(fK[1], 4), v(vt0), s(sO, 4), s(s_t0), stf))
    a('s_mov_b64 exec, -1')
    if mega:
        mstamp(a, 4)
        a('s_waitcnt vmcnt(0)')
        a('s_barrier')
        mega_signal(a, 'attn', s_qb, s_pair, vt0, s_t0, L('sig'))
        mflush(a, 1, L('mfl'))
        a.label(L('end'))
    else:
        stamp_flush(a, ST, 1, 5, s_wave, L('sdone'))
        a.label(L('end'))
        a('s_endpgm')
    return dict(name=name, vgpr=254 if ST else R.hi, sgpr=90 if ST else 48, lds=LDS, block=512, grid=256)
```

```python
from asmlib import Asm, Regs, v, s

WS_QKV = 0
WS_O = 0x800000
WS_H = 0xB00000
WS_H1 = 0x1000000
QKV_BYTES = 96 * 81920
WS_STAMP = 0x3000000
STAMP_S = 60

KA = dict(x=0, wqkv=8, wo=16, bx=24, w1=32, w2=40, out=48, dbg=56, ws=64)
STFLAG = ''


def build_srd(a, sr, sptr, off, nbytes):
    if off:
        a('s_add_u32 %s, %s, 0x%x' % (s(sr), s(sptr), off))
        a('s_addc_u32 %s, %s, 0' % (s(sr + 1), s(sptr + 1)))
        a('s_and_b32 %s, %s, 0xffff' % (s(sr + 1), s(sr + 1)))
    else:
        a('s_mov_b32 %s, %s' % (s(sr), s(sptr)))
        a('s_and_b32 %s, %s, 0xffff' % (s(sr + 1), s(sptr + 1)))
    a('s_mov_b32 %s, 0x%x' % (s(sr + 2), nbytes))
    a('s_mov_b32 %s, 0x20000' % s(sr + 3))


def stamp(a, on, i):
    if on:
        a('s_memrealtime %s' % s(STAMP_S + 2 * i, 2))


def stamp_flush(a, on, kidx, n, s_wave, lbl):
    if not on:
        return
    a('s_waitcnt vmcnt(0)')
    stamp(a, on, n)
    a('s_load_dwordx2 s[80:81], s[0:1], %d' % KA['ws'])
    a('s_waitcnt lgkmcnt(0)')
    a('s_cmp_lg_u32 %s, 0' % s(s_wave))
    a('s_cbranch_scc1 %s' % lbl)
    build_srd(a, 76, 80, WS_STAMP + kidx * 16384, 16384)
    a('s_lshl_b32 s82, s2, 6')
    a('v_mov_b32 v250, s82')
    a('s_mov_b64 exec, 1')
    for i in range(6):
        a('v_mov_b32 v252, %s' % s(STAMP_S + 2 * i))
        a('v_mov_b32 v253, %s' % s(STAMP_S + 2 * i + 1))
        a('buffer_store_dwordx2 v[252:253], v250, s[76:79], 0 offen offset:%d' % (8 * i))
        a('s_nop 1')
    a('s_mov_b64 exec, -1')
    a.label(lbl)


PF = dict(wo=(640, 1280, 5, 640), w1=(640, 3456, 14, 1792), w2=(1728, 1280, 5, 640))


def weight_prefetch(a, wname, vtid, nthreads, vt, vdst, sr, sp, st, preloaded=False):
    nrows, stride, lpr, half = PF[wname]
    total = nrows * lpr
    per = (total + 31) // 32
    if not preloaded:
        a('s_load_dwordx2 %s, s[0:1], %d' % (s(sp, 2), KA[wname]))
    a('s_lshr_b32 %s, s2, 3' % s(st[0]))
    a('s_mul_i32 %s, %s, %d' % (s(st[0]), s(st[0]), per))
    a('s_add_u32 %s, %s, %d' % (s(st[1]), s(st[0]), per))
    a('s_min_u32 %s, %s, %d' % (s(st[1]), s(st[1]), total))
    a('s_and_b32 %s, s2, 1' % s(st[2]))
    a('s_mul_i32 %s, %s, %d' % (s(st[2]), s(st[2]), half))
    sh = 16
    while True:
        magic = ((1 << sh) + lpr - 1) // lpr
        if all((f * magic) >> sh == f // lpr for f in range(0, total + 2048)) and (total + 2048) * magic < (1 << 32):
            break
        sh += 1
    if not preloaded:
        a('s_waitcnt lgkmcnt(0)')
    build_srd(a, sr, sp, 0, nrows * stride)
    for it in range((per + nthreads - 1) // nthreads):
        a('v_add_u32 %s, %s, %s' % (v(vt[0]), s(st[0]), v(vtid)))
        if it:
            a('v_add_u32 %s, %d, %s' % (v(vt[0]), it * nthreads, v(vt[0])))
        a('v_mul_u32_u24 %s, %d, %s' % (v(vt[1]), magic, v(vt[0])))
        a('v_lshrrev_b32 %s, %d, %s' % (v(vt[1]), sh, v(vt[1])))
        a('v_mul_u32_u24 %s, %d, %s' % (v(vt[2]), lpr, v(vt[1])))
        a('v_sub_u32 %s, %s, %s' % (v(vt[2]), v(vt[0]), v(vt[2])))
        a('v_mul_u32_u24 %s, %d, %s' % (v(vt[1]), stride, v(vt[1])))
        a('v_lshl_add_u32 %s, %s, 7, %s' % (v(vt[1]), v(vt[2]), v(vt[1])))
        a('v_cmp_gt_u32 vcc, %s, %s' % (s(st[1]), v(vt[0])))
        a('v_mov_b32 %s, -1' % v(vt[2]))
        a('v_cndmask_b32 %s, %s, %s, vcc' % (v(vt[1]), v(vt[2]), v(vt[1])))
        a('buffer_load_dword %s, %s, %s, %s offen' % (v(vdst), v(vt[1]), s(sr, 4), s(st[2])))


WS_FLAG = 0x2000000
MP = dict(x=64, wqkv=66, wo=68, w1=70, w2=72, out=74, dbg=76, ws=78)
M_WAVE, M_NONCE, M_FSRD, M_STAMP = 80, 81, 84, 90
FLAG_OFF = dict(qkv=0, attn=1024, wo=2048, w1=4096)
POLL_LIMIT = 200000


MST = [False]


def mstamp(a, i):
    if MST[0]:
        a('s_memrealtime %s' % s(M_STAMP + 2 * i, 2))


def mflush(a, phase, lbl):
    if not MST[0]:
        return
    mstamp(a, 5)
    a('s_waitcnt lgkmcnt(0)')
    a('s_cmp_lg_u32 %s, 0' % s(M_WAVE))
    a('s_cbranch_scc1 %s' % lbl)
    build_srd(a, 4, MP['ws'], WS_STAMP + phase * 16384, 16384)
    a('s_lshl_b32 s8, s2, 6')
    a('v_mov_b32 v250, s8')
    a('s_mov_b64 exec, 1')
    for i in range(6):
        a('v_mov_b32 v252, %s' % s(M_STAMP + 2 * i))
        a('v_mov_b32 v253, %s' % s(M_STAMP + 2 * i + 1))
        a('buffer_store_dwordx2 v[252:253], v250, s[4:7], 0 offen offset:%d' % (8 * i))
        a('s_nop 1')
    a('s_mov_b64 exec, -1')
    a.label(lbl)


def mega_nonce(a):
    a('s_waitcnt vmcnt(0)')
    a('v_readfirstlane_b32 %s, v248' % s(M_NONCE))
    a('s_cmp_eq_u32 %s, 0' % s(M_NONCE))
    a('s_cselect_b32 %s, s82, %s' % (s(M_NONCE), s(M_NONCE)))


def mega_signal(a, table, s_row, s_col, vtmp, stmp, lbl):
    a('s_cmp_lg_u32 %s, 0' % s(M_WAVE))
    a('s_cbranch_scc1 %s' % lbl)
    mega_nonce(a)
    a('s_lshl_b32 %s, %s, 4' % (s(stmp), s(s_row)))
    a('s_add_u32 %s, %s, %s' % (s(stmp), s(stmp), s(s_col)))
    a('s_lshl_b32 %s, %s, 2' % (s(stmp), s(stmp)))
    a('s_add_u32 %s, %s, %d' % (s(stmp), s(stmp), FLAG_OFF[table]))
    a('v_mov_b32 %s, %s' % (v(vtmp), s(stmp)))
    a('v_mov_b32 %s, %s' % (v(vtmp + 1), s(M_NONCE)))
    a('s_mov_b64 exec, 1')
    a('buffer_store_dword %s, %s, %s, 0 offen sc1' % (v(vtmp + 1), v(vtmp), s(M_FSRD, 4)))
    a('s_mov_b64 exec, -1')
    a.label(lbl)


def mega_wait(a, table, s_r0, s_r1, ncol, vt, st, lbl):
    a('s_cmp_lg_u32 %s, 0' % s(M_WAVE))
    a('s_cbranch_scc1 %s' % (lbl + '_done'))
    mega_nonce(a)
    a('v_lshrrev_b32 %s, 4, v0' % v(vt[0]))
    a('v_add_u32 %s, %s, %s' % (v(vt[0]), s(s_r0), v(vt[0])))
    a('v_and_b32 %s, 15, v0' % v(vt[1]))
    a('v_cmp_gt_u32 %s, %d, %s' % (s(st[1], 2), ncol, v(vt[1])))
    a('v_cmp_le_i32 vcc, 0, %s' % v(vt[0]))
    a('s_and_b64 %s, %s, vcc' % (s(st[1], 2), s(st[1], 2)))
    a('v_cmp_ge_i32 vcc, %s, %s' % (s(s_r1), v(vt[0])))
    a('s_and_b64 %s, %s, vcc' % (s(st[1], 2), s(st[1], 2)))
    a('v_lshl_add_u32 %s, %s, 4, %s' % (v(vt[0]), v(vt[0]), v(vt[1])))
    a('v_lshlrev_b32 %s, 2, %s' % (v(vt[0]), v(vt[0])))
    a('v_add_u32 %s, %d, %s' % (v(vt[0]), FLAG_OFF[table], v(vt[0])))
    a('s_mov_b32 %s, 0' % s(st[0]))
    a('s_mov_b64 exec, %s' % s(st[1], 2))
    a.label(lbl + '_loop')
    a('buffer_load_dword %s, %s, %s, 0 offen sc1' % (v(vt[1]), v(vt[0]), s(M_FSRD, 4)))
    a('s_waitcnt vmcnt(0)')
    a('v_cmp_ne_u32 vcc, %s, %s' % (s(M_NONCE), v(vt[1])))
    a('s_nop 1')
    a('s_cbranch_vccz %s' % (lbl + '_ok'))
    a('s_sleep 1')
    a('s_add_u32 %s, %s, 1' % (s(st[0]), s(st[0])))
    a('s_cmp_lt_u32 %s, %d' % (s(st[0]), POLL_LIMIT))
    a('s_cbranch_scc1 %s' % (lbl + '_loop'))
    a.label(lbl + '_ok')
    a('s_mov_b64 exec, -1')
    a.label(lbl + '_done')


def bf16_round(a, dst, src):
    a('v_cvt_pk_bf16_f32 %s, %s, %s' % (v(dst), v(src), v(src)))
    a('v_lshlrev_b32 %s, 16, %s' % (v(dst), v(dst)))


def gen_gemm(a, c):
    name = c['name']
    BM, BN, K, N = c['BM'], c['BN'], c['K'], c['N']
    WM, WN = c['WM'], c['WN']
    D = c['D']
    LN = c.get('LN', False)
    epi = c['epi']
    ST = c.get('stamps', False)
    MT = BM // 16 // WM
    NT = BN // 16 // WN
    S = K // 64
    G = BN // 8
    rowW = BN * 2
    assert rowW in (128, 256)
    XB = BM * 128
    WB = 64 * rowW
    SLOT = XB + WB
    SCOL = D * SLOT
    SROW = SCOL + BN * 4
    lds_total = SROW + BM * 8 if LN else SCOL
    strideX = K * 2
    strideW = N * 2
    nX = BM // 32
    nW = 16 * G // 64
    nDMA = nX + nW
    pairX = c.get('pairX', False)
    GRP = c.get('GRP', 1)
    PD = c.get('PD', 1)
    assert D % GRP == 0
    DG = D // GRP
    NG = (S + GRP - 1) // GRP
    last_g = (NG - 1) % DG
    GS = GRP * SLOT
    STG = (last_g + 1) * GS if last_g + 1 < DG else 0
    STG_ROOM = (DG - last_g - 1) * GS if last_g + 1 < DG else last_g * GS
    if LN and lds_total > 163840:
        SCOL = STG + STG_ROOM - 1024
        STG_ROOM -= 1024
        lds_total = D * SLOT
    mega = c.get('mega', False)
    stf = ' sc1' if mega else STFLAG
    ldf = ' sc1' if (mega and c['x'][0] == 'ws') else ''
    L = lambda x: '%s_%s' % (name, x)

    sX, sW, sO, sR = 4, 8, 12, 16
    pX, pW, pO, pR = 20, 22, 24, 26
    s_rb, s_cb, s_wave, s_t0, s_t1, s_kx, s_kw, s_ldsX, s_ldsW, s_st = 28, 29, 30, 31, 32, 33, 34, 35, 36, 37
    s_wm, s_wn, s_tok0, s_col0 = 38, 39, 40, 41
    s_ex = 42
    s_slot = 46
    s_t2, s_t3, s_t4, s_t5 = 54, 55, 56, 57
    s_m4 = 58

    if mega:
        ST = False
        pX, pW, pO = MP[c['x'][0]], MP[c['w']], MP[c['o'][0]]
        if epi == 'resid':
            pR = MP[c['r'][0]]
        a.label(name)
        mstamp(a, 0)
    else:
        a.raw('.p2align 8')
        a.raw('.globl %s' % name)
        a.raw('.type %s,@function' % name)
        a.label(name)
        stamp(a, ST, 0)
        a('s_load_dwordx2 %s, s[0:1], %d' % (s(pX, 2), KA[c['x'][0]]))
        a('s_load_dwordx2 %s, s[0:1], %d' % (s(pW, 2), KA[c['w']]))
        a('s_load_dwordx2 %s, s[0:1], %d' % (s(pO, 2), KA[c['o'][0]]))
        if epi == 'resid':
            a('s_load_dwordx2 %s, s[0:1], %d' % (s(pR, 2), KA[c['r'][0]]))
        a('s_cmp_ge_u32 s2, 256')
        a('s_cbranch_scc1 %s' % L('end'))
    a('s_and_b32 %s, s2, 7' % s(s_t0))
    a('s_lshr_b32 %s, s2, 3' % s(s_t1))
    if c['map'] == 'p2':
        RBX = c['rb_per_xcd']
        a('s_and_b32 %s, %s, %d' % (s(s_t2), s(s_t1), RBX - 1))
        a('s_lshr_b32 %s, %s, %d' % (s(s_t3), s(s_t1), RBX.bit_length() - 1))
        a('s_lshr_b32 %s, %s, 1' % (s(s_rb), s(s_t0)))
        a('s_mul_i32 %s, %s, %d' % (s(s_rb), s(s_rb), RBX))
        a('s_add_u32 %s, %s, %s' % (s(s_rb), s(s_rb), s(s_t2)))
        a('s_and_b32 %s, %s, 1' % (s(s_cb), s(s_t0)))
        a('s_mul_i32 %s, %s, %d' % (s(s_cb), s(s_cb), c['cb_stride']))
        a('s_cmp_ge_u32 %s, %d' % (s(s_t3), c['cb_stride']))
        a('s_cbranch_scc1 %s' % L('end'))
        a('s_add_u32 %s, %s, %s' % (s(s_cb), s(s_cb), s(s_t3)))
        a('s_cmp_ge_u32 %s, %d' % (s(s_cb), c['NB']))
        a('s_cbranch_scc1 %s' % L('end'))
        rot_max = c['rot'][0] * (RBX - 1) + c['rot'][1] * (c['cb_stride'] - 1)
    else:
        a('s_mul_i32 %s, %s, 205' % (s(s_t2), s(s_t1)))
        a('s_lshr_b32 %s, %s, 10' % (s(s_t2), s(s_t2)))
        a('s_mul_i32 %s, %s, 5' % (s(s_t3), s(s_t2)))
        a('s_sub_u32 %s, %s, %s' % (s(s_t3), s(s_t1), s(s_t3)))
        a('s_lshr_b32 %s, %s, 1' % (s(s_t1), s(s_t0)))
        a('s_mul_i32 %s, %s, 11' % (s(s_rb), s(s_t1)))
        a('s_add_u32 %s, %s, 12' % (s(s_t4), s(s_rb)))
        a('s_lshr_b32 %s, %s, 1' % (s(s_t4), s(s_t4)))
        a('s_add_u32 %s, %s, 1' % (s(s_rb), s(s_rb)))
        a('s_lshr_b32 %s, %s, 1' % (s(s_rb), s(s_rb)))
        a('s_add_u32 %s, %s, %s' % (s(s_rb), s(s_rb), s(s_t2)))
        a('s_cmp_ge_u32 %s, %s' % (s(s_rb), s(s_t4)))
        a('s_cbranch_scc1 %s' % L('end'))
        a('s_and_b32 %s, %s, 1' % (s(s_cb), s(s_t0)))
        a('s_mul_i32 %s, %s, 5' % (s(s_cb), s(s_cb)))
        a('s_add_u32 %s, %s, %s' % (s(s_cb), s(s_cb), s(s_t3)))
        rot_max = c['rot'][0] * 5 + c['rot'][1] * 4
    if mega:
        a('s_mov_b32 %s, %s' % (s(s_wave), s(M_WAVE)))
    else:
        a('v_lshrrev_b32 v1, 6, v0')
        a('v_and_b32 v0, 63, v0')
        a('v_readfirstlane_b32 %s, v1' % s(s_wave))
    a('s_mul_i32 %s, %s, %d' % (s(s_tok0), s(s_rb), BM))
    a('s_mul_i32 %s, %s, %d' % (s(s_col0), s(s_cb), BN))
    a('s_cmp_ge_u32 %s, 4' % s(s_wave))
    a('s_cbranch_scc1 %s' % L('loader'))

    R = Regs(1, 256, 'v')
    vg, vi, vt0, vt1, vt2, vt3 = [R.alloc() for _ in range(6)]
    a('v_lshrrev_b32 %s, 4, v0' % v(vg))
    a('v_and_b32 %s, 15, v0' % v(vi))
    if WN == 1:
        a('s_mov_b32 %s, %s' % (s(s_wm), s(s_wave)))
        a('s_mov_b32 %s, 0' % s(s_wn))
    else:
        assert WN == 2
        a('s_lshr_b32 %s, %s, 1' % (s(s_wm), s(s_wave)))
        a('s_and_b32 %s, %s, 1' % (s(s_wn), s(s_wave)))
    vXa = [R.alloc() for _ in range(2)]
    vXs = [R.alloc() for _ in range(2)]
    a('s_mul_i32 %s, %s, %d' % (s(s_t0), s(s_wm), MT * 16 * 128))
    a('v_lshrrev_b32 %s, 1, %s' % (v(vt0), v(vi)))
    a('v_lshlrev_b32 %s, 7, %s' % (v(vt1), v(vi)))
    a('v_add_u32 %s, %s, %s' % (v(vt1), s(s_t0), v(vt1)))
    for ks in range(2):
        a('v_add_u32 %s, %d, %s' % (v(vt2), 4 * ks, v(vg)))
        a('v_xor_b32 %s, %s, %s' % (v(vt2), v(vt2), v(vt0)))
        a('v_lshl_add_u32 %s, %s, 4, %s' % (v(vXa[ks]), v(vt2), v(vt1)))
    vWa = [R.alloc() for _ in range(NT)]
    vWs = [R.alloc() for _ in range(NT)]
    a('v_lshrrev_b32 %s, 2, %s' % (v(vt0), v(vi)))
    a('v_and_b32 %s, 1, %s' % (v(vt1), v(vg)))
    a('v_lshl_add_u32 %s, %s, 2, %s' % (v(vt0), v(vt1), v(vt0)))
    a('v_lshrrev_b32 %s, 1, %s' % (v(vt1), v(vg)))
    a('v_lshl_add_u32 %s, %s, 4, %s' % (v(vt1), v(vt1), v(vt0)))
    a('v_mul_u32_u24 %s, %d, %s' % (v(vt1), rowW, v(vt1)))
    a('v_and_b32 %s, 1, %s' % (v(vt2), v(vi)))
    a('v_lshl_add_u32 %s, %s, 3, %s' % (v(vt1), v(vt2), v(vt1)))
    a('v_bfe_u32 %s, %s, 1, 1' % (v(vt2), v(vi)))
    a('v_lshl_add_u32 %s, %s, 4, %s' % (v(vt1), v(vt2), v(vt1)))
    a('v_add_u32 %s, %d, %s' % (v(vt1), XB, v(vt1)))
    if rowW == 256:
        a('v_lshlrev_b32 %s, 1, %s' % (v(vt0), v(vt0)))
    else:
        a('v_and_b32 %s, 6, %s' % (v(vt0), v(vt0)))
    for nt in range(NT):
        if LN:
            a('s_lshl_b32 %s, %s, 1' % (s(s_t0), s(s_wave)))
            a('s_add_u32 %s, %s, %d' % (s(s_t0), s(s_t0), nt))
            a('s_and_b32 %s, %s, 7' % (s(s_slot + nt), s(s_t0)))
        else:
            a('s_mul_i32 %s, %s, %d' % (s(s_t0), s(s_wn), NT))
            a('s_add_u32 %s, %s, %d' % (s(s_slot + nt), s(s_t0), nt))
        a('s_lshl_b32 %s, %s, 1' % (s(s_t0), s(s_slot + nt)))
        a('v_xor_b32 %s, %s, %s' % (v(vt2), s(s_t0), v(vt0)))
        a('v_lshl_add_u32 %s, %s, 4, %s' % (v(vWa[nt]), v(vt2), v(vt1)))
    a('s_waitcnt lgkmcnt(0)')
    build_srd(a, sO, pO, c['o'][1], c['obytes'])

    if epi == 'resid':
        build_srd(a, sR, pR, c['r'][1], 2048 * 1280)
        NCH = BM * 8 // 64 // 4
        vOut = [R.alloc() for _ in range(NCH)]
        vRes = [R.alloc(4, 4) for _ in range(NCH)]
        a('s_mul_i32 %s, %s, %d' % (s(s_t0), s(s_wave), NCH * 8))
        a('s_add_u32 %s, %s, %s' % (s(s_t0), s(s_t0), s(s_tok0)))
        a('v_lshrrev_b32 %s, 3, v0' % v(vt0))
        a('v_add_u32 %s, %s, %s' % (v(vt0), s(s_t0), v(vt0)))
        a('v_mul_u32_u24 %s, 1280, %s' % (v(vt0), v(vt0)))
        a('v_and_b32 %s, 7, v0' % v(vt1))
        a('v_lshl_add_u32 %s, %s, 4, %s' % (v(vt0), v(vt1), v(vt0)))
        a('s_lshl_b32 %s, %s, 1' % (s(s_t0), s(s_col0)))
        a('v_add_u32 %s, %s, %s' % (v(vOut[0]), s(s_t0), v(vt0)))
        for j in range(1, NCH):
            a('v_add_u32 %s, %d, %s' % (v(vOut[j]), j * 8 * 1280, v(vOut[0])))
        for j in range(NCH):
            a('buffer_load_dwordx4 %s, %s, %s, 0 offen%s' % (v(vRes[j], 4), v(vOut[j]), s(sR, 4), ' sc1' if (mega and c['r'][0] == 'ws') else ''))

    acc = [[R.alloc(4, 4) for nt in range(NT)] for mt in range(MT)]
    NS = PD + 1
    fX = [[R.alloc(4, 4) for mt in range(MT)] for _ in range(NS)]
    fW = [[R.alloc(4, 4) for nt in range(NT)] for _ in range(NS)]
    nreads = MT + 2 * NT

    def addr(u):
        base = (u % D) * SLOT
        out = []
        for ks in range(2):
            out.append('v_add_u32 %s, 0x%x, %s' % (v(vXs[ks]), base, v(vXa[ks])))
        for j in range(NT):
            out.append('v_add_u32 %s, 0x%x, %s' % (v(vWs[j]), base, v(vWa[j])))
        return out

    def reads(j):
        u, ks = j // 2, j % 2
        setn = j % NS
        out = addr(u) if ks == 0 else []
        if c.get('nocompute') or c.get('noreads'):
            return out
        for mt in range(MT):
            out.append('ds_read_b128 %s, %s offset:%d' % (v(fX[setn][mt], 4), v(vXs[ks]), mt * 2048))
        for nt in range(NT):
            for hf in range(2):
                off = (32 * ks + 8 * hf) * rowW
                out.append('ds_read_b64_tr_b16 %s, %s offset:%d' % (v(fW[setn][nt] + 2 * hf, 2), v(vWs[nt]), off))
        return out

    if LN:
        assert WN == 1 and NT == 8
        vones = R.alloc(4, 4)
        for r in range(4):
            a('v_mov_b32 %s, 0x3f803f80' % v(vones + r))
        accC = [R.alloc(4, 4) for _ in range(2)]
        accS = [R.alloc(4, 4) for _ in range(MT)]
        accG = [R.alloc(4, 4) for _ in range(MT)]

    def mfmas(j):
        setn = j % NS
        first = j == 0
        out = []
        if (c.get('nocompute') or c.get('nomfma')) and not first:
            return out
        M = 'v_mfma_f32_16x16x32_bf16 %s, %s, %s, %s'
        for nt in range(NT):
            for mt in range(MT):
                cc = '0' if first else v(acc[mt][nt], 4)
                out.append(M % (v(acc[mt][nt], 4), v(fW[setn][nt], 4), v(fX[setn][mt], 4), cc))
            if LN and (first or not c.get('nostat')):
                if nt < 2:
                    cc = '0' if first else v(accC[nt], 4)
                    out.append(M % (v(accC[nt], 4), v(fW[setn][nt], 4), v(vones, 4), cc))
                elif nt < 2 + MT:
                    mt = nt - 2
                    cc = '0' if first else v(accS[mt], 4)
                    out.append(M % (v(accS[mt], 4), v(vones, 4), v(fX[setn][mt], 4), cc))
                elif nt < 2 + 2 * MT:
                    mt = nt - 2 - MT
                    cc = '0' if first else v(accG[mt], 4)
                    out.append(M % (v(accG[mt], 4), v(fX[setn][mt], 4), v(fX[setn][mt], 4), cc))
        return out

    J = 2 * S
    dep = c.get('dep') if mega else None
    if dep:
        table, rowsz, ncol, nrow_max = dep
        mg = (1 << 20) // rowsz + 1
        a('s_mul_i32 %s, %s, %d' % (s(s_t0), s(s_tok0), mg))
        a('s_lshr_b32 %s, %s, 20' % (s(s_t0), s(s_t0)))
        a('s_add_u32 %s, %s, %d' % (s(s_t1), s(s_tok0), BM - 1))
        a('s_mul_i32 %s, %s, %d' % (s(s_t1), s(s_t1), mg))
        a('s_lshr_b32 %s, %s, 20' % (s(s_t1), s(s_t1)))
        a('s_min_u32 %s, %s, %d' % (s(s_t1), s(s_t1), nrow_max - 1))
        for tk in range(0, 2200):
            assert (tk * mg) >> 20 == tk // rowsz
        mega_wait(a, table, s_t0, s_t1, ncol, [vt0, vt1, vt2], [s_t4, s_ex], L('dep'))
        a('s_barrier')
    if mega:
        mstamp(a, 1)
    a('s_barrier')
    if mega:
        mstamp(a, 2)
    stamp(a, ST, 1)
    for j in range(min(PD, J)):
        assert j < 2 * GRP
        for x in reads(j):
            a(x)
    for j in range(J):
        younger = min(J - 1, j + PD - 1) - j
        a('s_waitcnt lgkmcnt(%d)' % min(15, younger * nreads))
        M = mfmas(j)
        jn = j + PD
        Rd = reads(jn) if jn < J else []
        need_bar = jn < J and jn % (2 * GRP) == 0
        k = 0
        if need_bar:
            pre = len(M) // 4
            for x in M[:pre]:
                a(x)
            k = pre
            a('s_waitcnt lgkmcnt(0)')
            a('s_barrier')
        rest = M[k:]
        span = max(1, (len(rest) * 3) // 4)
        ri = 0
        for i, x in enumerate(rest):
            a(x)
            want = (len(Rd) * (i + 1) + span - 1) // span if i < span else len(Rd)
            while ri < min(want, len(Rd)):
                a(Rd[ri])
                ri += 1
        while ri < len(Rd):
            a(Rd[ri])
            ri += 1

    stamp(a, ST, 2)
    if mega:
        mstamp(a, 3)
    if LN:
        vmean = [R.alloc(2) for _ in range(MT)]
        vrinv = [R.alloc(2) for _ in range(MT)]
        vcs = [R.alloc(4, 4) for _ in range(NT)]
        T0, T1 = fW[0][0], fW[0][1]
        for j in range(2):
            a('s_lshl_b32 %s, %s, 6' % (s(s_t0), s(s_slot + j)))
            a('v_lshl_add_u32 %s, %s, 4, %s' % (v(vt0), v(vg), s(s_t0)))
            a('v_add_u32 %s, 0x%x, %s' % (v(vt0), SCOL, v(vt0)))
            a('ds_write_b128 %s, %s' % (v(vt0), v(accC[j], 4)))
        a('v_and_b32 %s, 3, %s' % (v(vt0), v(vi)))
        a('v_lshrrev_b32 %s, 2, %s' % (v(vt1), v(vi)))
        a('v_cmp_eq_u32 %s, 1, %s' % (s(s_ex, 2), v(vt0)))
        a('v_cmp_eq_u32 %s, 2, %s' % (s(s_ex + 2, 2), v(vt0)))
        a('v_cmp_eq_u32 vcc, 3, %s' % v(vt0))
        a('v_cmp_eq_u32 %s, %s, %s' % (s(s_m4, 2), v(vt1), v(vg)))
        a('s_mov_b32 %s, 0x3acccccd' % s(s_t1))
        a('v_mov_b32 %s, 0' % v(vt2))
        a('s_waitcnt lgkmcnt(0)')
        a('s_barrier')
        for nt in range(NT):
            a('s_lshl_b32 %s, %s, 6' % (s(s_t0), s(s_slot + nt)))
            a('v_lshl_add_u32 %s, %s, 4, %s' % (v(vt0), v(vg), s(s_t0)))
            a('v_add_u32 %s, 0x%x, %s' % (v(vt0), SCOL, v(vt0)))
            a('ds_read_b128 %s, %s' % (v(vcs[nt], 4), v(vt0)))
        for mt in range(MT):
            Gm = accG[mt]
            a('v_cndmask_b32 %s, %s, %s, %s' % (v(T1), v(Gm), v(Gm + 1), s(s_ex, 2)))
            a('v_cndmask_b32 %s, %s, %s, %s' % (v(T1), v(T1), v(Gm + 2), s(s_ex + 2, 2)))
            a('v_cndmask_b32 %s, %s, %s, vcc' % (v(T1), v(T1), v(Gm + 3)))
            a('v_cndmask_b32 %s, %s, %s, %s' % (v(T1), v(vt2), v(T1), s(s_m4, 2)))
            a('v_mov_b32 %s, %s' % (v(T0), v(T1)))
            a('v_permlane32_swap_b32 %s, %s' % (v(T1), v(T0)))
            a('v_add_f32 %s, %s, %s' % (v(T1), v(T1), v(T0)))
            a('v_mov_b32 %s, %s' % (v(T0), v(T1)))
            a('v_permlane16_swap_b32 %s, %s' % (v(T1), v(T0)))
            a('v_add_f32 %s, %s, %s' % (v(T1), v(T1), v(T0)))
            a('v_mul_f32 %s, %s, %s' % (v(T0), s(s_t1), v(accS[mt])))
            a('v_mul_f32 %s, %s, %s' % (v(T1), s(s_t1), v(T1)))
            a('v_fma_f32 %s, -%s, %s, %s' % (v(T1), v(T0), v(T0), v(T1)))
            a('v_max_f32 %s, 0, %s' % (v(T1), v(T1)))
            bf16_round(a, vmean[mt], T0)
            a('v_xor_b32 %s, 0x80000000, %s' % (v(vmean[mt]), v(vmean[mt])))
            bf16_round(a, T1, T1)
            a('v_add_f32 %s, 0x3727c5ac, %s' % (v(T1), v(T1)))
            bf16_round(a, T1, T1)
            a('v_sqrt_f32 %s, %s' % (v(T1), v(T1)))
            bf16_round(a, T1, T1)
            a('v_rcp_f32 %s, %s' % (v(vrinv[mt]), v(T1)))
        a('s_waitcnt lgkmcnt(0)')
        stamp(a, ST, 4)

    def ln_apply(A, mt, nt, relu):
        for h in range(2):
            a('v_pk_fma_f32 %s, %s, %s, %s op_sel_hi:[1,0,1]' % (v(A + 2 * h, 2), v(vcs[nt] + 2 * h, 2), v(vmean[mt], 2), v(A + 2 * h, 2)))
        for h in range(2):
            a('v_pk_mul_f32 %s, %s, %s op_sel_hi:[1,0]' % (v(A + 2 * h, 2), v(A + 2 * h, 2), v(vrinv[mt], 2)))
        a('v_cvt_pk_bf16_f32 %s, %s, %s' % (v(A), v(A), v(A + 1)))
        a('v_cvt_pk_bf16_f32 %s, %s, %s' % (v(A + 1), v(A + 2), v(A + 3)))
        if relu:
            a('v_pk_max_i16 %s, %s, 0' % (v(A), v(A)))
            a('v_pk_max_i16 %s, %s, 0' % (v(A + 1), v(A + 1)))

    cbuf = [fX[0][0], fX[0][1], fX[1][0], fX[1][1]] + [fW[1][j] for j in range(NT)] + [fW[0][j] for j in range(NT)]

    if epi == 'qkv':
        PS = 288
        assert 4 * 32 * PS <= STG_ROOM
        s_wb = s_kx
        a('s_mul_i32 %s, %s, %d' % (s(s_wb), s(s_wave), 32 * PS))
        a('s_add_u32 %s, %s, 0x%x' % (s(s_wb), s(s_wb), STG))
        vw = R.alloc()
        a('v_mul_u32_u24 %s, %d, %s' % (v(vw), PS, v(vg)))
        a('v_lshl_add_u32 %s, %s, 3, %s' % (v(vw), v(vi), v(vw)))
        a('v_add_u32 %s, %s, %s' % (v(vw), s(s_wb), v(vw)))
        vws = vWa
        for nt in range(NT):
            a('s_mul_i32 %s, %s, %d' % (s(s_t0), s(s_slot + nt), 4 * PS))
            a('v_add_u32 %s, %s, %s' % (v(vws[nt]), s(s_t0), v(vw)))
        for nt in range(NT):
            for mt in range(MT):
                A = acc[mt][nt]
                ln_apply(A, mt, nt, False)
                a('ds_write_b64 %s, %s offset:%d' % (v(vws[nt]), v(A, 2), mt * 128))
        vr, vgo = R.alloc(), R.alloc()
        a('v_mul_u32_u24 %s, %d, %s' % (v(vr), PS, v(vg)))
        a('v_lshl_add_u32 %s, %s, 4, %s' % (v(vr), v(vi), v(vr)))
        a('v_add_u32 %s, %s, %s' % (v(vr), s(s_wb), v(vr)))
        a('s_lshl_b32 %s, %s, 5' % (s(s_t0), s(s_wave)))
        a('s_add_u32 %s, %s, %s' % (s(s_t0), s(s_t0), s(s_tok0)))
        a('s_lshl_b32 %s, %s, 3' % (s(s_t0), s(s_t0)))
        a('s_lshl_b32 %s, %s, 19' % (s(s_t1), s(s_cb)))
        a('s_add_u32 %s, %s, %s' % (s(s_t0), s(s_t0), s(s_t1)))
        a('v_lshlrev_b32 %s, 14, %s' % (v(vgo), v(vg)))
        a('v_lshl_add_u32 %s, %s, 4, %s' % (v(vgo), v(vi), v(vgo)))
        a('v_add_u32 %s, %s, %s' % (v(vgo), s(s_t0), v(vgo)))
        a('s_waitcnt lgkmcnt(0)')
        stamp(a, ST, 5)
        for it in range(8):
            a('ds_read_b128 %s, %s offset:%d' % (v(cbuf[it], 4), v(vr), it * 4 * PS))
        for it in range(8):
            a('s_mov_b32 %s, %d' % (s(s_t0), it * 4 * 16384))
            a('s_waitcnt lgkmcnt(%d)' % (7 - it))
            a('buffer_store_dwordx4 %s, %s, %s, %s offen%s' % (v(cbuf[it], 4), v(vgo), s(sO, 4), s(s_t0), stf))
    elif epi == 'relu':
        RS = 272
        assert 4 * 32 * RS <= STG_ROOM
        s_wb = s_kx
        a('s_mul_i32 %s, %s, %d' % (s(s_wb), s(s_wave), 32 * RS))
        a('s_add_u32 %s, %s, 0x%x' % (s(s_wb), s(s_wb), STG))
        vw = R.alloc()
        a('v_mul_u32_u24 %s, %d, %s' % (v(vw), RS, v(vi)))
        a('v_lshl_add_u32 %s, %s, 3, %s' % (v(vw), v(vg), v(vw)))
        a('v_add_u32 %s, %s, %s' % (v(vw), s(s_wb), v(vw)))
        vws = vWa
        for nt in range(NT):
            a('s_lshl_b32 %s, %s, 5' % (s(s_t0), s(s_slot + nt)))
            a('v_add_u32 %s, %s, %s' % (v(vws[nt]), s(s_t0), v(vw)))
        for nt in range(NT):
            for mt in range(MT):
                A = acc[mt][nt]
                ln_apply(A, mt, nt, True)
                a('ds_write_b64 %s, %s offset:%d' % (v(vws[nt]), v(A, 2), mt * 16 * RS))
        vr, vgo = R.alloc(), R.alloc()
        a('v_mul_u32_u24 %s, %d, %s' % (v(vr), RS, v(vg)))
        a('v_lshl_add_u32 %s, %s, 4, %s' % (v(vr), v(vi), v(vr)))
        a('v_add_u32 %s, %s, %s' % (v(vr), s(s_wb), v(vr)))
        a('s_lshl_b32 %s, %s, 5' % (s(s_t0), s(s_wave)))
        a('s_add_u32 %s, %s, %s' % (s(s_t0), s(s_t0), s(s_tok0)))
        a('v_add_u32 %s, %s, %s' % (v(vgo), s(s_t0), v(vg)))
        a('v_mul_u32_u24 %s, %d, %s' % (v(vgo), N * 2, v(vgo)))
        a('v_lshl_add_u32 %s, %s, 4, %s' % (v(vgo), v(vi), v(vgo)))
        a('s_lshl_b32 %s, %s, 1' % (s(s_t0), s(s_col0)))
        a('v_add_u32 %s, %s, %s' % (v(vgo), s(s_t0), v(vgo)))
        nvalid_chunks = (N - (c['NB'] - 1) * BN) // 8
        a('s_cmp_eq_u32 %s, %d' % (s(s_cb), c['NB'] - 1))
        a('s_cselect_b32 %s, %d, 16' % (s(s_t1), nvalid_chunks))
        a('v_cmp_gt_u32 vcc, %s, %s' % (s(s_t1), v(vi)))
        a('s_waitcnt lgkmcnt(0)')
        stamp(a, ST, 5)
        for it in range(8):
            a('ds_read_b128 %s, %s offset:%d' % (v(cbuf[it], 4), v(vr), it * 4 * RS))
        a('s_and_saveexec_b64 %s, vcc' % s(s_ex, 2))
        for it in range(8):
            a('s_mov_b32 %s, %d' % (s(s_t0), it * 4 * N * 2))
            a('s_waitcnt lgkmcnt(%d)' % (7 - it))
            a('buffer_store_dwordx4 %s, %s, %s, %s offen%s' % (v(cbuf[it], 4), v(vgo), s(sO, 4), s(s_t0), stf))
        a('s_mov_b64 exec, %s' % s(s_ex, 2))
    elif epi == 'resid':
        RS = 144
        assert BM * RS <= STG_ROOM
        vw = R.alloc()
        a('s_mul_i32 %s, %s, %d' % (s(s_t0), s(s_wm), MT * 16 * RS))
        a('s_mul_i32 %s, %s, %d' % (s(s_t1), s(s_wn), NT * 32))
        a('s_add_u32 %s, %s, %s' % (s(s_t0), s(s_t0), s(s_t1)))
        a('s_add_u32 %s, %s, 0x%x' % (s(s_t0), s(s_t0), STG))
        a('v_mul_u32_u24 %s, %d, %s' % (v(vw), RS, v(vi)))
        a('v_lshl_add_u32 %s, %s, 3, %s' % (v(vw), v(vg), v(vw)))
        a('v_add_u32 %s, %s, %s' % (v(vw), s(s_t0), v(vw)))
        for nt in range(NT):
            for mt in range(MT):
                A = acc[mt][nt]
                a('v_cvt_pk_bf16_f32 %s, %s, %s' % (v(A), v(A), v(A + 1)))
                a('v_cvt_pk_bf16_f32 %s, %s, %s' % (v(A + 1), v(A + 2), v(A + 3)))
                a('ds_write_b64 %s, %s offset:%d' % (v(vw), v(A, 2), mt * 16 * RS + nt * 32))
        vr = R.alloc()
        a('s_mul_i32 %s, %s, %d' % (s(s_t0), s(s_wave), NCH * 8 * RS))
        a('s_add_u32 %s, %s, 0x%x' % (s(s_t0), s(s_t0), STG))
        a('v_lshrrev_b32 %s, 3, v0' % v(vr))
        a('v_mul_u32_u24 %s, %d, %s' % (v(vr), RS, v(vr)))
        a('v_and_b32 %s, 7, v0' % v(vt0))
        a('v_lshl_add_u32 %s, %s, 4, %s' % (v(vr), v(vt0), v(vr)))
        a('v_add_u32 %s, %s, %s' % (v(vr), s(s_t0), v(vr)))
        a('s_mov_b32 %s, 0xffff0000' % s(s_t0))
        a('s_waitcnt lgkmcnt(0)')
        a('s_barrier')
        for j in range(NCH):
            a('ds_read_b128 %s, %s offset:%d' % (v(cbuf[j], 4), v(vr), j * 8 * RS))
        a('s_waitcnt vmcnt(0)')
        for j in range(NCH):
            a('s_waitcnt lgkmcnt(%d)' % (NCH - 1 - j))
            Cb, Rr = cbuf[j], vRes[j]
            for h in range(4):
                a('v_lshlrev_b32 %s, 16, %s' % (v(vt0), v(Cb + h)))
                a('v_and_b32 %s, %s, %s' % (v(vt1), s(s_t0), v(Cb + h)))
                a('v_lshlrev_b32 %s, 16, %s' % (v(vt2), v(Rr + h)))
                a('v_and_b32 %s, %s, %s' % (v(vt3), s(s_t0), v(Rr + h)))
                a('v_add_f32 %s, %s, %s' % (v(vt0), v(vt0), v(vt2)))
                a('v_add_f32 %s, %s, %s' % (v(vt1), v(vt1), v(vt3)))
                a('v_cvt_pk_bf16_f32 %s, %s, %s' % (v(Cb + h), v(vt0), v(vt1)))
            a('buffer_store_dwordx4 %s, %s, %s, 0 offen%s' % (v(Cb, 4), v(vOut[j]), s(sO, 4), stf if c['o'][0] == 'ws' else ''))
    if mega:
        mstamp(a, 4)
        a('s_waitcnt vmcnt(0)')
        a('s_barrier')
        if c.get('sig'):
            mega_signal(a, c['sig'], s_rb, s_cb, vt0, s_t0, L('sig'))
        mflush(a, c['kidx'], L('mfl'))
        a('s_branch %s' % L('end'))
    else:
        stamp_flush(a, ST, c.get('kidx', 0), 3, s_wave, L('sdone'))
        a('s_endpgm')
    vmax = 254 if ST else R.hi

    a.label(L('loader'))
    R = Regs(1, 256, 'v')
    vt0, vt1, vt2, vt3, vl3, vl7 = [R.alloc() for _ in range(6)]
    s_lw = s_wave
    a('s_sub_u32 %s, %s, 4' % (s(s_lw), s(s_wave)))
    a('v_lshrrev_b32 %s, 3, v0' % v(vl3))
    a('v_and_b32 %s, 7, v0' % v(vl7))
    vX = [R.alloc() for _ in range(nX)]
    vXj = [R.alloc() for _ in range(nX)]
    vXo = [R.alloc() for _ in range(nX)]
    vW = [R.alloc() for _ in range(nW)]
    a('s_mul_i32 %s, %s, %d' % (s(s_t0), s(s_lw), BM // 4))
    for j in range(nX):
        a('s_add_u32 %s, %s, %d' % (s(s_t1), s(s_t0), 8 * j))
        a('v_add_u32 %s, %s, %s' % (v(vt0), s(s_t1), v(vl3)))
        a('v_bfe_u32 %s, %s, 1, 3' % (v(vt1), v(vt0)))
        a('v_xor_b32 %s, %s, %s' % (v(vt1), v(vt1), v(vl7)))
        a('v_add_u32 %s, %s, %s' % (v(vt0), s(s_tok0), v(vt0)))
        if pairX:
            a('v_mul_u32_u24 %s, 80, %s' % (v(vX[j]), v(vt0)))
            a('v_mov_b32 %s, %s' % (v(vXj[j]), v(vt1)))
        else:
            a('v_mul_u32_u24 %s, %d, %s' % (v(vt0), strideX, v(vt0)))
            a('v_lshl_add_u32 %s, %s, 4, %s' % (v(vX[j]), v(vt1), v(vt0)))
    lg = G.bit_length() - 1
    a('s_lshl_b32 %s, %s, 4' % (s(s_t0), s(s_lw)))
    a('s_lshl_b32 %s, %s, 1' % (s(s_t1), s(s_col0)))
    for j in range(nW):
        a('v_add_u32 %s, %d, v0' % (v(vt0), 64 * j))
        a('v_lshrrev_b32 %s, %d, %s' % (v(vt1), lg, v(vt0)))
        a('v_and_b32 %s, %d, %s' % (v(vt0), G - 1, v(vt0)))
        if rowW == 256:
            a('v_and_b32 %s, 7, %s' % (v(vt2), v(vt1)))
            a('v_lshlrev_b32 %s, 1, %s' % (v(vt2), v(vt2)))
        else:
            a('v_and_b32 %s, 6, %s' % (v(vt2), v(vt1)))
        a('v_xor_b32 %s, %s, %s' % (v(vt0), v(vt0), v(vt2)))
        a('v_and_b32 %s, 3, %s' % (v(vt2), v(vt1)))
        a('v_bfe_u32 %s, %s, 3, 1' % (v(vt3), v(vt1)))
        a('v_lshl_add_u32 %s, %s, 2, %s' % (v(vt2), v(vt3), v(vt2)))
        a('v_bfe_u32 %s, %s, 2, 1' % (v(vt3), v(vt1)))
        a('v_lshl_add_u32 %s, %s, 3, %s' % (v(vt2), v(vt3), v(vt2)))
        a('v_add_u32 %s, %s, %s' % (v(vt2), s(s_t0), v(vt2)))
        a('v_mul_u32_u24 %s, %d, %s' % (v(vt2), strideW, v(vt2)))
        a('v_lshl_add_u32 %s, %s, 4, %s' % (v(vt2), v(vt0), v(vt2)))
        a('v_add_u32 %s, %s, %s' % (v(vW[j]), s(s_t1), v(vt2)))
    a('s_mul_i32 %s, %s, %d' % (s(s_ldsX), s(s_lw), (BM // 4) * 128))
    a('s_mul_i32 %s, %s, %d' % (s(s_ldsW), s(s_lw), 16 * rowW))
    ra, rc = c['rot']
    a('s_mul_i32 %s, %s, %d' % (s(s_t2), s(s_t2), ra))
    a('s_mul_i32 %s, %s, %d' % (s(s_t3), s(s_t3), rc))
    a('s_add_u32 %s, %s, %s' % (s(s_st), s(s_t2), s(s_t3)))
    for _ in range(rot_max // S):
        a('s_cmp_ge_u32 %s, %d' % (s(s_st), S))
        a('s_cselect_b32 %s, %d, 0' % (s(s_t1), S))
        a('s_sub_u32 %s, %s, %s' % (s(s_st), s(s_st), s(s_t1)))
    a('s_lshl_b32 %s, %s, 7' % (s(s_kx), s(s_st)))
    a('s_mul_i32 %s, %s, %d' % (s(s_kw), s(s_st), 64 * strideW))
    a('s_waitcnt lgkmcnt(0)')
    build_srd(a, sX, pX, c['x'][1], c.get('xbytes', 2048 * strideX))
    build_srd(a, sW, pW, 0, K * strideW)

    ops = []
    s_kx2 = s_t4

    def issueW(st):
        base = (st % D) * SLOT
        for j in range(nW):
            a('s_add_u32 m0, %s, 0x%x' % (s(s_ldsW), base + XB + j * 1024))
            a('buffer_load_dwordx4 %s, %s, %s offen lds' % (v(vW[j]), s(sW, 4), s(s_kw)))
            ops.append(st)
        a('s_add_u32 %s, %s, %d' % (s(s_kw), s(s_kw), 64 * strideW))
        a('s_cmp_eq_u32 %s, %d' % (s(s_kw), S * 64 * strideW))
        a('s_cselect_b32 %s, 0, %s' % (s(s_kw), s(s_kw)))

    def issueX(st):
        base = (st % D) * SLOT
        for j in range(nX):
            if pairX:
                a('s_lshr_b32 %s, %s, 4' % (s(s_t0), s(s_kx)))
                a('v_add_u32 %s, %s, %s' % (v(vt0), s(s_t0), v(vXj[j])))
                a('v_mul_u32_u24 %s, 205, %s' % (v(vt1), v(vt0)))
                a('v_lshrrev_b32 %s, 10, %s' % (v(vt1), v(vt1)))
                a('v_mul_u32_u24 %s, 5, %s' % (v(vt2), v(vt1)))
                a('v_sub_u32 %s, %s, %s' % (v(vt0), v(vt0), v(vt2)))
                a('v_mul_u32_u24 %s, 163840, %s' % (v(vt1), v(vt1)))
                a('v_lshl_add_u32 %s, %s, 4, %s' % (v(vt1), v(vt0), v(vt1)))
                a('v_add_u32 %s, %s, %s' % (v(vXo[j]), v(vt1), v(vX[j])))
                a('s_add_u32 m0, %s, 0x%x' % (s(s_ldsX), base + j * 1024))
                a('buffer_load_dwordx4 %s, %s, 0 offen lds%s' % (v(vXo[j]), s(sX, 4), ldf))
            else:
                a('s_add_u32 m0, %s, 0x%x' % (s(s_ldsX), base + j * 1024))
                a('buffer_load_dwordx4 %s, %s, %s offen lds%s' % (v(vX[j]), s(sX, 4), s(s_kx), ldf))
            ops.append(st)
        a('s_add_u32 %s, %s, 128' % (s(s_kx), s(s_kx)))
        a('s_cmp_eq_u32 %s, %d' % (s(s_kx), S * 128))
        a('s_cselect_b32 %s, 0, %s' % (s(s_kx), s(s_kx)))

    def issue(st):
        issueW(st)
        issueX(st)

    def wait_stage(last_needed):
        n = 0
        for tag in reversed(ops):
            if tag <= last_needed:
                break
            n += 1
        a('s_waitcnt vmcnt(%d)' % min(63, n))

    issued = 0
    pf_done = False
    npro = max(GRP, min(D - GRP, S, c.get('pro', 3)))
    if dep:
        for u in range(npro):
            issueW(u)
        a('s_barrier')
        for u in range(npro):
            issueX(u)
        issued = npro
    else:
        for _ in range(npro):
            issue(issued)
            issued += 1
    for g in range(NG):
        last_needed = min(S, (g + 1) * GRP) - 1
        while issued <= last_needed:
            issue(issued)
            issued += 1
        wait_stage(last_needed)
        a('s_barrier')
        n = 0
        while issued < S and issued < (g + DG) * GRP and n < 2 * GRP:
            issue(issued)
            issued += 1
            n += 1
        if mega and issued == S and not pf_done:
            pf_done = True
            for wn in c.get('pfw', ()):
                vtid = R.alloc()
                a('v_lshl_add_u32 %s, %s, 6, v0' % (v(vtid), s(s_lw)))
                n0 = sum('buffer_load_dword ' in l for l in a.lines)
                weight_prefetch(a, wn, vtid, 256, [vt0, vt1, vt2], vt3, sO, MP[wn], [s_t0, s_t1, s_t2], preloaded=True)
                ops.extend([10 ** 9] * (sum('buffer_load_dword ' in l for l in a.lines) - n0))
    if LN:
        a('s_barrier')
    for wn in (() if mega else c.get('pfw', ())):
        vtid = R.alloc()
        a('v_lshl_add_u32 %s, %s, 6, v0' % (v(vtid), s(s_lw)))
        weight_prefetch(a, wn, vtid, 256, [vt0, vt1, vt2], vt3, sO, pO, [s_t0, s_t1, s_t2])
    if mega:
        if epi == 'resid':
            a('s_barrier')
        a('s_barrier')
        a.label(L('end'))
    else:
        a.label(L('end'))
        a('s_endpgm')
    vmax = max(vmax, R.hi)
    return dict(name=name, vgpr=vmax, sgpr=90 if ST else 60, lds=lds_total, block=512, grid=256)


CFG_QKV = dict(name='qkv_kernel', kidx=0, BM=128, BN=128, K=640, N=1920, WM=4, WN=1, D=4, LN=True, epi='qkv',
               x=('x', 0), w='wqkv', o=('ws', WS_QKV), obytes=QKV_BYTES, NB=15, map='p2', rb_per_xcd=4, cb_stride=8, rot=(3, 1), pfw=('wo',), sig='qkv')
CFG_WO = dict(name='wo_kernel', kidx=2, BM=96, BN=64, K=640, N=640, WM=2, WN=2, D=8, GRP=2, PD=3, pro=4, epi='resid', pairX=True, xbytes=16 * 163840,
              x=('ws', WS_O), w='wo', o=('ws', WS_H), obytes=2048 * 1280, r=('x', 0), map='22x10', rot=(2, 2), dep=('attn', 128, 16, 16), sig='wo')
CFG_W1 = dict(name='w1_kernel', kidx=3, BM=128, BN=128, K=640, N=1728, WM=4, WN=1, D=4, LN=True, epi='relu',
              x=('ws', WS_H), w='w1', o=('ws', WS_H1), obytes=2048 * 3456, NB=14, map='p2', rb_per_xcd=4, cb_stride=7, rot=(3, 1), dep=('wo', 96, 10, 22), sig='w1')
CFG_W2 = dict(name='w2_kernel', kidx=4, BM=96, BN=64, K=1728, N=640, WM=2, WN=2, D=8, GRP=2, PD=3, pro=4, epi='resid',
              x=('ws', WS_H1), w='w2', o=('out', 0), obytes=2048 * 1280, r=('ws', WS_H), map='22x10', rot=(4, 5), dep=('w1', 128, 14, 16))
```

```python
import sys, os
sys.path.insert(0, os.path.dirname(os.path.abspath(__file__)))
from asmlib import Asm
import gemm, attn

HEADER = """; Kernarg layout for this problem (72 bytes, ptrs only, base s[0:1]):
"""

KN = 'sequential_preLN__sliding_block__dense_activation_relu__prompt_kernel'


def build_mega(path, opts=()):
    from gemm import MP, M_WAVE, M_NONCE, M_FSRD, M_STAMP, WS_FLAG, WS_STAMP, build_srd
    from asmlib import s, v
    ST = 'stamps' in opts
    for o in opts:
        if '=' in o:
            k, val = o.split('=')
            cf, key = k.split('.')
            getattr(gemm, 'CFG_' + cf)[key] = eval(val)
    a = Asm()
    a.raw('.globl %s' % KN)
    a.raw('.p2align 8')
    a.raw('.type %s,@function' % KN)
    a.label(KN)
    a('s_cmp_ge_u32 s2, 256')
    a('s_cbranch_scc1 mega_end')
    a('s_load_dwordx4 s[64:67], s[0:1], 0')
    a('s_load_dwordx2 s[68:69], s[0:1], 16')
    a('s_load_dwordx4 s[70:73], s[0:1], 32') if False else None
    a('s_load_dwordx2 s[70:71], s[0:1], 32')
    a('s_load_dwordx2 s[72:73], s[0:1], 40')
    a('s_load_dwordx2 s[74:75], s[0:1], 48')
    a('s_load_dwordx2 s[76:77], s[0:1], 56')
    a('s_load_dwordx2 s[78:79], s[0:1], 64')
    a('s_memrealtime s[82:83]')
    gemm.MST[0] = ST
    a('v_lshrrev_b32 v1, 6, v0')
    a('v_and_b32 v0, 63, v0')
    a('v_readfirstlane_b32 %s, v1' % s(M_WAVE))
    a('s_waitcnt lgkmcnt(0)')
    build_srd(a, M_FSRD, MP['ws'], WS_FLAG, 16384)
    build_srd(a, 4, MP['dbg'], 0, 256)
    a('s_or_b32 s82, s82, 1')
    a('s_cmp_lg_u32 %s, 0' % s(M_WAVE))
    a('s_cbranch_scc1 mega_nn')
    a('v_mov_b32 v248, s82')
    a('v_mov_b32 v249, 0')
    a('v_mov_b32 v250, 0')
    a('s_mov_b64 exec, 1')
    a('buffer_atomic_cmpswap v[248:249], v250, s[4:7], 0 offen sc0 sc1')
    a('s_mov_b64 exec, -1')
    a.label('mega_nn')
    infos = []
    phases = [('g', gemm.CFG_QKV), ('a', None), ('g', gemm.CFG_WO), ('g', gemm.CFG_W1), ('g', gemm.CFG_W2)]
    for pi, (k, cfg) in enumerate(phases):
        if k == 'g':
            cfg['mega'] = True
            if pi == 0:
                cfg['pre_sig'] = True
            infos.append(gemm.gen_gemm(a, cfg))
        else:
            infos.append(attn.gen_attn(a, False, True))
        if pi == 0:
            pass
    a.label('mega_end')
    a('s_endpgm')
    lds = max(i['lds'] for i in infos)
    out = HEADER
    out += '; @launch grid=(256,1,1) block=(512,1,1) lds=%d\n' % lds
    out += '.amdgcn_target "amdgcn-amd-amdhsa--gfx950"\n.text\n'
    out += a.text()
    out += '.section .rodata,"a"\n.p2align 6\n.amdhsa_kernel %s\n' % KN
    out += '  .amdhsa_next_free_vgpr 256\n  .amdhsa_next_free_sgpr 102\n  .amdhsa_accum_offset 256\n'
    out += '  .amdhsa_group_segment_fixed_size 0\n  .amdhsa_kernarg_size 72\n  .amdhsa_user_sgpr_count 2\n'
    out += '  .amdhsa_user_sgpr_kernarg_segment_ptr 1\n  .amdhsa_system_sgpr_workgroup_id_x 1\n.end_amdhsa_kernel\n'
    open(path, 'w').write(out)
    print(infos)
    print('nops inserted', a.nops_inserted, 'lines', len(a.lines))


def build(path, opts=()):
    if 'mega' in opts:
        return build_mega(path, opts)
    a = Asm()
    for cfg in (gemm.CFG_QKV, gemm.CFG_WO, gemm.CFG_W1, gemm.CFG_W2):
        for o in opts:
            cfg[o] = True
    infos = []
    infos.append(gemm.gen_gemm(a, gemm.CFG_QKV))
    infos.append(attn.gen_attn(a, 'stamps' in opts))
    infos.append(gemm.gen_gemm(a, gemm.CFG_WO))
    infos.append(gemm.gen_gemm(a, gemm.CFG_W1))
    infos.append(gemm.gen_gemm(a, gemm.CFG_W2))
    out = HEADER
    for i in infos:
        out += '; @launch kernel=%s grid=(%d,1,1) block=(%d,1,1) lds=%d\n' % (i['name'], i['grid'], i['block'], i['lds'])
    out += '.amdgcn_target "amdgcn-amd-amdhsa--gfx950"\n.text\n'
    out += a.text()
    out += '.section .rodata,"a"\n'
    for i in infos:
        nv = (i['vgpr'] + 7) // 8 * 8
        out += '.p2align 6\n.amdhsa_kernel %s\n' % i['name']
        out += '  .amdhsa_next_free_vgpr %d\n' % nv
        out += '  .amdhsa_next_free_sgpr %d\n' % i['sgpr']
        out += '  .amdhsa_accum_offset %d\n' % nv
        out += '  .amdhsa_group_segment_fixed_size 0\n  .amdhsa_kernarg_size 72\n  .amdhsa_user_sgpr_count 2\n'
        out += '  .amdhsa_user_sgpr_kernarg_segment_ptr 1\n  .amdhsa_system_sgpr_workgroup_id_x 1\n.end_amdhsa_kernel\n'
    open(path, 'w').write(out)
    for i in infos:
        print(i)
    print('nops inserted', a.nops_inserted, 'lines', len(a.lines))

if __name__ == '__main__':
    p = sys.argv[1] if len(sys.argv) > 1 else 'sequential_preLN__sliding_block__dense_activation_relu__prompt.s'
    build(p, sys.argv[2:])
```

```python
from asmlib import Asm, Regs, v, s

WS_QKV = 0
WS_O = 0x800000
WS_H = 0xB00000
WS_H1 = 0x1000000
QKV_BYTES = 96 * 81920
WS_STAMP = 0x3000000
STAMP_S = 60

KA = dict(x=0, wqkv=8, wo=16, bx=24, w1=32, w2=40, out=48, dbg=56, ws=64)
STFLAG = ''


def build_srd(a, sr, sptr, off, nbytes):
    if off:
        a('s_add_u32 %s, %s, 0x%x' % (s(sr), s(sptr), off))
        a('s_addc_u32 %s, %s, 0' % (s(sr + 1), s(sptr + 1)))
        a('s_and_b32 %s, %s, 0xffff' % (s(sr + 1), s(sr + 1)))
    else:
        a('s_mov_b32 %s, %s' % (s(sr), s(sptr)))
        a('s_and_b32 %s, %s, 0xffff' % (s(sr + 1), s(sptr + 1)))
    a('s_mov_b32 %s, 0x%x' % (s(sr + 2), nbytes))
    a('s_mov_b32 %s, 0x20000' % s(sr + 3))


def stamp(a, on, i):
    if on:
        a('s_memrealtime %s' % s(STAMP_S + 2 * i, 2))


def stamp_flush(a, on, kidx, n, s_wave, lbl):
    if not on:
        return
    a('s_waitcnt vmcnt(0)')
    stamp(a, on, n)
    a('s_load_dwordx2 s[80:81], s[0:1], %d' % KA['ws'])
    a('s_waitcnt lgkmcnt(0)')
    a('s_cmp_lg_u32 %s, 0' % s(s_wave))
    a('s_cbranch_scc1 %s' % lbl)
    build_srd(a, 76, 80, WS_STAMP + kidx * 16384, 16384)
    a('s_lshl_b32 s82, s2, 6')
    a('v_mov_b32 v250, s82')
    a('s_mov_b64 exec, 1')
    for i in range(6):
        a('v_mov_b32 v252, %s' % s(STAMP_S + 2 * i))
        a('v_mov_b32 v253, %s' % s(STAMP_S + 2 * i + 1))
        a('buffer_store_dwordx2 v[252:253], v250, s[76:79], 0 offen offset:%d' % (8 * i))
        a('s_nop 1')
    a('s_mov_b64 exec, -1')
    a.label(lbl)


PF = dict(wo=(640, 1280, 5, 640), w1=(640, 3456, 14, 1792), w2=(1728, 1280, 5, 640))


def weight_prefetch(a, wname, vtid, nthreads, vt, vdst, sr, sp, st, preloaded=False):
    nrows, stride, lpr, half = PF[wname]
    total = nrows * lpr
    per = (total + 31) // 32
    if not preloaded:
        a('s_load_dwordx2 %s, s[0:1], %d' % (s(sp, 2), KA[wname]))
    a('s_lshr_b32 %s, s2, 3' % s(st[0]))
    a('s_mul_i32 %s, %s, %d' % (s(st[0]), s(st[0]), per))
    a('s_add_u32 %s, %s, %d' % (s(st[1]), s(st[0]), per))
    a('s_min_u32 %s, %s, %d' % (s(st[1]), s(st[1]), total))
    a('s_and_b32 %s, s2, 1' % s(st[2]))
    a('s_mul_i32 %s, %s, %d' % (s(st[2]), s(st[2]), half))
    sh = 16
    while True:
        magic = ((1 << sh) + lpr - 1) // lpr
        if all((f * magic) >> sh == f // lpr for f in range(0, total + 2048)) and (total + 2048) * magic < (1 << 32):
            break
        sh += 1
    if not preloaded:
        a('s_waitcnt lgkmcnt(0)')
    build_srd(a, sr, sp, 0, nrows * stride)
    for it in range((per + nthreads - 1) // nthreads):
        a('v_add_u32 %s, %s, %s' % (v(vt[0]), s(st[0]), v(vtid)))
        if it:
            a('v_add_u32 %s, %d, %s' % (v(vt[0]), it * nthreads, v(vt[0])))
        a('v_mul_u32_u24 %s, %d, %s' % (v(vt[1]), magic, v(vt[0])))
        a('v_lshrrev_b32 %s, %d, %s' % (v(vt[1]), sh, v(vt[1])))
        a('v_mul_u32_u24 %s, %d, %s' % (v(vt[2]), lpr, v(vt[1])))
        a('v_sub_u32 %s, %s, %s' % (v(vt[2]), v(vt[0]), v(vt[2])))
        a('v_mul_u32_u24 %s, %d, %s' % (v(vt[1]), stride, v(vt[1])))
        a('v_lshl_add_u32 %s, %s, 7, %s' % (v(vt[1]), v(vt[2]), v(vt[1])))
        a('v_cmp_gt_u32 vcc, %s, %s' % (s(st[1]), v(vt[0])))
        a('v_mov_b32 %s, -1' % v(vt[2]))
        a('v_cndmask_b32 %s, %s, %s, vcc' % (v(vt[1]), v(vt[2]), v(vt[1])))
        a('buffer_load_dword %s, %s, %s, %s offen' % (v(vdst), v(vt[1]), s(sr, 4), s(st[2])))


WS_FLAG = 0x2000000
MP = dict(x=64, wqkv=66, wo=68, w1=70, w2=72, out=74, dbg=76, ws=78)
M_WAVE, M_NONCE, M_FSRD, M_STAMP = 80, 81, 84, 90
FLAG_OFF = dict(qkv=0, attn=2048, wo=4096, w1=8192)
POLL_LIMIT = 200000


MST = [False]


def mstamp(a, i):
    if MST[0]:
        a('s_memrealtime %s' % s(M_STAMP + 2 * i, 2))


def mflush(a, phase, lbl):
    if not MST[0]:
        return
    mstamp(a, 5)
    a('s_waitcnt lgkmcnt(0)')
    a('s_cmp_lg_u32 %s, 0' % s(M_WAVE))
    a('s_cbranch_scc1 %s' % lbl)
    build_srd(a, 4, MP['ws'], WS_STAMP + phase * 16384, 16384)
    a('s_lshl_b32 s8, s2, 6')
    a('v_mov_b32 v250, s8')
    a('s_mov_b64 exec, 1')
    for i in range(6):
        a('v_mov_b32 v252, %s' % s(M_STAMP + 2 * i))
        a('v_mov_b32 v253, %s' % s(M_STAMP + 2 * i + 1))
        a('buffer_store_dwordx2 v[252:253], v250, s[4:7], 0 offen offset:%d' % (8 * i))
        a('s_nop 1')
    a('s_mov_b64 exec, -1')
    a.label(lbl)


def mega_nonce(a):
    a('s_waitcnt vmcnt(0)')
    a('v_readfirstlane_b32 %s, v248' % s(M_NONCE))
    a('s_cmp_eq_u32 %s, 0' % s(M_NONCE))
    a('s_cselect_b32 %s, s82, %s' % (s(M_NONCE), s(M_NONCE)))


def mega_signal(a, table, s_row, s_col, vtmp, stmp, lbl):
    a('s_cmp_lg_u32 %s, 0' % s(M_WAVE))
    a('s_cbranch_scc1 %s' % lbl)
    mega_nonce(a)
    a('s_lshl_b32 %s, %s, 4' % (s(stmp), s(s_row)))
    a('s_add_u32 %s, %s, %s' % (s(stmp), s(stmp), s(s_col)))
    a('s_lshl_b32 %s, %s, 3' % (s(stmp), s(stmp)))
    a('s_add_u32 %s, %s, %d' % (s(stmp), s(stmp), FLAG_OFF[table]))
    a('v_mov_b32 %s, %s' % (v(vtmp), s(stmp)))
    a('v_mov_b32 v244, %s' % s(M_NONCE))
    a('v_not_b32 v245, v244')
    a('s_mov_b64 exec, 1')
    a('buffer_store_dwordx2 v[244:245], %s, %s, 0 offen sc1' % (v(vtmp), s(M_FSRD, 4)))
    a('s_mov_b64 exec, -1')
    a.label(lbl)


def mega_wait(a, table, s_r0, s_r1, ncol, vt, st, lbl):
    a('s_cmp_lg_u32 %s, 0' % s(M_WAVE))
    a('s_cbranch_scc1 %s' % (lbl + '_done'))
    mega_nonce(a)
    a('v_lshrrev_b32 %s, 4, v0' % v(vt[0]))
    a('v_add_u32 %s, %s, %s' % (v(vt[0]), s(s_r0), v(vt[0])))
    a('v_and_b32 %s, 15, v0' % v(vt[1]))
    a('v_cmp_gt_u32 %s, %d, %s' % (s(st[1], 2), ncol, v(vt[1])))
    a('v_cmp_le_i32 vcc, 0, %s' % v(vt[0]))
    a('s_and_b64 %s, %s, vcc' % (s(st[1], 2), s(st[1], 2)))
    a('v_cmp_ge_i32 vcc, %s, %s' % (s(s_r1), v(vt[0])))
    a('s_and_b64 %s, %s, vcc' % (s(st[1], 2), s(st[1], 2)))
    a('v_lshl_add_u32 %s, %s, 4, %s' % (v(vt[0]), v(vt[0]), v(vt[1])))
    a('v_lshlrev_b32 %s, 3, %s' % (v(vt[0]), v(vt[0])))
    a('v_add_u32 %s, %d, %s' % (v(vt[0]), FLAG_OFF[table], v(vt[0])))
    a('s_mov_b32 %s, 0' % s(st[0]))
    a('s_mov_b64 exec, %s' % s(st[1], 2))
    a.label(lbl + '_loop')
    a('buffer_load_dwordx2 v[244:245], %s, %s, 0 offen sc1' % (v(vt[0]), s(M_FSRD, 4)))
    a('s_waitcnt vmcnt(0)')
    a('v_not_b32 v245, v245')
    a('v_xor_b32 v244, %s, v244' % s(M_NONCE))
    a('v_xor_b32 v245, %s, v245' % s(M_NONCE))
    a('v_or_b32 v244, v244, v245')
    a('v_cmp_ne_u32 vcc, 0, v244')
    a('s_nop 1')
    a('s_cbranch_vccz %s' % (lbl + '_ok'))
    a('s_sleep 1')
    a('s_add_u32 %s, %s, 1' % (s(st[0]), s(st[0])))
    a('s_cmp_lt_u32 %s, %d' % (s(st[0]), POLL_LIMIT))
    a('s_cbranch_scc1 %s' % (lbl + '_loop'))
    a.label(lbl + '_ok')
    a('s_mov_b64 exec, -1')
    a.label(lbl + '_done')


def bf16_round(a, dst, src):
    a('v_cvt_pk_bf16_f32 %s, %s, %s' % (v(dst), v(src), v(src)))
    a('v_lshlrev_b32 %s, 16, %s' % (v(dst), v(dst)))


def gen_gemm(a, c):
    name = c['name']
    BM, BN, K, N = c['BM'], c['BN'], c['K'], c['N']
    WM, WN = c['WM'], c['WN']
    D = c['D']
    LN = c.get('LN', False)
    epi = c['epi']
    ST = c.get('stamps', False)
    MT = BM // 16 // WM
    NT = BN // 16 // WN
    S = K // 64
    G = BN // 8
    rowW = BN * 2
    assert rowW in (128, 256)
    XB = BM * 128
    WB = 64 * rowW
    SLOT = XB + WB
    SCOL = D * SLOT
    SROW = SCOL + BN * 4
    lds_total = SROW + BM * 8 if LN else SCOL
    strideX = K * 2
    strideW = N * 2
    nX = BM // 32
    nW = 16 * G // 64
    nDMA = nX + nW
    pairX = c.get('pairX', False)
    GRP = c.get('GRP', 1)
    PD = c.get('PD', 1)
    assert D % GRP == 0
    DG = D // GRP
    NG = (S + GRP - 1) // GRP
    last_g = (NG - 1) % DG
    GS = GRP * SLOT
    STG = (last_g + 1) * GS if last_g + 1 < DG else 0
    STG_ROOM = (DG - last_g - 1) * GS if last_g + 1 < DG else last_g * GS
    if LN and lds_total > 163840:
        SCOL = STG + STG_ROOM - 1024
        STG_ROOM -= 1024
        lds_total = D * SLOT
    mega = c.get('mega', False)
    stf = ' sc1' if mega else STFLAG
    ldf = ' sc1' if (mega and c['x'][0] == 'ws') else ''
    L = lambda x: '%s_%s' % (name, x)

    sX, sW, sO, sR = 4, 8, 12, 16
    pX, pW, pO, pR = 20, 22, 24, 26
    s_rb, s_cb, s_wave, s_t0, s_t1, s_kx, s_kw, s_ldsX, s_ldsW, s_st = 28, 29, 30, 31, 32, 33, 34, 35, 36, 37
    s_wm, s_wn, s_tok0, s_col0 = 38, 39, 40, 41
    s_ex = 42
    s_slot = 46
    s_t2, s_t3, s_t4, s_t5 = 54, 55, 56, 57
    s_m4 = 58

    if mega:
        ST = False
        pX, pW, pO = MP[c['x'][0]], MP[c['w']], MP[c['o'][0]]
        if epi == 'resid':
            pR = MP[c['r'][0]]
        a.label(name)
        mstamp(a, 0)
    else:
        a.raw('.p2align 8')
        a.raw('.globl %s' % name)
        a.raw('.type %s,@function' % name)
        a.label(name)
        stamp(a, ST, 0)
        a('s_load_dwordx2 %s, s[0:1], %d' % (s(pX, 2), KA[c['x'][0]]))
        a('s_load_dwordx2 %s, s[0:1], %d' % (s(pW, 2), KA[c['w']]))
        a('s_load_dwordx2 %s, s[0:1], %d' % (s(pO, 2), KA[c['o'][0]]))
        if epi == 'resid':
            a('s_load_dwordx2 %s, s[0:1], %d' % (s(pR, 2), KA[c['r'][0]]))
        a('s_cmp_ge_u32 s2, 256')
        a('s_cbranch_scc1 %s' % L('end'))
    a('s_and_b32 %s, s2, 7' % s(s_t0))
    a('s_lshr_b32 %s, s2, 3' % s(s_t1))
    if c['map'] == 'p2':
        RBX = c['rb_per_xcd']
        a('s_and_b32 %s, %s, %d' % (s(s_t2), s(s_t1), RBX - 1))
        a('s_lshr_b32 %s, %s, %d' % (s(s_t3), s(s_t1), RBX.bit_length() - 1))
        a('s_lshr_b32 %s, %s, 1' % (s(s_rb), s(s_t0)))
        a('s_mul_i32 %s, %s, %d' % (s(s_rb), s(s_rb), RBX))
        a('s_add_u32 %s, %s, %s' % (s(s_rb), s(s_rb), s(s_t2)))
        a('s_and_b32 %s, %s, 1' % (s(s_cb), s(s_t0)))
        a('s_mul_i32 %s, %s, %d' % (s(s_cb), s(s_cb), c['cb_stride']))
        a('s_cmp_ge_u32 %s, %d' % (s(s_t3), c['cb_stride']))
        a('s_cbranch_scc1 %s' % L('end'))
        a('s_add_u32 %s, %s, %s' % (s(s_cb), s(s_cb), s(s_t3)))
        a('s_cmp_ge_u32 %s, %d' % (s(s_cb), c['NB']))
        a('s_cbranch_scc1 %s' % L('end'))
        rot_max = c['rot'][0] * (RBX - 1) + c['rot'][1] * (c['cb_stride'] - 1)
    else:
        a('s_mul_i32 %s, %s, 205' % (s(s_t2), s(s_t1)))
        a('s_lshr_b32 %s, %s, 10' % (s(s_t2), s(s_t2)))
        a('s_mul_i32 %s, %s, 5' % (s(s_t3), s(s_t2)))
        a('s_sub_u32 %s, %s, %s' % (s(s_t3), s(s_t1), s(s_t3)))
        a('s_lshr_b32 %s, %s, 1' % (s(s_t1), s(s_t0)))
        a('s_mul_i32 %s, %s, 11' % (s(s_rb), s(s_t1)))
        a('s_add_u32 %s, %s, 12' % (s(s_t4), s(s_rb)))
        a('s_lshr_b32 %s, %s, 1' % (s(s_t4), s(s_t4)))
        a('s_add_u32 %s, %s, 1' % (s(s_rb), s(s_rb)))
        a('s_lshr_b32 %s, %s, 1' % (s(s_rb), s(s_rb)))
        a('s_add_u32 %s, %s, %s' % (s(s_rb), s(s_rb), s(s_t2)))
        a('s_cmp_ge_u32 %s, %s' % (s(s_rb), s(s_t4)))
        a('s_cbranch_scc1 %s' % L('end'))
        a('s_and_b32 %s, %s, 1' % (s(s_cb), s(s_t0)))
        a('s_mul_i32 %s, %s, 5' % (s(s_cb), s(s_cb)))
        a('s_add_u32 %s, %s, %s' % (s(s_cb), s(s_cb), s(s_t3)))
        rot_max = c['rot'][0] * 5 + c['rot'][1] * 4
    if mega:
        a('s_mov_b32 %s, %s' % (s(s_wave), s(M_WAVE)))
    else:
        a('v_lshrrev_b32 v1, 6, v0')
        a('v_and_b32 v0, 63, v0')
        a('v_readfirstlane_b32 %s, v1' % s(s_wave))
    a('s_mul_i32 %s, %s, %d' % (s(s_tok0), s(s_rb), BM))
    a('s_mul_i32 %s, %s, %d' % (s(s_col0), s(s_cb), BN))
    a('s_cmp_ge_u32 %s, 4' % s(s_wave))
    a('s_cbranch_scc1 %s' % L('loader'))

    R = Regs(1, 256, 'v')
    vg, vi, vt0, vt1, vt2, vt3 = [R.alloc() for _ in range(6)]
    a('v_lshrrev_b32 %s, 4, v0' % v(vg))
    a('v_and_b32 %s, 15, v0' % v(vi))
    if WN == 1:
        a('s_mov_b32 %s, %s' % (s(s_wm), s(s_wave)))
        a('s_mov_b32 %s, 0' % s(s_wn))
    else:
        assert WN == 2
        a('s_lshr_b32 %s, %s, 1' % (s(s_wm), s(s_wave)))
        a('s_and_b32 %s, %s, 1' % (s(s_wn), s(s_wave)))
    vXa = [R.alloc() for _ in range(2)]
    vXs = [R.alloc() for _ in range(2)]
    a('s_mul_i32 %s, %s, %d' % (s(s_t0), s(s_wm), MT * 16 * 128))
    a('v_lshrrev_b32 %s, 1, %s' % (v(vt0), v(vi)))
    a('v_lshlrev_b32 %s, 7, %s' % (v(vt1), v(vi)))
    a('v_add_u32 %s, %s, %s' % (v(vt1), s(s_t0), v(vt1)))
    for ks in range(2):
        a('v_add_u32 %s, %d, %s' % (v(vt2), 4 * ks, v(vg)))
        a('v_xor_b32 %s, %s, %s' % (v(vt2), v(vt2), v(vt0)))
        a('v_lshl_add_u32 %s, %s, 4, %s' % (v(vXa[ks]), v(vt2), v(vt1)))
    vWa = [R.alloc() for _ in range(NT)]
    vWs = [R.alloc() for _ in range(NT)]
    a('v_lshrrev_b32 %s, 2, %s' % (v(vt0), v(vi)))
    a('v_and_b32 %s, 1, %s' % (v(vt1), v(vg)))
    a('v_lshl_add_u32 %s, %s, 2, %s' % (v(vt0), v(vt1), v(vt0)))
    a('v_lshrrev_b32 %s, 1, %s' % (v(vt1), v(vg)))
    a('v_lshl_add_u32 %s, %s, 4, %s' % (v(vt1), v(vt1), v(vt0)))
    a('v_mul_u32_u24 %s, %d, %s' % (v(vt1), rowW, v(vt1)))
    a('v_and_b32 %s, 1, %s' % (v(vt2), v(vi)))
    a('v_lshl_add_u32 %s, %s, 3, %s' % (v(vt1), v(vt2), v(vt1)))
    a('v_bfe_u32 %s, %s, 1, 1' % (v(vt2), v(vi)))
    a('v_lshl_add_u32 %s, %s, 4, %s' % (v(vt1), v(vt2), v(vt1)))
    a('v_add_u32 %s, %d, %s' % (v(vt1), XB, v(vt1)))
    if rowW == 256:
        a('v_lshlrev_b32 %s, 1, %s' % (v(vt0), v(vt0)))
    else:
        a('v_and_b32 %s, 6, %s' % (v(vt0), v(vt0)))
    for nt in range(NT):
        if LN:
            a('s_lshl_b32 %s, %s, 1' % (s(s_t0), s(s_wave)))
            a('s_add_u32 %s, %s, %d' % (s(s_t0), s(s_t0), nt))
            a('s_and_b32 %s, %s, 7' % (s(s_slot + nt), s(s_t0)))
        else:
            a('s_mul_i32 %s, %s, %d' % (s(s_t0), s(s_wn), NT))
            a('s_add_u32 %s, %s, %d' % (s(s_slot + nt), s(s_t0), nt))
        a('s_lshl_b32 %s, %s, 1' % (s(s_t0), s(s_slot + nt)))
        a('v_xor_b32 %s, %s, %s' % (v(vt2), s(s_t0), v(vt0)))
        a('v_lshl_add_u32 %s, %s, 4, %s' % (v(vWa[nt]), v(vt2), v(vt1)))
    a('s_waitcnt lgkmcnt(0)')
    build_srd(a, sO, pO, c['o'][1], c['obytes'])

    if epi == 'resid':
        build_srd(a, sR, pR, c['r'][1], 2048 * 1280)
        NCH = BM * 8 // 64 // 4
        vOut = [R.alloc() for _ in range(NCH)]
        vRes = [R.alloc(4, 4) for _ in range(NCH)]
        a('s_mul_i32 %s, %s, %d' % (s(s_t0), s(s_wave), NCH * 8))
        a('s_add_u32 %s, %s, %s' % (s(s_t0), s(s_t0), s(s_tok0)))
        a('v_lshrrev_b32 %s, 3, v0' % v(vt0))
        a('v_add_u32 %s, %s, %s' % (v(vt0), s(s_t0), v(vt0)))
        a('v_mul_u32_u24 %s, 1280, %s' % (v(vt0), v(vt0)))
        a('v_and_b32 %s, 7, v0' % v(vt1))
        a('v_lshl_add_u32 %s, %s, 4, %s' % (v(vt0), v(vt1), v(vt0)))
        a('s_lshl_b32 %s, %s, 1' % (s(s_t0), s(s_col0)))
        a('v_add_u32 %s, %s, %s' % (v(vOut[0]), s(s_t0), v(vt0)))
        for j in range(1, NCH):
            a('v_add_u32 %s, %d, %s' % (v(vOut[j]), j * 8 * 1280, v(vOut[0])))
        for j in range(NCH):
            a('buffer_load_dwordx4 %s, %s, %s, 0 offen%s' % (v(vRes[j], 4), v(vOut[j]), s(sR, 4), ' sc1' if (mega and c['r'][0] == 'ws') else ''))

    acc = [[R.alloc(4, 4) for nt in range(NT)] for mt in range(MT)]
    NS = PD + 1
    fX = [[R.alloc(4, 4) for mt in range(MT)] for _ in range(NS)]
    fW = [[R.alloc(4, 4) for nt in range(NT)] for _ in range(NS)]
    nreads = MT + 2 * NT

    def addr(u):
        base = (u % D) * SLOT
        out = []
        for ks in range(2):
            out.append('v_add_u32 %s, 0x%x, %s' % (v(vXs[ks]), base, v(vXa[ks])))
        for j in range(NT):
            out.append('v_add_u32 %s, 0x%x, %s' % (v(vWs[j]), base, v(vWa[j])))
        return out

    def reads(j):
        u, ks = j // 2, j % 2
        setn = j % NS
        out = addr(u) if ks == 0 else []
        if c.get('nocompute') or c.get('noreads'):
            return out
        for mt in range(MT):
            out.append('ds_read_b128 %s, %s offset:%d' % (v(fX[setn][mt], 4), v(vXs[ks]), mt * 2048))
        for nt in range(NT):
            for hf in range(2):
                off = (32 * ks + 8 * hf) * rowW
                out.append('ds_read_b64_tr_b16 %s, %s offset:%d' % (v(fW[setn][nt] + 2 * hf, 2), v(vWs[nt]), off))
        return out

    if LN:
        assert WN == 1 and NT == 8
        vones = R.alloc(4, 4)
        for r in range(4):
            a('v_mov_b32 %s, 0x3f803f80' % v(vones + r))
        accC = [R.alloc(4, 4) for _ in range(2)]
        accS = [R.alloc(4, 4) for _ in range(MT)]
        accG = [R.alloc(4, 4) for _ in range(MT)]

    def mfmas(j):
        setn = j % NS
        first = j == 0
        out = []
        if (c.get('nocompute') or c.get('nomfma')) and not first:
            return out
        M = 'v_mfma_f32_16x16x32_bf16 %s, %s, %s, %s'
        for nt in range(NT):
            for mt in range(MT):
                cc = '0' if first else v(acc[mt][nt], 4)
                out.append(M % (v(acc[mt][nt], 4), v(fW[setn][nt], 4), v(fX[setn][mt], 4), cc))
            if LN and (first or not c.get('nostat')):
                if nt < 2:
                    cc = '0' if first else v(accC[nt], 4)
                    out.append(M % (v(accC[nt], 4), v(fW[setn][nt], 4), v(vones, 4), cc))
                elif nt < 2 + MT:
                    mt = nt - 2
                    cc = '0' if first else v(accS[mt], 4)
                    out.append(M % (v(accS[mt], 4), v(vones, 4), v(fX[setn][mt], 4), cc))
                elif nt < 2 + 2 * MT:
                    mt = nt - 2 - MT
                    cc = '0' if first else v(accG[mt], 4)
                    out.append(M % (v(accG[mt], 4), v(fX[setn][mt], 4), v(fX[setn][mt], 4), cc))
        return out

    J = 2 * S
    dep = c.get('dep') if mega else None
    if dep:
        table, rowsz, ncol, nrow_max = dep
        mg = (1 << 20) // rowsz + 1
        a('s_mul_i32 %s, %s, %d' % (s(s_t0), s(s_tok0), mg))
        a('s_lshr_b32 %s, %s, 20' % (s(s_t0), s(s_t0)))
        a('s_add_u32 %s, %s, %d' % (s(s_t1), s(s_tok0), BM - 1))
        a('s_mul_i32 %s, %s, %d' % (s(s_t1), s(s_t1), mg))
        a('s_lshr_b32 %s, %s, 20' % (s(s_t1), s(s_t1)))
        a('s_min_u32 %s, %s, %d' % (s(s_t1), s(s_t1), nrow_max - 1))
        for tk in range(0, 2200):
            assert (tk * mg) >> 20 == tk // rowsz
        mega_wait(a, table, s_t0, s_t1, ncol, [vt0, vt1, vt2], [s_t4, s_ex], L('dep'))
        a('s_barrier')
    if mega:
        mstamp(a, 1)
    a('s_barrier')
    if mega:
        mstamp(a, 2)
    stamp(a, ST, 1)
    for j in range(min(PD, J)):
        assert j < 2 * GRP
        for x in reads(j):
            a(x)
    for j in range(J):
        younger = min(J - 1, j + PD - 1) - j
        a('s_waitcnt lgkmcnt(%d)' % min(15, younger * nreads))
        M = mfmas(j)
        jn = j + PD
        Rd = reads(jn) if jn < J else []
        need_bar = jn < J and jn % (2 * GRP) == 0
        k = 0
        if need_bar:
            pre = len(M) // 4
            for x in M[:pre]:
                a(x)
            k = pre
            a('s_waitcnt lgkmcnt(0)')
            a('s_barrier')
        rest = M[k:]
        span = max(1, (len(rest) * 3) // 4)
        ri = 0
        for i, x in enumerate(rest):
            a(x)
            want = (len(Rd) * (i + 1) + span - 1) // span if i < span else len(Rd)
            while ri < min(want, len(Rd)):
                a(Rd[ri])
                ri += 1
        while ri < len(Rd):
            a(Rd[ri])
            ri += 1

    stamp(a, ST, 2)
    if mega:
        mstamp(a, 3)
    if LN:
        vmean = [R.alloc(2) for _ in range(MT)]
        vrinv = [R.alloc(2) for _ in range(MT)]
        vcs = [R.alloc(4, 4) for _ in range(NT)]
        T0, T1 = fW[0][0], fW[0][1]
        for j in range(2):
            a('s_lshl_b32 %s, %s, 6' % (s(s_t0), s(s_slot + j)))
            a('v_lshl_add_u32 %s, %s, 4, %s' % (v(vt0), v(vg), s(s_t0)))
            a('v_add_u32 %s, 0x%x, %s' % (v(vt0), SCOL, v(vt0)))
            a('ds_write_b128 %s, %s' % (v(vt0), v(accC[j], 4)))
        a('v_and_b32 %s, 3, %s' % (v(vt0), v(vi)))
        a('v_lshrrev_b32 %s, 2, %s' % (v(vt1), v(vi)))
        a('v_cmp_eq_u32 %s, 1, %s' % (s(s_ex, 2), v(vt0)))
        a('v_cmp_eq_u32 %s, 2, %s' % (s(s_ex + 2, 2), v(vt0)))
        a('v_cmp_eq_u32 vcc, 3, %s' % v(vt0))
        a('v_cmp_eq_u32 %s, %s, %s' % (s(s_m4, 2), v(vt1), v(vg)))
        a('s_mov_b32 %s, 0x3acccccd' % s(s_t1))
        a('v_mov_b32 %s, 0' % v(vt2))
        a('s_waitcnt lgkmcnt(0)')
        a('s_barrier')
        for nt in range(NT):
            a('s_lshl_b32 %s, %s, 6' % (s(s_t0), s(s_slot + nt)))
            a('v_lshl_add_u32 %s, %s, 4, %s' % (v(vt0), v(vg), s(s_t0)))
            a('v_add_u32 %s, 0x%x, %s' % (v(vt0), SCOL, v(vt0)))
            a('ds_read_b128 %s, %s' % (v(vcs[nt], 4), v(vt0)))
        for mt in range(MT):
            Gm = accG[mt]
            a('v_cndmask_b32 %s, %s, %s, %s' % (v(T1), v(Gm), v(Gm + 1), s(s_ex, 2)))
            a('v_cndmask_b32 %s, %s, %s, %s' % (v(T1), v(T1), v(Gm + 2), s(s_ex + 2, 2)))
            a('v_cndmask_b32 %s, %s, %s, vcc' % (v(T1), v(T1), v(Gm + 3)))
            a('v_cndmask_b32 %s, %s, %s, %s' % (v(T1), v(vt2), v(T1), s(s_m4, 2)))
            a('v_mov_b32 %s, %s' % (v(T0), v(T1)))
            a('v_permlane32_swap_b32 %s, %s' % (v(T1), v(T0)))
            a('v_add_f32 %s, %s, %s' % (v(T1), v(T1), v(T0)))
            a('v_mov_b32 %s, %s' % (v(T0), v(T1)))
            a('v_permlane16_swap_b32 %s, %s' % (v(T1), v(T0)))
            a('v_add_f32 %s, %s, %s' % (v(T1), v(T1), v(T0)))
            a('v_mul_f32 %s, %s, %s' % (v(T0), s(s_t1), v(accS[mt])))
            a('v_mul_f32 %s, %s, %s' % (v(T1), s(s_t1), v(T1)))
            a('v_fma_f32 %s, -%s, %s, %s' % (v(T1), v(T0), v(T0), v(T1)))
            a('v_max_f32 %s, 0, %s' % (v(T1), v(T1)))
            bf16_round(a, vmean[mt], T0)
            a('v_xor_b32 %s, 0x80000000, %s' % (v(vmean[mt]), v(vmean[mt])))
            bf16_round(a, T1, T1)
            a('v_add_f32 %s, 0x3727c5ac, %s' % (v(T1), v(T1)))
            bf16_round(a, T1, T1)
            a('v_sqrt_f32 %s, %s' % (v(T1), v(T1)))
            bf16_round(a, T1, T1)
            a('v_rcp_f32 %s, %s' % (v(vrinv[mt]), v(T1)))
        a('s_waitcnt lgkmcnt(0)')
        stamp(a, ST, 4)

    def ln_apply(A, mt, nt, relu):
        for h in range(2):
            a('v_pk_fma_f32 %s, %s, %s, %s op_sel_hi:[1,0,1]' % (v(A + 2 * h, 2), v(vcs[nt] + 2 * h, 2), v(vmean[mt], 2), v(A + 2 * h, 2)))
        for h in range(2):
            a('v_pk_mul_f32 %s, %s, %s op_sel_hi:[1,0]' % (v(A + 2 * h, 2), v(A + 2 * h, 2), v(vrinv[mt], 2)))
        a('v_cvt_pk_bf16_f32 %s, %s, %s' % (v(A), v(A), v(A + 1)))
        a('v_cvt_pk_bf16_f32 %s, %s, %s' % (v(A + 1), v(A + 2), v(A + 3)))
        if relu:
            a('v_pk_max_i16 %s, %s, 0' % (v(A), v(A)))
            a('v_pk_max_i16 %s, %s, 0' % (v(A + 1), v(A + 1)))

    cbuf = [fX[0][0], fX[0][1], fX[1][0], fX[1][1]] + [fW[1][j] for j in range(NT)] + [fW[0][j] for j in range(NT)]

    if epi == 'qkv':
        PS = 288
        assert 4 * 32 * PS <= STG_ROOM
        s_wb = s_kx
        a('s_mul_i32 %s, %s, %d' % (s(s_wb), s(s_wave), 32 * PS))
        a('s_add_u32 %s, %s, 0x%x' % (s(s_wb), s(s_wb), STG))
        vw = R.alloc()
        a('v_mul_u32_u24 %s, %d, %s' % (v(vw), PS, v(vg)))
        a('v_lshl_add_u32 %s, %s, 3, %s' % (v(vw), v(vi), v(vw)))
        a('v_add_u32 %s, %s, %s' % (v(vw), s(s_wb), v(vw)))
        vws = vWa
        for nt in range(NT):
            a('s_mul_i32 %s, %s, %d' % (s(s_t0), s(s_slot + nt), 4 * PS))
            a('v_add_u32 %s, %s, %s' % (v(vws[nt]), s(s_t0), v(vw)))
        for nt in range(NT):
            for mt in range(MT):
                A = acc[mt][nt]
                ln_apply(A, mt, nt, False)
                a('ds_write_b64 %s, %s offset:%d' % (v(vws[nt]), v(A, 2), mt * 128))
        vr, vgo = R.alloc(), R.alloc()
        a('v_mul_u32_u24 %s, %d, %s' % (v(vr), PS, v(vg)))
        a('v_lshl_add_u32 %s, %s, 4, %s' % (v(vr), v(vi), v(vr)))
        a('v_add_u32 %s, %s, %s' % (v(vr), s(s_wb), v(vr)))
        a('s_lshl_b32 %s, %s, 5' % (s(s_t0), s(s_wave)))
        a('s_add_u32 %s, %s, %s' % (s(s_t0), s(s_t0), s(s_tok0)))
        a('s_lshl_b32 %s, %s, 3' % (s(s_t0), s(s_t0)))
        a('s_lshl_b32 %s, %s, 19' % (s(s_t1), s(s_cb)))
        a('s_add_u32 %s, %s, %s' % (s(s_t0), s(s_t0), s(s_t1)))
        a('v_lshlrev_b32 %s, 14, %s' % (v(vgo), v(vg)))
        a('v_lshl_add_u32 %s, %s, 4, %s' % (v(vgo), v(vi), v(vgo)))
        a('v_add_u32 %s, %s, %s' % (v(vgo), s(s_t0), v(vgo)))
        a('s_waitcnt lgkmcnt(0)')
        stamp(a, ST, 5)
        for it in range(8):
            a('ds_read_b128 %s, %s offset:%d' % (v(cbuf[it], 4), v(vr), it * 4 * PS))
        for it in range(8):
            a('s_mov_b32 %s, %d' % (s(s_t0), it * 4 * 16384))
            a('s_waitcnt lgkmcnt(%d)' % (7 - it))
            a('buffer_store_dwordx4 %s, %s, %s, %s offen%s' % (v(cbuf[it], 4), v(vgo), s(sO, 4), s(s_t0), stf))
    elif epi == 'relu':
        RS = 272
        assert 4 * 32 * RS <= STG_ROOM
        s_wb = s_kx
        a('s_mul_i32 %s, %s, %d' % (s(s_wb), s(s_wave), 32 * RS))
        a('s_add_u32 %s, %s, 0x%x' % (s(s_wb), s(s_wb), STG))
        vw = R.alloc()
        a('v_mul_u32_u24 %s, %d, %s' % (v(vw), RS, v(vi)))
        a('v_lshl_add_u32 %s, %s, 3, %s' % (v(vw), v(vg), v(vw)))
        a('v_add_u32 %s, %s, %s' % (v(vw), s(s_wb), v(vw)))
        vws = vWa
        for nt in range(NT):
            a('s_lshl_b32 %s, %s, 5' % (s(s_t0), s(s_slot + nt)))
            a('v_add_u32 %s, %s, %s' % (v(vws[nt]), s(s_t0), v(vw)))
        for nt in range(NT):
            for mt in range(MT):
                A = acc[mt][nt]
                ln_apply(A, mt, nt, True)
                a('ds_write_b64 %s, %s offset:%d' % (v(vws[nt]), v(A, 2), mt * 16 * RS))
        vr, vgo = R.alloc(), R.alloc()
        a('v_mul_u32_u24 %s, %d, %s' % (v(vr), RS, v(vg)))
        a('v_lshl_add_u32 %s, %s, 4, %s' % (v(vr), v(vi), v(vr)))
        a('v_add_u32 %s, %s, %s' % (v(vr), s(s_wb), v(vr)))
        a('s_lshl_b32 %s, %s, 5' % (s(s_t0), s(s_wave)))
        a('s_add_u32 %s, %s, %s' % (s(s_t0), s(s_t0), s(s_tok0)))
        a('v_add_u32 %s, %s, %s' % (v(vgo), s(s_t0), v(vg)))
        a('v_mul_u32_u24 %s, %d, %s' % (v(vgo), N * 2, v(vgo)))
        a('v_lshl_add_u32 %s, %s, 4, %s' % (v(vgo), v(vi), v(vgo)))
        a('s_lshl_b32 %s, %s, 1' % (s(s_t0), s(s_col0)))
        a('v_add_u32 %s, %s, %s' % (v(vgo), s(s_t0), v(vgo)))
        nvalid_chunks = (N - (c['NB'] - 1) * BN) // 8
        a('s_cmp_eq_u32 %s, %d' % (s(s_cb), c['NB'] - 1))
        a('s_cselect_b32 %s, %d, 16' % (s(s_t1), nvalid_chunks))
        a('v_cmp_gt_u32 vcc, %s, %s' % (s(s_t1), v(vi)))
        a('s_waitcnt lgkmcnt(0)')
        stamp(a, ST, 5)
        for it in range(8):
            a('ds_read_b128 %s, %s offset:%d' % (v(cbuf[it], 4), v(vr), it * 4 * RS))
        a('s_and_saveexec_b64 %s, vcc' % s(s_ex, 2))
        for it in range(8):
            a('s_mov_b32 %s, %d' % (s(s_t0), it * 4 * N * 2))
            a('s_waitcnt lgkmcnt(%d)' % (7 - it))
            a('buffer_store_dwordx4 %s, %s, %s, %s offen%s' % (v(cbuf[it], 4), v(vgo), s(sO, 4), s(s_t0), stf))
        a('s_mov_b64 exec, %s' % s(s_ex, 2))
    elif epi == 'resid':
        RS = 144
        assert BM * RS <= STG_ROOM
        vw = R.alloc()
        a('s_mul_i32 %s, %s, %d' % (s(s_t0), s(s_wm), MT * 16 * RS))
        a('s_mul_i32 %s, %s, %d' % (s(s_t1), s(s_wn), NT * 32))
        a('s_add_u32 %s, %s, %s' % (s(s_t0), s(s_t0), s(s_t1)))
        a('s_add_u32 %s, %s, 0x%x' % (s(s_t0), s(s_t0), STG))
        a('v_mul_u32_u24 %s, %d, %s' % (v(vw), RS, v(vi)))
        a('v_lshl_add_u32 %s, %s, 3, %s' % (v(vw), v(vg), v(vw)))
        a('v_add_u32 %s, %s, %s' % (v(vw), s(s_t0), v(vw)))
        for nt in range(NT):
            for mt in range(MT):
                A = acc[mt][nt]
                a('v_cvt_pk_bf16_f32 %s, %s, %s' % (v(A), v(A), v(A + 1)))
                a('v_cvt_pk_bf16_f32 %s, %s, %s' % (v(A + 1), v(A + 2), v(A + 3)))
                a('ds_write_b64 %s, %s offset:%d' % (v(vw), v(A, 2), mt * 16 * RS + nt * 32))
        vr = R.alloc()
        a('s_mul_i32 %s, %s, %d' % (s(s_t0), s(s_wave), NCH * 8 * RS))
        a('s_add_u32 %s, %s, 0x%x' % (s(s_t0), s(s_t0), STG))
        a('v_lshrrev_b32 %s, 3, v0' % v(vr))
        a('v_mul_u32_u24 %s, %d, %s' % (v(vr), RS, v(vr)))
        a('v_and_b32 %s, 7, v0' % v(vt0))
        a('v_lshl_add_u32 %s, %s, 4, %s' % (v(vr), v(vt0), v(vr)))
        a('v_add_u32 %s, %s, %s' % (v(vr), s(s_t0), v(vr)))
        a('s_mov_b32 %s, 0xffff0000' % s(s_t0))
        a('s_waitcnt lgkmcnt(0)')
        a('s_barrier')
        for j in range(NCH):
            a('ds_read_b128 %s, %s offset:%d' % (v(cbuf[j], 4), v(vr), j * 8 * RS))
        a('s_waitcnt vmcnt(0)')
        for j in range(NCH):
            a('s_waitcnt lgkmcnt(%d)' % (NCH - 1 - j))
            Cb, Rr = cbuf[j], vRes[j]
            for h in range(4):
                a('v_lshlrev_b32 %s, 16, %s' % (v(vt0), v(Cb + h)))
                a('v_and_b32 %s, %s, %s' % (v(vt1), s(s_t0), v(Cb + h)))
                a('v_lshlrev_b32 %s, 16, %s' % (v(vt2), v(Rr + h)))
                a('v_and_b32 %s, %s, %s' % (v(vt3), s(s_t0), v(Rr + h)))
                a('v_add_f32 %s, %s, %s' % (v(vt0), v(vt0), v(vt2)))
                a('v_add_f32 %s, %s, %s' % (v(vt1), v(vt1), v(vt3)))
                a('v_cvt_pk_bf16_f32 %s, %s, %s' % (v(Cb + h), v(vt0), v(vt1)))
            a('buffer_store_dwordx4 %s, %s, %s, 0 offen%s' % (v(Cb, 4), v(vOut[j]), s(sO, 4), stf if (c['o'][0] == 'ws' or c.get('outsc1')) else ''))
    if mega:
        mstamp(a, 4)
        a('s_waitcnt vmcnt(0)')
        a('s_barrier')
        if c.get('sig'):
            mega_signal(a, c['sig'], s_rb, s_cb, vt0, s_t0, L('sig'))
        mflush(a, c['kidx'], L('mfl'))
        a('s_branch %s' % L('end'))
    else:
        stamp_flush(a, ST, c.get('kidx', 0), 3, s_wave, L('sdone'))
        a('s_endpgm')
    vmax = 254 if ST else R.hi

    a.label(L('loader'))
    R = Regs(1, 256, 'v')
    vt0, vt1, vt2, vt3, vl3, vl7 = [R.alloc() for _ in range(6)]
    s_lw = s_wave
    a('s_sub_u32 %s, %s, 4' % (s(s_lw), s(s_wave)))
    a('v_lshrrev_b32 %s, 3, v0' % v(vl3))
    a('v_and_b32 %s, 7, v0' % v(vl7))
    vX = [R.alloc() for _ in range(nX)]
    vXj = [R.alloc() for _ in range(nX)]
    vXo = [R.alloc() for _ in range(nX)]
    vW = [R.alloc() for _ in range(nW)]
    a('s_mul_i32 %s, %s, %d' % (s(s_t0), s(s_lw), BM // 4))
    for j in range(nX):
        a('s_add_u32 %s, %s, %d' % (s(s_t1), s(s_t0), 8 * j))
        a('v_add_u32 %s, %s, %s' % (v(vt0), s(s_t1), v(vl3)))
        a('v_bfe_u32 %s, %s, 1, 3' % (v(vt1), v(vt0)))
        a('v_xor_b32 %s, %s, %s' % (v(vt1), v(vt1), v(vl7)))
        a('v_add_u32 %s, %s, %s' % (v(vt0), s(s_tok0), v(vt0)))
        if pairX:
            a('v_mul_u32_u24 %s, 80, %s' % (v(vX[j]), v(vt0)))
            a('v_mov_b32 %s, %s' % (v(vXj[j]), v(vt1)))
        else:
            a('v_mul_u32_u24 %s, %d, %s' % (v(vt0), strideX, v(vt0)))
            a('v_lshl_add_u32 %s, %s, 4, %s' % (v(vX[j]), v(vt1), v(vt0)))
    lg = G.bit_length() - 1
    a('s_lshl_b32 %s, %s, 4' % (s(s_t0), s(s_lw)))
    a('s_lshl_b32 %s, %s, 1' % (s(s_t1), s(s_col0)))
    for j in range(nW):
        a('v_add_u32 %s, %d, v0' % (v(vt0), 64 * j))
        a('v_lshrrev_b32 %s, %d, %s' % (v(vt1), lg, v(vt0)))
        a('v_and_b32 %s, %d, %s' % (v(vt0), G - 1, v(vt0)))
        if rowW == 256:
            a('v_and_b32 %s, 7, %s' % (v(vt2), v(vt1)))
            a('v_lshlrev_b32 %s, 1, %s' % (v(vt2), v(vt2)))
        else:
            a('v_and_b32 %s, 6, %s' % (v(vt2), v(vt1)))
        a('v_xor_b32 %s, %s, %s' % (v(vt0), v(vt0), v(vt2)))
        a('v_and_b32 %s, 3, %s' % (v(vt2), v(vt1)))
        a('v_bfe_u32 %s, %s, 3, 1' % (v(vt3), v(vt1)))
        a('v_lshl_add_u32 %s, %s, 2, %s' % (v(vt2), v(vt3), v(vt2)))
        a('v_bfe_u32 %s, %s, 2, 1' % (v(vt3), v(vt1)))
        a('v_lshl_add_u32 %s, %s, 3, %s' % (v(vt2), v(vt3), v(vt2)))
        a('v_add_u32 %s, %s, %s' % (v(vt2), s(s_t0), v(vt2)))
        a('v_mul_u32_u24 %s, %d, %s' % (v(vt2), strideW, v(vt2)))
        a('v_lshl_add_u32 %s, %s, 4, %s' % (v(vt2), v(vt0), v(vt2)))
        a('v_add_u32 %s, %s, %s' % (v(vW[j]), s(s_t1), v(vt2)))
    a('s_mul_i32 %s, %s, %d' % (s(s_ldsX), s(s_lw), (BM // 4) * 128))
    a('s_mul_i32 %s, %s, %d' % (s(s_ldsW), s(s_lw), 16 * rowW))
    ra, rc = c['rot']
    a('s_mul_i32 %s, %s, %d' % (s(s_t2), s(s_t2), ra))
    a('s_mul_i32 %s, %s, %d' % (s(s_t3), s(s_t3), rc))
    a('s_add_u32 %s, %s, %s' % (s(s_st), s(s_t2), s(s_t3)))
    for _ in range(rot_max // S):
        a('s_cmp_ge_u32 %s, %d' % (s(s_st), S))
        a('s_cselect_b32 %s, %d, 0' % (s(s_t1), S))
        a('s_sub_u32 %s, %s, %s' % (s(s_st), s(s_st), s(s_t1)))
    a('s_lshl_b32 %s, %s, 7' % (s(s_kx), s(s_st)))
    a('s_mul_i32 %s, %s, %d' % (s(s_kw), s(s_st), 64 * strideW))
    a('s_waitcnt lgkmcnt(0)')
    build_srd(a, sX, pX, c['x'][1], c.get('xbytes', 2048 * strideX))
    build_srd(a, sW, pW, 0, K * strideW)

    ops = []
    s_kx2 = s_t4

    def issueW(st):
        base = (st % D) * SLOT
        for j in range(nW):
            a('s_add_u32 m0, %s, 0x%x' % (s(s_ldsW), base + XB + j * 1024))
            a('buffer_load_dwordx4 %s, %s, %s offen lds' % (v(vW[j]), s(sW, 4), s(s_kw)))
            ops.append(st)
        a('s_add_u32 %s, %s, %d' % (s(s_kw), s(s_kw), 64 * strideW))
        a('s_cmp_eq_u32 %s, %d' % (s(s_kw), S * 64 * strideW))
        a('s_cselect_b32 %s, 0, %s' % (s(s_kw), s(s_kw)))

    def issueX(st):
        base = (st % D) * SLOT
        for j in range(nX):
            if pairX:
                a('s_lshr_b32 %s, %s, 4' % (s(s_t0), s(s_kx)))
                a('v_add_u32 %s, %s, %s' % (v(vt0), s(s_t0), v(vXj[j])))
                a('v_mul_u32_u24 %s, 205, %s' % (v(vt1), v(vt0)))
                a('v_lshrrev_b32 %s, 10, %s' % (v(vt1), v(vt1)))
                a('v_mul_u32_u24 %s, 5, %s' % (v(vt2), v(vt1)))
                a('v_sub_u32 %s, %s, %s' % (v(vt0), v(vt0), v(vt2)))
                a('v_mul_u32_u24 %s, 163840, %s' % (v(vt1), v(vt1)))
                a('v_lshl_add_u32 %s, %s, 4, %s' % (v(vt1), v(vt0), v(vt1)))
                a('v_add_u32 %s, %s, %s' % (v(vXo[j]), v(vt1), v(vX[j])))
                a('s_add_u32 m0, %s, 0x%x' % (s(s_ldsX), base + j * 1024))
                a('buffer_load_dwordx4 %s, %s, 0 offen lds%s' % (v(vXo[j]), s(sX, 4), ldf))
            else:
                a('s_add_u32 m0, %s, 0x%x' % (s(s_ldsX), base + j * 1024))
                a('buffer_load_dwordx4 %s, %s, %s offen lds%s' % (v(vX[j]), s(sX, 4), s(s_kx), ldf))
            ops.append(st)
        a('s_add_u32 %s, %s, 128' % (s(s_kx), s(s_kx)))
        a('s_cmp_eq_u32 %s, %d' % (s(s_kx), S * 128))
        a('s_cselect_b32 %s, 0, %s' % (s(s_kx), s(s_kx)))

    def issue(st):
        issueW(st)
        issueX(st)

    def wait_stage(last_needed):
        n = 0
        for tag in reversed(ops):
            if tag <= last_needed:
                break
            n += 1
        a('s_waitcnt vmcnt(%d)' % min(63, n))

    issued = 0
    pf_done = False
    npro = max(GRP, min(D - GRP, S, c.get('pro', 3)))
    if dep:
        for u in range(npro):
            issueW(u)
        a('s_barrier')
        for u in range(npro):
            issueX(u)
        issued = npro
    else:
        for _ in range(npro):
            issue(issued)
            issued += 1
    for g in range(NG):
        last_needed = min(S, (g + 1) * GRP) - 1
        while issued <= last_needed:
            issue(issued)
            issued += 1
        wait_stage(last_needed)
        a('s_barrier')
        n = 0
        while issued < S and issued < (g + DG) * GRP and n < 2 * GRP:
            issue(issued)
            issued += 1
            n += 1
        if mega and issued == S and not pf_done:
            pf_done = True
            for wn in c.get('pfw', ()):
                vtid = R.alloc()
                a('v_lshl_add_u32 %s, %s, 6, v0' % (v(vtid), s(s_lw)))
                n0 = sum('buffer_load_dword ' in l for l in a.lines)
                weight_prefetch(a, wn, vtid, 256, [vt0, vt1, vt2], vt3, sO, MP[wn], [s_t0, s_t1, s_t2], preloaded=True)
                ops.extend([10 ** 9] * (sum('buffer_load_dword ' in l for l in a.lines) - n0))
    if LN:
        a('s_barrier')
    for wn in (() if mega else c.get('pfw', ())):
        vtid = R.alloc()
        a('v_lshl_add_u32 %s, %s, 6, v0' % (v(vtid), s(s_lw)))
        weight_prefetch(a, wn, vtid, 256, [vt0, vt1, vt2], vt3, sO, pO, [s_t0, s_t1, s_t2])
    if mega:
        if epi == 'resid':
            a('s_barrier')
        a('s_barrier')
        a.label(L('end'))
    else:
        a.label(L('end'))
        a('s_endpgm')
    vmax = max(vmax, R.hi)
    return dict(name=name, vgpr=vmax, sgpr=90 if ST else 60, lds=lds_total, block=512, grid=256)


CFG_QKV = dict(name='qkv_kernel', kidx=0, BM=128, BN=128, K=640, N=1920, WM=4, WN=1, D=4, LN=True, epi='qkv',
               x=('x', 0), w='wqkv', o=('ws', WS_QKV), obytes=QKV_BYTES, NB=15, map='p2', rb_per_xcd=4, cb_stride=8, rot=(3, 1), pfw=('wo',), sig='qkv')
CFG_WO = dict(name='wo_kernel', kidx=2, BM=96, BN=64, K=640, N=640, WM=2, WN=2, D=8, GRP=2, PD=3, pro=4, epi='resid', pairX=True, xbytes=16 * 163840,
              x=('ws', WS_O), w='wo', o=('ws', WS_H), obytes=2048 * 1280, r=('x', 0), map='22x10', rot=(2, 2), dep=('attn', 128, 16, 16), sig='wo')
CFG_W1 = dict(name='w1_kernel', kidx=3, BM=128, BN=128, K=640, N=1728, WM=4, WN=1, D=4, LN=True, epi='relu',
              x=('ws', WS_H), w='w1', o=('ws', WS_H1), obytes=2048 * 3456, NB=14, map='p2', rb_per_xcd=4, cb_stride=7, rot=(3, 1), dep=('wo', 96, 10, 22), sig='w1')
CFG_W2 = dict(name='w2_kernel', kidx=4, BM=96, BN=64, K=1728, N=640, WM=2, WN=2, D=8, GRP=2, PD=3, pro=4, epi='resid',
              x=('ws', WS_H1), w='w2', o=('out', 0), obytes=2048 * 1280, r=('ws', WS_H), map='22x10', rot=(4, 5), dep=('w1', 128, 14, 16))
```

```python
from asmlib import Asm, Regs, v, s

WS_QKV = 0
WS_O = 0x800000
WS_H = 0xB00000
WS_H1 = 0x1000000
QKV_BYTES = 96 * 81920
WS_STAMP = 0x3000000
STAMP_S = 60

KA = dict(x=0, wqkv=8, wo=16, bx=24, w1=32, w2=40, out=48, dbg=56, ws=64)
STFLAG = ''


def build_srd(a, sr, sptr, off, nbytes):
    if off:
        a('s_add_u32 %s, %s, 0x%x' % (s(sr), s(sptr), off))
        a('s_addc_u32 %s, %s, 0' % (s(sr + 1), s(sptr + 1)))
        a('s_and_b32 %s, %s, 0xffff' % (s(sr + 1), s(sr + 1)))
    else:
        a('s_mov_b32 %s, %s' % (s(sr), s(sptr)))
        a('s_and_b32 %s, %s, 0xffff' % (s(sr + 1), s(sptr + 1)))
    a('s_mov_b32 %s, 0x%x' % (s(sr + 2), nbytes))
    a('s_mov_b32 %s, 0x20000' % s(sr + 3))


def stamp(a, on, i):
    if on:
        a('s_memrealtime %s' % s(STAMP_S + 2 * i, 2))


def stamp_flush(a, on, kidx, n, s_wave, lbl):
    if not on:
        return
    a('s_waitcnt vmcnt(0)')
    stamp(a, on, n)
    a('s_load_dwordx2 s[80:81], s[0:1], %d' % KA['ws'])
    a('s_waitcnt lgkmcnt(0)')
    a('s_cmp_lg_u32 %s, 0' % s(s_wave))
    a('s_cbranch_scc1 %s' % lbl)
    build_srd(a, 76, 80, WS_STAMP + kidx * 16384, 16384)
    a('s_lshl_b32 s82, s2, 6')
    a('v_mov_b32 v250, s82')
    a('s_mov_b64 exec, 1')
    for i in range(6):
        a('v_mov_b32 v252, %s' % s(STAMP_S + 2 * i))
        a('v_mov_b32 v253, %s' % s(STAMP_S + 2 * i + 1))
        a('buffer_store_dwordx2 v[252:253], v250, s[76:79], 0 offen offset:%d' % (8 * i))
        a('s_nop 1')
    a('s_mov_b64 exec, -1')
    a.label(lbl)


PF = dict(wo=(640, 1280, 5, 640), w1=(640, 3456, 14, 1792), w2=(1728, 1280, 5, 640))


def weight_prefetch(a, wname, vtid, nthreads, vt, vdst, sr, sp, st, preloaded=False):
    nrows, stride, lpr, half = PF[wname]
    total = nrows * lpr
    per = (total + 31) // 32
    if not preloaded:
        a('s_load_dwordx2 %s, s[0:1], %d' % (s(sp, 2), KA[wname]))
    a('s_lshr_b32 %s, s2, 3' % s(st[0]))
    a('s_mul_i32 %s, %s, %d' % (s(st[0]), s(st[0]), per))
    a('s_add_u32 %s, %s, %d' % (s(st[1]), s(st[0]), per))
    a('s_min_u32 %s, %s, %d' % (s(st[1]), s(st[1]), total))
    a('s_and_b32 %s, s2, 1' % s(st[2]))
    a('s_mul_i32 %s, %s, %d' % (s(st[2]), s(st[2]), half))
    sh = 16
    while True:
        magic = ((1 << sh) + lpr - 1) // lpr
        if all((f * magic) >> sh == f // lpr for f in range(0, total + 2048)) and (total + 2048) * magic < (1 << 32):
            break
        sh += 1
    if not preloaded:
        a('s_waitcnt lgkmcnt(0)')
    build_srd(a, sr, sp, 0, nrows * stride)
    for it in range((per + nthreads - 1) // nthreads):
        a('v_add_u32 %s, %s, %s' % (v(vt[0]), s(st[0]), v(vtid)))
        if it:
            a('v_add_u32 %s, %d, %s' % (v(vt[0]), it * nthreads, v(vt[0])))
        a('v_mul_u32_u24 %s, %d, %s' % (v(vt[1]), magic, v(vt[0])))
        a('v_lshrrev_b32 %s, %d, %s' % (v(vt[1]), sh, v(vt[1])))
        a('v_mul_u32_u24 %s, %d, %s' % (v(vt[2]), lpr, v(vt[1])))
        a('v_sub_u32 %s, %s, %s' % (v(vt[2]), v(vt[0]), v(vt[2])))
        a('v_mul_u32_u24 %s, %d, %s' % (v(vt[1]), stride, v(vt[1])))
        a('v_lshl_add_u32 %s, %s, 7, %s' % (v(vt[1]), v(vt[2]), v(vt[1])))
        a('v_cmp_gt_u32 vcc, %s, %s' % (s(st[1]), v(vt[0])))
        a('v_mov_b32 %s, -1' % v(vt[2]))
        a('v_cndmask_b32 %s, %s, %s, vcc' % (v(vt[1]), v(vt[2]), v(vt[1])))
        a('buffer_load_dword %s, %s, %s, %s offen' % (v(vdst), v(vt[1]), s(sr, 4), s(st[2])))


WS_FLAG = 0x2000000
MP = dict(x=64, wqkv=66, wo=68, w1=70, w2=72, out=74, dbg=76, ws=78)
M_WAVE, M_NONCE, M_FSRD, M_STAMP = 80, 81, 84, 90
FLAG_OFF = dict(qkv=0, attn=2048, wo=4096, w1=8192)
POLL_LIMIT = 200000


MST = [False]


def mstamp(a, i):
    if MST[0]:
        a('s_memrealtime %s' % s(M_STAMP + 2 * i, 2))


def mflush(a, phase, lbl):
    if not MST[0]:
        return
    mstamp(a, 5)
    a('s_waitcnt lgkmcnt(0)')
    a('s_cmp_lg_u32 %s, 0' % s(M_WAVE))
    a('s_cbranch_scc1 %s' % lbl)
    build_srd(a, 4, MP['ws'], WS_STAMP + phase * 16384, 16384)
    a('s_lshl_b32 s8, s2, 6')
    a('v_mov_b32 v250, s8')
    a('s_mov_b64 exec, 1')
    for i in range(6):
        a('v_mov_b32 v252, %s' % s(M_STAMP + 2 * i))
        a('v_mov_b32 v253, %s' % s(M_STAMP + 2 * i + 1))
        a('buffer_store_dwordx2 v[252:253], v250, s[4:7], 0 offen offset:%d' % (8 * i))
        a('s_nop 1')
    a('s_mov_b64 exec, -1')
    a.label(lbl)


def mega_nonce(a):
    a('s_waitcnt vmcnt(0)')
    a('v_readfirstlane_b32 %s, v248' % s(M_NONCE))
    a('s_cmp_eq_u32 %s, 0' % s(M_NONCE))
    a('s_cselect_b32 %s, s82, %s' % (s(M_NONCE), s(M_NONCE)))


def mega_signal(a, table, s_row, s_col, vtmp, stmp, lbl):
    a('s_cmp_lg_u32 %s, 0' % s(M_WAVE))
    a('s_cbranch_scc1 %s' % lbl)
    mega_nonce(a)
    a('s_lshl_b32 %s, %s, 4' % (s(stmp), s(s_row)))
    a('s_add_u32 %s, %s, %s' % (s(stmp), s(stmp), s(s_col)))
    a('s_lshl_b32 %s, %s, 3' % (s(stmp), s(stmp)))
    a('s_add_u32 %s, %s, %d' % (s(stmp), s(stmp), FLAG_OFF[table]))
    a('v_mov_b32 %s, %s' % (v(vtmp), s(stmp)))
    a('v_mov_b32 v244, %s' % s(M_NONCE))
    a('v_not_b32 v245, v244')
    a('s_mov_b64 exec, 1')
    a('buffer_store_dwordx2 v[244:245], %s, %s, 0 offen sc1' % (v(vtmp), s(M_FSRD, 4)))
    a('s_mov_b64 exec, -1')
    a.label(lbl)


def mega_wait(a, table, s_r0, s_r1, ncol, vt, st, lbl):
    a('s_cmp_lg_u32 %s, 0' % s(M_WAVE))
    a('s_cbranch_scc1 %s' % (lbl + '_done'))
    mega_nonce(a)
    a('v_lshrrev_b32 %s, 4, v0' % v(vt[0]))
    a('v_add_u32 %s, %s, %s' % (v(vt[0]), s(s_r0), v(vt[0])))
    a('v_and_b32 %s, 15, v0' % v(vt[1]))
    a('v_cmp_gt_u32 %s, %d, %s' % (s(st[1], 2), ncol, v(vt[1])))
    a('v_cmp_le_i32 vcc, 0, %s' % v(vt[0]))
    a('s_and_b64 %s, %s, vcc' % (s(st[1], 2), s(st[1], 2)))
    a('v_cmp_ge_i32 vcc, %s, %s' % (s(s_r1), v(vt[0])))
    a('s_and_b64 %s, %s, vcc' % (s(st[1], 2), s(st[1], 2)))
    a('v_lshl_add_u32 %s, %s, 4, %s' % (v(vt[0]), v(vt[0]), v(vt[1])))
    a('v_lshlrev_b32 %s, 3, %s' % (v(vt[0]), v(vt[0])))
    a('v_add_u32 %s, %d, %s' % (v(vt[0]), FLAG_OFF[table], v(vt[0])))
    a('s_mov_b32 %s, 0' % s(st[0]))
    a('s_mov_b64 exec, %s' % s(st[1], 2))
    a.label(lbl + '_loop')
    a('buffer_load_dwordx2 v[244:245], %s, %s, 0 offen sc1' % (v(vt[0]), s(M_FSRD, 4)))
    a('s_waitcnt vmcnt(0)')
    a('v_not_b32 v245, v245')
    a('v_xor_b32 v244, %s, v244' % s(M_NONCE))
    a('v_xor_b32 v245, %s, v245' % s(M_NONCE))
    a('v_or_b32 v244, v244, v245')
    a('v_cmp_ne_u32 vcc, 0, v244')
    a('s_nop 1')
    a('s_cbranch_vccz %s' % (lbl + '_ok'))
    a('s_sleep 1')
    a('s_add_u32 %s, %s, 1' % (s(st[0]), s(st[0])))
    a('s_cmp_lt_u32 %s, %d' % (s(st[0]), POLL_LIMIT))
    a('s_cbranch_scc1 %s' % (lbl + '_loop'))
    a.label(lbl + '_ok')
    a('s_mov_b64 exec, -1')
    a.label(lbl + '_done')


def bf16_round(a, dst, src):
    a('v_cvt_pk_bf16_f32 %s, %s, %s' % (v(dst), v(src), v(src)))
    a('v_lshlrev_b32 %s, 16, %s' % (v(dst), v(dst)))


def gen_gemm(a, c):
    name = c['name']
    BM, BN, K, N = c['BM'], c['BN'], c['K'], c['N']
    WM, WN = c['WM'], c['WN']
    D = c['D']
    LN = c.get('LN', False)
    epi = c['epi']
    ST = c.get('stamps', False)
    MT = BM // 16 // WM
    NT = BN // 16 // WN
    S = K // 64
    G = BN // 8
    rowW = BN * 2
    assert rowW in (128, 256)
    XB = BM * 128
    WB = 64 * rowW
    SLOT = XB + WB
    SCOL = D * SLOT
    SROW = SCOL + BN * 4
    lds_total = SROW + BM * 8 if LN else SCOL
    strideX = K * 2
    strideW = N * 2
    nX = BM // 32
    nW = 16 * G // 64
    nDMA = nX + nW
    pairX = c.get('pairX', False)
    GRP = c.get('GRP', 1)
    PD = c.get('PD', 1)
    assert D % GRP == 0
    DG = D // GRP
    NG = (S + GRP - 1) // GRP
    last_g = (NG - 1) % DG
    GS = GRP * SLOT
    STG = (last_g + 1) * GS if last_g + 1 < DG else 0
    STG_ROOM = (DG - last_g - 1) * GS if last_g + 1 < DG else last_g * GS
    if LN and lds_total > 163840:
        SCOL = STG + STG_ROOM - 1024
        STG_ROOM -= 1024
        lds_total = D * SLOT
    mega = c.get('mega', False)
    stf = ' sc1' if mega else STFLAG
    ldf = ' sc1' if (mega and c['x'][0] == 'ws') else ''
    L = lambda x: '%s_%s' % (name, x)

    sX, sW, sO, sR = 4, 8, 12, 16
    pX, pW, pO, pR = 20, 22, 24, 26
    s_rb, s_cb, s_wave, s_t0, s_t1, s_kx, s_kw, s_ldsX, s_ldsW, s_st = 28, 29, 30, 31, 32, 33, 34, 35, 36, 37
    s_wm, s_wn, s_tok0, s_col0 = 38, 39, 40, 41
    s_ex = 42
    s_slot = 46
    s_t2, s_t3, s_t4, s_t5 = 54, 55, 56, 57
    s_m4 = 58

    if mega:
        ST = False
        pX, pW, pO = MP[c['x'][0]], MP[c['w']], MP[c['o'][0]]
        if epi == 'resid':
            pR = MP[c['r'][0]]
        a.label(name)
        mstamp(a, 0)
    else:
        a.raw('.p2align 8')
        a.raw('.globl %s' % name)
        a.raw('.type %s,@function' % name)
        a.label(name)
        stamp(a, ST, 0)
        a('s_load_dwordx2 %s, s[0:1], %d' % (s(pX, 2), KA[c['x'][0]]))
        a('s_load_dwordx2 %s, s[0:1], %d' % (s(pW, 2), KA[c['w']]))
        a('s_load_dwordx2 %s, s[0:1], %d' % (s(pO, 2), KA[c['o'][0]]))
        if epi == 'resid':
            a('s_load_dwordx2 %s, s[0:1], %d' % (s(pR, 2), KA[c['r'][0]]))
        a('s_cmp_ge_u32 s2, 256')
        a('s_cbranch_scc1 %s' % L('end'))
    a('s_and_b32 %s, s2, 7' % s(s_t0))
    a('s_lshr_b32 %s, s2, 3' % s(s_t1))
    if c['map'] == 'p2':
        RBX = c['rb_per_xcd']
        a('s_and_b32 %s, %s, %d' % (s(s_t2), s(s_t1), RBX - 1))
        a('s_lshr_b32 %s, %s, %d' % (s(s_t3), s(s_t1), RBX.bit_length() - 1))
        a('s_lshr_b32 %s, %s, 1' % (s(s_rb), s(s_t0)))
        a('s_mul_i32 %s, %s, %d' % (s(s_rb), s(s_rb), RBX))
        a('s_add_u32 %s, %s, %s' % (s(s_rb), s(s_rb), s(s_t2)))
        a('s_and_b32 %s, %s, 1' % (s(s_cb), s(s_t0)))
        a('s_mul_i32 %s, %s, %d' % (s(s_cb), s(s_cb), c['cb_stride']))
        a('s_cmp_ge_u32 %s, %d' % (s(s_t3), c['cb_stride']))
        a('s_cbranch_scc1 %s' % L('end'))
        a('s_add_u32 %s, %s, %s' % (s(s_cb), s(s_cb), s(s_t3)))
        a('s_cmp_ge_u32 %s, %d' % (s(s_cb), c['NB']))
        a('s_cbranch_scc1 %s' % L('end'))
        rot_max = c['rot'][0] * (RBX - 1) + c['rot'][1] * (c['cb_stride'] - 1)
    else:
        a('s_mul_i32 %s, %s, 205' % (s(s_t2), s(s_t1)))
        a('s_lshr_b32 %s, %s, 10' % (s(s_t2), s(s_t2)))
        a('s_mul_i32 %s, %s, 5' % (s(s_t3), s(s_t2)))
        a('s_sub_u32 %s, %s, %s' % (s(s_t3), s(s_t1), s(s_t3)))
        a('s_lshr_b32 %s, %s, 1' % (s(s_t1), s(s_t0)))
        a('s_mul_i32 %s, %s, 11' % (s(s_rb), s(s_t1)))
        a('s_add_u32 %s, %s, 12' % (s(s_t4), s(s_rb)))
        a('s_lshr_b32 %s, %s, 1' % (s(s_t4), s(s_t4)))
        a('s_add_u32 %s, %s, 1' % (s(s_rb), s(s_rb)))
        a('s_lshr_b32 %s, %s, 1' % (s(s_rb), s(s_rb)))
        a('s_add_u32 %s, %s, %s' % (s(s_rb), s(s_rb), s(s_t2)))
        a('s_cmp_ge_u32 %s, %s' % (s(s_rb), s(s_t4)))
        a('s_cbranch_scc1 %s' % L('end'))
        a('s_and_b32 %s, %s, 1' % (s(s_cb), s(s_t0)))
        a('s_mul_i32 %s, %s, 5' % (s(s_cb), s(s_cb)))
        a('s_add_u32 %s, %s, %s' % (s(s_cb), s(s_cb), s(s_t3)))
        rot_max = c['rot'][0] * 5 + c['rot'][1] * 4
    if mega:
        a('s_mov_b32 %s, %s' % (s(s_wave), s(M_WAVE)))
    else:
        a('v_lshrrev_b32 v1, 6, v0')
        a('v_and_b32 v0, 63, v0')
        a('v_readfirstlane_b32 %s, v1' % s(s_wave))
    a('s_mul_i32 %s, %s, %d' % (s(s_tok0), s(s_rb), BM))
    a('s_mul_i32 %s, %s, %d' % (s(s_col0), s(s_cb), BN))
    a('s_cmp_ge_u32 %s, 4' % s(s_wave))
    a('s_cbranch_scc1 %s' % L('loader'))

    if c.get('prio') == 'c':
        a('s_setprio 1')
    R = Regs(1, 256, 'v')
    vg, vi, vt0, vt1, vt2, vt3 = [R.alloc() for _ in range(6)]
    a('v_lshrrev_b32 %s, 4, v0' % v(vg))
    a('v_and_b32 %s, 15, v0' % v(vi))
    if WN == 1:
        a('s_mov_b32 %s, %s' % (s(s_wm), s(s_wave)))
        a('s_mov_b32 %s, 0' % s(s_wn))
    else:
        assert WN == 2
        a('s_lshr_b32 %s, %s, 1' % (s(s_wm), s(s_wave)))
        a('s_and_b32 %s, %s, 1' % (s(s_wn), s(s_wave)))
    vXa = [R.alloc() for _ in range(2)]
    vXs = [R.alloc() for _ in range(2)]
    a('s_mul_i32 %s, %s, %d' % (s(s_t0), s(s_wm), MT * 16 * 128))
    a('v_lshrrev_b32 %s, 1, %s' % (v(vt0), v(vi)))
    a('v_lshlrev_b32 %s, 7, %s' % (v(vt1), v(vi)))
    a('v_add_u32 %s, %s, %s' % (v(vt1), s(s_t0), v(vt1)))
    for ks in range(2):
        a('v_add_u32 %s, %d, %s' % (v(vt2), 4 * ks, v(vg)))
        a('v_xor_b32 %s, %s, %s' % (v(vt2), v(vt2), v(vt0)))
        a('v_lshl_add_u32 %s, %s, 4, %s' % (v(vXa[ks]), v(vt2), v(vt1)))
    vWa = [R.alloc() for _ in range(NT)]
    vWs = [R.alloc() for _ in range(NT)]
    a('v_lshrrev_b32 %s, 2, %s' % (v(vt0), v(vi)))
    a('v_and_b32 %s, 1, %s' % (v(vt1), v(vg)))
    a('v_lshl_add_u32 %s, %s, 2, %s' % (v(vt0), v(vt1), v(vt0)))
    a('v_lshrrev_b32 %s, 1, %s' % (v(vt1), v(vg)))
    a('v_lshl_add_u32 %s, %s, 4, %s' % (v(vt1), v(vt1), v(vt0)))
    a('v_mul_u32_u24 %s, %d, %s' % (v(vt1), rowW, v(vt1)))
    a('v_and_b32 %s, 1, %s' % (v(vt2), v(vi)))
    a('v_lshl_add_u32 %s, %s, 3, %s' % (v(vt1), v(vt2), v(vt1)))
    a('v_bfe_u32 %s, %s, 1, 1' % (v(vt2), v(vi)))
    a('v_lshl_add_u32 %s, %s, 4, %s' % (v(vt1), v(vt2), v(vt1)))
    a('v_add_u32 %s, %d, %s' % (v(vt1), XB, v(vt1)))
    if rowW == 256:
        a('v_lshlrev_b32 %s, 1, %s' % (v(vt0), v(vt0)))
    else:
        a('v_and_b32 %s, 6, %s' % (v(vt0), v(vt0)))
    for nt in range(NT):
        if LN:
            a('s_lshl_b32 %s, %s, 1' % (s(s_t0), s(s_wave)))
            a('s_add_u32 %s, %s, %d' % (s(s_t0), s(s_t0), nt))
            a('s_and_b32 %s, %s, 7' % (s(s_slot + nt), s(s_t0)))
        else:
            a('s_mul_i32 %s, %s, %d' % (s(s_t0), s(s_wn), NT))
            a('s_add_u32 %s, %s, %d' % (s(s_slot + nt), s(s_t0), nt))
        a('s_lshl_b32 %s, %s, 1' % (s(s_t0), s(s_slot + nt)))
        a('v_xor_b32 %s, %s, %s' % (v(vt2), s(s_t0), v(vt0)))
        a('v_lshl_add_u32 %s, %s, 4, %s' % (v(vWa[nt]), v(vt2), v(vt1)))
    a('s_waitcnt lgkmcnt(0)')
    build_srd(a, sO, pO, c['o'][1], c['obytes'])

    if epi == 'resid':
        build_srd(a, sR, pR, c['r'][1], 2048 * 1280)
        NCH = BM * 8 // 64 // 4
        vOut = [R.alloc() for _ in range(NCH)]
        vRes = [R.alloc(4, 4) for _ in range(NCH)]
        a('s_mul_i32 %s, %s, %d' % (s(s_t0), s(s_wave), NCH * 8))
        a('s_add_u32 %s, %s, %s' % (s(s_t0), s(s_t0), s(s_tok0)))
        a('v_lshrrev_b32 %s, 3, v0' % v(vt0))
        a('v_add_u32 %s, %s, %s' % (v(vt0), s(s_t0), v(vt0)))
        a('v_mul_u32_u24 %s, 1280, %s' % (v(vt0), v(vt0)))
        a('v_and_b32 %s, 7, v0' % v(vt1))
        a('v_lshl_add_u32 %s, %s, 4, %s' % (v(vt0), v(vt1), v(vt0)))
        a('s_lshl_b32 %s, %s, 1' % (s(s_t0), s(s_col0)))
        a('v_add_u32 %s, %s, %s' % (v(vOut[0]), s(s_t0), v(vt0)))
        for j in range(1, NCH):
            a('v_add_u32 %s, %d, %s' % (v(vOut[j]), j * 8 * 1280, v(vOut[0])))
        for j in range(NCH):
            a('buffer_load_dwordx4 %s, %s, %s, 0 offen%s' % (v(vRes[j], 4), v(vOut[j]), s(sR, 4), ' sc1' if (mega and c['r'][0] == 'ws') else ''))

    acc = [[R.alloc(4, 4) for nt in range(NT)] for mt in range(MT)]
    NS = PD + 1
    fX = [[R.alloc(4, 4) for mt in range(MT)] for _ in range(NS)]
    fW = [[R.alloc(4, 4) for nt in range(NT)] for _ in range(NS)]
    nreads = MT + 2 * NT

    def addr(u):
        base = (u % D) * SLOT
        out = []
        for ks in range(2):
            out.append('v_add_u32 %s, 0x%x, %s' % (v(vXs[ks]), base, v(vXa[ks])))
        for j in range(NT):
            out.append('v_add_u32 %s, 0x%x, %s' % (v(vWs[j]), base, v(vWa[j])))
        return out

    def reads(j):
        u, ks = j // 2, j % 2
        setn = j % NS
        out = addr(u) if ks == 0 else []
        if c.get('nocompute') or c.get('noreads'):
            return out
        for mt in range(MT):
            out.append('ds_read_b128 %s, %s offset:%d' % (v(fX[setn][mt], 4), v(vXs[ks]), mt * 2048))
        for nt in range(NT):
            for hf in range(2):
                off = (32 * ks + 8 * hf) * rowW
                out.append('ds_read_b64_tr_b16 %s, %s offset:%d' % (v(fW[setn][nt] + 2 * hf, 2), v(vWs[nt]), off))
        return out

    if LN:
        assert WN == 1 and NT == 8
        vones = R.alloc(4, 4)
        for r in range(4):
            a('v_mov_b32 %s, 0x3f803f80' % v(vones + r))
        accC = [R.alloc(4, 4) for _ in range(2)]
        accS = [R.alloc(4, 4) for _ in range(MT)]
        accG = [R.alloc(4, 4) for _ in range(MT)]

    def mfmas(j):
        setn = j % NS
        first = j == 0
        out = []
        if (c.get('nocompute') or c.get('nomfma')) and not first:
            return out
        M = 'v_mfma_f32_16x16x32_bf16 %s, %s, %s, %s'
        for nt in range(NT):
            for mt in range(MT):
                cc = '0' if first else v(acc[mt][nt], 4)
                out.append(M % (v(acc[mt][nt], 4), v(fW[setn][nt], 4), v(fX[setn][mt], 4), cc))
            if LN and (first or not c.get('nostat')):
                if nt < 2:
                    cc = '0' if first else v(accC[nt], 4)
                    out.append(M % (v(accC[nt], 4), v(fW[setn][nt], 4), v(vones, 4), cc))
                elif nt < 2 + MT:
                    mt = nt - 2
                    cc = '0' if first else v(accS[mt], 4)
                    out.append(M % (v(accS[mt], 4), v(vones, 4), v(fX[setn][mt], 4), cc))
                elif nt < 2 + 2 * MT:
                    mt = nt - 2 - MT
                    cc = '0' if first else v(accG[mt], 4)
                    out.append(M % (v(accG[mt], 4), v(fX[setn][mt], 4), v(fX[setn][mt], 4), cc))
        return out

    J = 2 * S
    dep = c.get('dep') if mega else None
    if dep:
        table, rowsz, ncol, nrow_max = dep
        mg = (1 << 20) // rowsz + 1
        a('s_mul_i32 %s, %s, %d' % (s(s_t0), s(s_tok0), mg))
        a('s_lshr_b32 %s, %s, 20' % (s(s_t0), s(s_t0)))
        a('s_add_u32 %s, %s, %d' % (s(s_t1), s(s_tok0), BM - 1))
        a('s_mul_i32 %s, %s, %d' % (s(s_t1), s(s_t1), mg))
        a('s_lshr_b32 %s, %s, 20' % (s(s_t1), s(s_t1)))
        a('s_min_u32 %s, %s, %d' % (s(s_t1), s(s_t1), nrow_max - 1))
        for tk in range(0, 2200):
            assert (tk * mg) >> 20 == tk // rowsz
        mega_wait(a, table, s_t0, s_t1, ncol, [vt0, vt1, vt2], [s_t4, s_ex], L('dep'))
        a('s_barrier')
    if mega:
        mstamp(a, 1)
    a('s_barrier')
    if mega:
        mstamp(a, 2)
    stamp(a, ST, 1)
    for j in range(min(PD, J)):
        assert j < 2 * GRP
        for x in reads(j):
            a(x)
    for j in range(J):
        younger = min(J - 1, j + PD - 1) - j
        a('s_waitcnt lgkmcnt(%d)' % min(15, younger * nreads))
        M = mfmas(j)
        jn = j + PD
        Rd = reads(jn) if jn < J else []
        need_bar = jn < J and jn % (2 * GRP) == 0
        k = 0
        if need_bar:
            pre = len(M) // 4
            for x in M[:pre]:
                a(x)
            k = pre
            a('s_waitcnt lgkmcnt(0)')
            a('s_barrier')
        rest = M[k:]
        span = max(1, (len(rest) * 3) // 4)
        ri = 0
        for i, x in enumerate(rest):
            a(x)
            want = (len(Rd) * (i + 1) + span - 1) // span if i < span else len(Rd)
            while ri < min(want, len(Rd)):
                a(Rd[ri])
                ri += 1
        while ri < len(Rd):
            a(Rd[ri])
            ri += 1

    stamp(a, ST, 2)
    if mega:
        mstamp(a, 3)
    if LN:
        vmean = [R.alloc(2) for _ in range(MT)]
        vrinv = [R.alloc(2) for _ in range(MT)]
        vcs = [R.alloc(4, 4) for _ in range(NT)]
        T0, T1 = fW[0][0], fW[0][1]
        for j in range(2):
            a('s_lshl_b32 %s, %s, 6' % (s(s_t0), s(s_slot + j)))
            a('v_lshl_add_u32 %s, %s, 4, %s' % (v(vt0), v(vg), s(s_t0)))
            a('v_add_u32 %s, 0x%x, %s' % (v(vt0), SCOL, v(vt0)))
            a('ds_write_b128 %s, %s' % (v(vt0), v(accC[j], 4)))
        a('v_and_b32 %s, 3, %s' % (v(vt0), v(vi)))
        a('v_lshrrev_b32 %s, 2, %s' % (v(vt1), v(vi)))
        a('v_cmp_eq_u32 %s, 1, %s' % (s(s_ex, 2), v(vt0)))
        a('v_cmp_eq_u32 %s, 2, %s' % (s(s_ex + 2, 2), v(vt0)))
        a('v_cmp_eq_u32 vcc, 3, %s' % v(vt0))
        a('v_cmp_eq_u32 %s, %s, %s' % (s(s_m4, 2), v(vt1), v(vg)))
        a('s_mov_b32 %s, 0x3acccccd' % s(s_t1))
        a('v_mov_b32 %s, 0' % v(vt2))
        a('s_waitcnt lgkmcnt(0)')
        a('s_barrier')
        for nt in range(NT):
            a('s_lshl_b32 %s, %s, 6' % (s(s_t0), s(s_slot + nt)))
            a('v_lshl_add_u32 %s, %s, 4, %s' % (v(vt0), v(vg), s(s_t0)))
            a('v_add_u32 %s, 0x%x, %s' % (v(vt0), SCOL, v(vt0)))
            a('ds_read_b128 %s, %s' % (v(vcs[nt], 4), v(vt0)))
        for mt in range(MT):
            Gm = accG[mt]
            a('v_cndmask_b32 %s, %s, %s, %s' % (v(T1), v(Gm), v(Gm + 1), s(s_ex, 2)))
            a('v_cndmask_b32 %s, %s, %s, %s' % (v(T1), v(T1), v(Gm + 2), s(s_ex + 2, 2)))
            a('v_cndmask_b32 %s, %s, %s, vcc' % (v(T1), v(T1), v(Gm + 3)))
            a('v_cndmask_b32 %s, %s, %s, %s' % (v(T1), v(vt2), v(T1), s(s_m4, 2)))
            a('v_mov_b32 %s, %s' % (v(T0), v(T1)))
            a('v_permlane32_swap_b32 %s, %s' % (v(T1), v(T0)))
            a('v_add_f32 %s, %s, %s' % (v(T1), v(T1), v(T0)))
            a('v_mov_b32 %s, %s' % (v(T0), v(T1)))
            a('v_permlane16_swap_b32 %s, %s' % (v(T1), v(T0)))
            a('v_add_f32 %s, %s, %s' % (v(T1), v(T1), v(T0)))
            a('v_mul_f32 %s, %s, %s' % (v(T0), s(s_t1), v(accS[mt])))
            a('v_mul_f32 %s, %s, %s' % (v(T1), s(s_t1), v(T1)))
            a('v_fma_f32 %s, -%s, %s, %s' % (v(T1), v(T0), v(T0), v(T1)))
            a('v_max_f32 %s, 0, %s' % (v(T1), v(T1)))
            bf16_round(a, vmean[mt], T0)
            a('v_xor_b32 %s, 0x80000000, %s' % (v(vmean[mt]), v(vmean[mt])))
            bf16_round(a, T1, T1)
            a('v_add_f32 %s, 0x3727c5ac, %s' % (v(T1), v(T1)))
            bf16_round(a, T1, T1)
            a('v_sqrt_f32 %s, %s' % (v(T1), v(T1)))
            bf16_round(a, T1, T1)
            a('v_rcp_f32 %s, %s' % (v(vrinv[mt]), v(T1)))
        a('s_waitcnt lgkmcnt(0)')
        stamp(a, ST, 4)

    def ln_apply(A, mt, nt, relu):
        for h in range(2):
            a('v_pk_fma_f32 %s, %s, %s, %s op_sel_hi:[1,0,1]' % (v(A + 2 * h, 2), v(vcs[nt] + 2 * h, 2), v(vmean[mt], 2), v(A + 2 * h, 2)))
        for h in range(2):
            a('v_pk_mul_f32 %s, %s, %s op_sel_hi:[1,0]' % (v(A + 2 * h, 2), v(A + 2 * h, 2), v(vrinv[mt], 2)))
        a('v_cvt_pk_bf16_f32 %s, %s, %s' % (v(A), v(A), v(A + 1)))
        a('v_cvt_pk_bf16_f32 %s, %s, %s' % (v(A + 1), v(A + 2), v(A + 3)))
        if relu:
            a('v_pk_max_i16 %s, %s, 0' % (v(A), v(A)))
            a('v_pk_max_i16 %s, %s, 0' % (v(A + 1), v(A + 1)))

    cbuf = [fX[0][0], fX[0][1], fX[1][0], fX[1][1]] + [fW[1][j] for j in range(NT)] + [fW[0][j] for j in range(NT)]

    if epi == 'qkv':
        PS = 288
        assert 4 * 32 * PS <= STG_ROOM
        s_wb = s_kx
        a('s_mul_i32 %s, %s, %d' % (s(s_wb), s(s_wave), 32 * PS))
        a('s_add_u32 %s, %s, 0x%x' % (s(s_wb), s(s_wb), STG))
        vw = R.alloc()
        a('v_mul_u32_u24 %s, %d, %s' % (v(vw), PS, v(vg)))
        a('v_lshl_add_u32 %s, %s, 3, %s' % (v(vw), v(vi), v(vw)))
        a('v_add_u32 %s, %s, %s' % (v(vw), s(s_wb), v(vw)))
        vws = vWa
        for nt in range(NT):
            a('s_mul_i32 %s, %s, %d' % (s(s_t0), s(s_slot + nt), 4 * PS))
            a('v_add_u32 %s, %s, %s' % (v(vws[nt]), s(s_t0), v(vw)))
        for nt in range(NT):
            for mt in range(MT):
                A = acc[mt][nt]
                ln_apply(A, mt, nt, False)
                a('ds_write_b64 %s, %s offset:%d' % (v(vws[nt]), v(A, 2), mt * 128))
        vr, vgo = R.alloc(), R.alloc()
        a('v_mul_u32_u24 %s, %d, %s' % (v(vr), PS, v(vg)))
        a('v_lshl_add_u32 %s, %s, 4, %s' % (v(vr), v(vi), v(vr)))
        a('v_add_u32 %s, %s, %s' % (v(vr), s(s_wb), v(vr)))
        a('s_lshl_b32 %s, %s, 5' % (s(s_t0), s(s_wave)))
        a('s_add_u32 %s, %s, %s' % (s(s_t0), s(s_t0), s(s_tok0)))
        a('s_lshl_b32 %s, %s, 3' % (s(s_t0), s(s_t0)))
        a('s_lshl_b32 %s, %s, 19' % (s(s_t1), s(s_cb)))
        a('s_add_u32 %s, %s, %s' % (s(s_t0), s(s_t0), s(s_t1)))
        a('v_lshlrev_b32 %s, 14, %s' % (v(vgo), v(vg)))
        a('v_lshl_add_u32 %s, %s, 4, %s' % (v(vgo), v(vi), v(vgo)))
        a('v_add_u32 %s, %s, %s' % (v(vgo), s(s_t0), v(vgo)))
        a('s_waitcnt lgkmcnt(0)')
        stamp(a, ST, 5)
        for it in range(8):
            a('ds_read_b128 %s, %s offset:%d' % (v(cbuf[it], 4), v(vr), it * 4 * PS))
        for it in range(8):
            a('s_mov_b32 %s, %d' % (s(s_t0), it * 4 * 16384))
            a('s_waitcnt lgkmcnt(%d)' % (7 - it))
            a('buffer_store_dwordx4 %s, %s, %s, %s offen%s' % (v(cbuf[it], 4), v(vgo), s(sO, 4), s(s_t0), stf))
    elif epi == 'relu':
        RS = 272
        assert 4 * 32 * RS <= STG_ROOM
        s_wb = s_kx
        a('s_mul_i32 %s, %s, %d' % (s(s_wb), s(s_wave), 32 * RS))
        a('s_add_u32 %s, %s, 0x%x' % (s(s_wb), s(s_wb), STG))
        vw = R.alloc()
        a('v_mul_u32_u24 %s, %d, %s' % (v(vw), RS, v(vi)))
        a('v_lshl_add_u32 %s, %s, 3, %s' % (v(vw), v(vg), v(vw)))
        a('v_add_u32 %s, %s, %s' % (v(vw), s(s_wb), v(vw)))
        vws = vWa
        for nt in range(NT):
            a('s_lshl_b32 %s, %s, 5' % (s(s_t0), s(s_slot + nt)))
            a('v_add_u32 %s, %s, %s' % (v(vws[nt]), s(s_t0), v(vw)))
        for nt in range(NT):
            for mt in range(MT):
                A = acc[mt][nt]
                ln_apply(A, mt, nt, True)
                a('ds_write_b64 %s, %s offset:%d' % (v(vws[nt]), v(A, 2), mt * 16 * RS))
        vr, vgo = R.alloc(), R.alloc()
        a('v_mul_u32_u24 %s, %d, %s' % (v(vr), RS, v(vg)))
        a('v_lshl_add_u32 %s, %s, 4, %s' % (v(vr), v(vi), v(vr)))
        a('v_add_u32 %s, %s, %s' % (v(vr), s(s_wb), v(vr)))
        a('s_lshl_b32 %s, %s, 5' % (s(s_t0), s(s_wave)))
        a('s_add_u32 %s, %s, %s' % (s(s_t0), s(s_t0), s(s_tok0)))
        a('v_add_u32 %s, %s, %s' % (v(vgo), s(s_t0), v(vg)))
        a('v_mul_u32_u24 %s, %d, %s' % (v(vgo), N * 2, v(vgo)))
        a('v_lshl_add_u32 %s, %s, 4, %s' % (v(vgo), v(vi), v(vgo)))
        a('s_lshl_b32 %s, %s, 1' % (s(s_t0), s(s_col0)))
        a('v_add_u32 %s, %s, %s' % (v(vgo), s(s_t0), v(vgo)))
        nvalid_chunks = (N - (c['NB'] - 1) * BN) // 8
        a('s_cmp_eq_u32 %s, %d' % (s(s_cb), c['NB'] - 1))
        a('s_cselect_b32 %s, %d, 16' % (s(s_t1), nvalid_chunks))
        a('v_cmp_gt_u32 vcc, %s, %s' % (s(s_t1), v(vi)))
        a('s_waitcnt lgkmcnt(0)')
        stamp(a, ST, 5)
        for it in range(8):
            a('ds_read_b128 %s, %s offset:%d' % (v(cbuf[it], 4), v(vr), it * 4 * RS))
        a('s_and_saveexec_b64 %s, vcc' % s(s_ex, 2))
        for it in range(8):
            a('s_mov_b32 %s, %d' % (s(s_t0), it * 4 * N * 2))
            a('s_waitcnt lgkmcnt(%d)' % (7 - it))
            a('buffer_store_dwordx4 %s, %s, %s, %s offen%s' % (v(cbuf[it], 4), v(vgo), s(sO, 4), s(s_t0), stf))
        a('s_mov_b64 exec, %s' % s(s_ex, 2))
    elif epi == 'resid':
        RS = 144
        assert BM * RS <= STG_ROOM
        vw = R.alloc()
        a('s_mul_i32 %s, %s, %d' % (s(s_t0), s(s_wm), MT * 16 * RS))
        a('s_mul_i32 %s, %s, %d' % (s(s_t1), s(s_wn), NT * 32))
        a('s_add_u32 %s, %s, %s' % (s(s_t0), s(s_t0), s(s_t1)))
        a('s_add_u32 %s, %s, 0x%x' % (s(s_t0), s(s_t0), STG))
        a('v_mul_u32_u24 %s, %d, %s' % (v(vw), RS, v(vi)))
        a('v_lshl_add_u32 %s, %s, 3, %s' % (v(vw), v(vg), v(vw)))
        a('v_add_u32 %s, %s, %s' % (v(vw), s(s_t0), v(vw)))
        for nt in range(NT):
            for mt in range(MT):
                A = acc[mt][nt]
                a('v_cvt_pk_bf16_f32 %s, %s, %s' % (v(A), v(A), v(A + 1)))
                a('v_cvt_pk_bf16_f32 %s, %s, %s' % (v(A + 1), v(A + 2), v(A + 3)))
                a('ds_write_b64 %s, %s offset:%d' % (v(vw), v(A, 2), mt * 16 * RS + nt * 32))
        vr = R.alloc()
        a('s_mul_i32 %s, %s, %d' % (s(s_t0), s(s_wave), NCH * 8 * RS))
        a('s_add_u32 %s, %s, 0x%x' % (s(s_t0), s(s_t0), STG))
        a('v_lshrrev_b32 %s, 3, v0' % v(vr))
        a('v_mul_u32_u24 %s, %d, %s' % (v(vr), RS, v(vr)))
        a('v_and_b32 %s, 7, v0' % v(vt0))
        a('v_lshl_add_u32 %s, %s, 4, %s' % (v(vr), v(vt0), v(vr)))
        a('v_add_u32 %s, %s, %s' % (v(vr), s(s_t0), v(vr)))
        a('s_mov_b32 %s, 0xffff0000' % s(s_t0))
        a('s_waitcnt lgkmcnt(0)')
        a('s_barrier')
        for j in range(NCH):
            a('ds_read_b128 %s, %s offset:%d' % (v(cbuf[j], 4), v(vr), j * 8 * RS))
        a('s_waitcnt vmcnt(0)')
        for j in range(NCH):
            a('s_waitcnt lgkmcnt(%d)' % (NCH - 1 - j))
            Cb, Rr = cbuf[j], vRes[j]
            for h in range(4):
                a('v_lshlrev_b32 %s, 16, %s' % (v(vt0), v(Cb + h)))
                a('v_and_b32 %s, %s, %s' % (v(vt1), s(s_t0), v(Cb + h)))
                a('v_lshlrev_b32 %s, 16, %s' % (v(vt2), v(Rr + h)))
                a('v_and_b32 %s, %s, %s' % (v(vt3), s(s_t0), v(Rr + h)))
                a('v_add_f32 %s, %s, %s' % (v(vt0), v(vt0), v(vt2)))
                a('v_add_f32 %s, %s, %s' % (v(vt1), v(vt1), v(vt3)))
                a('v_cvt_pk_bf16_f32 %s, %s, %s' % (v(Cb + h), v(vt0), v(vt1)))
            a('buffer_store_dwordx4 %s, %s, %s, 0 offen%s' % (v(Cb, 4), v(vOut[j]), s(sO, 4), stf if (c['o'][0] == 'ws' or c.get('outsc1')) else ''))
    if mega:
        mstamp(a, 4)
        a('s_waitcnt vmcnt(0)')
        a('s_barrier')
        if c.get('sig'):
            mega_signal(a, c['sig'], s_rb, s_cb, vt0, s_t0, L('sig'))
        mflush(a, c['kidx'], L('mfl'))
        a('s_branch %s' % L('end'))
    else:
        stamp_flush(a, ST, c.get('kidx', 0), 3, s_wave, L('sdone'))
        a('s_endpgm')
    vmax = 254 if ST else R.hi

    a.label(L('loader'))
    if c.get('prio') == 'l':
        a('s_setprio 1')
    R = Regs(1, 256, 'v')
    vt0, vt1, vt2, vt3, vl3, vl7 = [R.alloc() for _ in range(6)]
    s_lw = s_wave
    a('s_sub_u32 %s, %s, 4' % (s(s_lw), s(s_wave)))
    a('v_lshrrev_b32 %s, 3, v0' % v(vl3))
    a('v_and_b32 %s, 7, v0' % v(vl7))
    vX = [R.alloc() for _ in range(nX)]
    vXj = [R.alloc() for _ in range(nX)]
    vXo = [R.alloc() for _ in range(nX)]
    vW = [R.alloc() for _ in range(nW)]
    a('s_mul_i32 %s, %s, %d' % (s(s_t0), s(s_lw), BM // 4))
    for j in range(nX):
        a('s_add_u32 %s, %s, %d' % (s(s_t1), s(s_t0), 8 * j))
        a('v_add_u32 %s, %s, %s' % (v(vt0), s(s_t1), v(vl3)))
        a('v_bfe_u32 %s, %s, 1, 3' % (v(vt1), v(vt0)))
        a('v_xor_b32 %s, %s, %s' % (v(vt1), v(vt1), v(vl7)))
        a('v_add_u32 %s, %s, %s' % (v(vt0), s(s_tok0), v(vt0)))
        if pairX:
            a('v_mul_u32_u24 %s, 80, %s' % (v(vX[j]), v(vt0)))
            a('v_mov_b32 %s, %s' % (v(vXj[j]), v(vt1)))
        else:
            a('v_mul_u32_u24 %s, %d, %s' % (v(vt0), strideX, v(vt0)))
            a('v_lshl_add_u32 %s, %s, 4, %s' % (v(vX[j]), v(vt1), v(vt0)))
    lg = G.bit_length() - 1
    a('s_lshl_b32 %s, %s, 4' % (s(s_t0), s(s_lw)))
    a('s_lshl_b32 %s, %s, 1' % (s(s_t1), s(s_col0)))
    for j in range(nW):
        a('v_add_u32 %s, %d, v0' % (v(vt0), 64 * j))
        a('v_lshrrev_b32 %s, %d, %s' % (v(vt1), lg, v(vt0)))
        a('v_and_b32 %s, %d, %s' % (v(vt0), G - 1, v(vt0)))
        if rowW == 256:
            a('v_and_b32 %s, 7, %s' % (v(vt2), v(vt1)))
            a('v_lshlrev_b32 %s, 1, %s' % (v(vt2), v(vt2)))
        else:
            a('v_and_b32 %s, 6, %s' % (v(vt2), v(vt1)))
        a('v_xor_b32 %s, %s, %s' % (v(vt0), v(vt0), v(vt2)))
        a('v_and_b32 %s, 3, %s' % (v(vt2), v(vt1)))
        a('v_bfe_u32 %s, %s, 3, 1' % (v(vt3), v(vt1)))
        a('v_lshl_add_u32 %s, %s, 2, %s' % (v(vt2), v(vt3), v(vt2)))
        a('v_bfe_u32 %s, %s, 2, 1' % (v(vt3), v(vt1)))
        a('v_lshl_add_u32 %s, %s, 3, %s' % (v(vt2), v(vt3), v(vt2)))
        a('v_add_u32 %s, %s, %s' % (v(vt2), s(s_t0), v(vt2)))
        a('v_mul_u32_u24 %s, %d, %s' % (v(vt2), strideW, v(vt2)))
        a('v_lshl_add_u32 %s, %s, 4, %s' % (v(vt2), v(vt0), v(vt2)))
        a('v_add_u32 %s, %s, %s' % (v(vW[j]), s(s_t1), v(vt2)))
    a('s_mul_i32 %s, %s, %d' % (s(s_ldsX), s(s_lw), (BM // 4) * 128))
    a('s_mul_i32 %s, %s, %d' % (s(s_ldsW), s(s_lw), 16 * rowW))
    ra, rc = c['rot']
    a('s_mul_i32 %s, %s, %d' % (s(s_t2), s(s_t2), ra))
    a('s_mul_i32 %s, %s, %d' % (s(s_t3), s(s_t3), rc))
    a('s_add_u32 %s, %s, %s' % (s(s_st), s(s_t2), s(s_t3)))
    for _ in range(rot_max // S):
        a('s_cmp_ge_u32 %s, %d' % (s(s_st), S))
        a('s_cselect_b32 %s, %d, 0' % (s(s_t1), S))
        a('s_sub_u32 %s, %s, %s' % (s(s_st), s(s_st), s(s_t1)))
    a('s_lshl_b32 %s, %s, 7' % (s(s_kx), s(s_st)))
    a('s_mul_i32 %s, %s, %d' % (s(s_kw), s(s_st), 64 * strideW))
    a('s_waitcnt lgkmcnt(0)')
    build_srd(a, sX, pX, c['x'][1], c.get('xbytes', 2048 * strideX))
    build_srd(a, sW, pW, 0, K * strideW)

    ops = []
    s_kx2 = s_t4

    def issueW(st):
        base = (st % D) * SLOT
        for j in range(nW):
            a('s_add_u32 m0, %s, 0x%x' % (s(s_ldsW), base + XB + j * 1024))
            a('buffer_load_dwordx4 %s, %s, %s offen lds' % (v(vW[j]), s(sW, 4), s(s_kw)))
            ops.append(st)
        a('s_add_u32 %s, %s, %d' % (s(s_kw), s(s_kw), 64 * strideW))
        a('s_cmp_eq_u32 %s, %d' % (s(s_kw), S * 64 * strideW))
        a('s_cselect_b32 %s, 0, %s' % (s(s_kw), s(s_kw)))

    def issueX(st):
        base = (st % D) * SLOT
        for j in range(nX):
            if pairX:
                a('s_lshr_b32 %s, %s, 4' % (s(s_t0), s(s_kx)))
                a('v_add_u32 %s, %s, %s' % (v(vt0), s(s_t0), v(vXj[j])))
                a('v_mul_u32_u24 %s, 205, %s' % (v(vt1), v(vt0)))
                a('v_lshrrev_b32 %s, 10, %s' % (v(vt1), v(vt1)))
                a('v_mul_u32_u24 %s, 5, %s' % (v(vt2), v(vt1)))
                a('v_sub_u32 %s, %s, %s' % (v(vt0), v(vt0), v(vt2)))
                a('v_mul_u32_u24 %s, 163840, %s' % (v(vt1), v(vt1)))
                a('v_lshl_add_u32 %s, %s, 4, %s' % (v(vt1), v(vt0), v(vt1)))
                a('v_add_u32 %s, %s, %s' % (v(vXo[j]), v(vt1), v(vX[j])))
                a('s_add_u32 m0, %s, 0x%x' % (s(s_ldsX), base + j * 1024))
                a('buffer_load_dwordx4 %s, %s, 0 offen lds%s' % (v(vXo[j]), s(sX, 4), ldf))
            else:
                a('s_add_u32 m0, %s, 0x%x' % (s(s_ldsX), base + j * 1024))
                a('buffer_load_dwordx4 %s, %s, %s offen lds%s' % (v(vX[j]), s(sX, 4), s(s_kx), ldf))
            ops.append(st)
        a('s_add_u32 %s, %s, 128' % (s(s_kx), s(s_kx)))
        a('s_cmp_eq_u32 %s, %d' % (s(s_kx), S * 128))
        a('s_cselect_b32 %s, 0, %s' % (s(s_kx), s(s_kx)))

    def issue(st):
        issueW(st)
        issueX(st)

    def wait_stage(last_needed):
        n = 0
        for tag in reversed(ops):
            if tag <= last_needed:
                break
            n += 1
        a('s_waitcnt vmcnt(%d)' % min(63, n))

    issued = 0
    pf_done = False
    npro = max(GRP, min(D - GRP, S, c.get('pro', 3)))
    if dep:
        for u in range(npro):
            issueW(u)
        a('s_barrier')
        for u in range(npro):
            issueX(u)
        issued = npro
    else:
        for _ in range(npro):
            issue(issued)
            issued += 1
    for g in range(NG):
        last_needed = min(S, (g + 1) * GRP) - 1
        while issued <= last_needed:
            issue(issued)
            issued += 1
        wait_stage(last_needed)
        a('s_barrier')
        n = 0
        while issued < S and issued < (g + DG) * GRP and n < 2 * GRP:
            issue(issued)
            issued += 1
            n += 1
        if mega and issued == S and not pf_done:
            pf_done = True
            for wn in c.get('pfw', ()):
                vtid = R.alloc()
                a('v_lshl_add_u32 %s, %s, 6, v0' % (v(vtid), s(s_lw)))
                n0 = sum('buffer_load_dword ' in l for l in a.lines)
                weight_prefetch(a, wn, vtid, 256, [vt0, vt1, vt2], vt3, sO, MP[wn], [s_t0, s_t1, s_t2], preloaded=True)
                ops.extend([10 ** 9] * (sum('buffer_load_dword ' in l for l in a.lines) - n0))
    if LN:
        a('s_barrier')
    for wn in (() if mega else c.get('pfw', ())):
        vtid = R.alloc()
        a('v_lshl_add_u32 %s, %s, 6, v0' % (v(vtid), s(s_lw)))
        weight_prefetch(a, wn, vtid, 256, [vt0, vt1, vt2], vt3, sO, pO, [s_t0, s_t1, s_t2])
    if mega:
        if epi == 'resid':
            a('s_barrier')
        a('s_barrier')
        a.label(L('end'))
        if c.get('prio'):
            a('s_setprio 0')
    else:
        a.label(L('end'))
        a('s_endpgm')
    vmax = max(vmax, R.hi)
    return dict(name=name, vgpr=vmax, sgpr=90 if ST else 60, lds=lds_total, block=512, grid=256)


CFG_QKV = dict(name='qkv_kernel', kidx=0, BM=128, BN=128, K=640, N=1920, WM=4, WN=1, D=4, LN=True, epi='qkv',
               x=('x', 0), w='wqkv', o=('ws', WS_QKV), obytes=QKV_BYTES, NB=15, map='p2', rb_per_xcd=4, cb_stride=8, rot=(3, 1), pfw=('wo',), sig='qkv')
CFG_WO = dict(name='wo_kernel', kidx=2, BM=96, BN=64, K=640, N=640, WM=2, WN=2, D=8, GRP=2, PD=3, pro=4, epi='resid', pairX=True, xbytes=16 * 163840,
              x=('ws', WS_O), w='wo', o=('ws', WS_H), obytes=2048 * 1280, r=('x', 0), map='22x10', rot=(2, 2), dep=('attn', 128, 16, 16), sig='wo')
CFG_W1 = dict(name='w1_kernel', kidx=3, BM=128, BN=128, K=640, N=1728, WM=4, WN=1, D=4, LN=True, epi='relu',
              x=('ws', WS_H), w='w1', o=('ws', WS_H1), obytes=2048 * 3456, NB=14, map='p2', rb_per_xcd=4, cb_stride=7, rot=(3, 1), dep=('wo', 96, 10, 22), sig='w1')
CFG_W2 = dict(name='w2_kernel', kidx=4, BM=96, BN=64, K=1728, N=640, WM=2, WN=2, D=8, GRP=2, PD=3, pro=4, epi='resid',
              x=('ws', WS_H1), w='w2', o=('out', 0), obytes=2048 * 1280, r=('ws', WS_H), map='22x10', rot=(4, 5), dep=('w1', 128, 14, 16), outsc1=1)
```

```python
import math
import struct
from asmlib import Asm, Regs, v, s
from gemm import build_srd, KA, WS_QKV, WS_O, QKV_BYTES, stamp, stamp_flush, STFLAG, weight_prefetch, MP, M_WAVE, mega_wait, mega_signal, mstamp, mflush


def f32bits(x):
    return struct.unpack('<I', struct.pack('<f', x))[0]


def gen_attn(a, ST=False, mega=False):
    name = 'attn_kernel'
    L = lambda x: '%s_%s' % (name, x)
    PL = 3136
    HB = 11 * PL
    KP, VP = 0, 5 * PL
    STG = 2 * HB
    LDS = STG + 10240
    sQ, sO = 4, 8
    pWS = 12
    s_head, s_qb, s_wave, s_t0, s_t1, s_hk, s_c, s_nm = 14, 15, 16, 17, 18, 19, 20, 21
    sM = [22, 24, 26, 28]
    s_m3, s_m2 = 30, 32
    s_pair, s_wq, s_hh, s_lb = 34, 35, 36, 37

    ldf = ' sc1' if mega else ''
    stf = ' sc1' if mega else STFLAG
    if mega:
        ST = False
        pWS = MP['ws']
        a.label(name)
        mstamp(a, 0)
    else:
        a.raw('.p2align 8')
        a.raw('.globl %s' % name)
        a.raw('.type %s,@function' % name)
        a.label(name)
        stamp(a, ST, 0)
        a('s_load_dwordx2 %s, s[0:1], %d' % (s(pWS, 2), KA['ws']))
        a('s_load_dwordx2 s[44:45], s[0:1], %d' % KA['w1'])
        a('s_cmp_ge_u32 s2, 256')
        a('s_cbranch_scc1 %s' % L('end'))
    a('s_and_b32 %s, s2, 7' % s(s_t0))
    a('s_lshr_b32 %s, s2, 3' % s(s_t1))
    a('s_lshl_b32 %s, %s, 1' % (s(s_pair), s(s_t0)))
    a('s_and_b32 %s, %s, 1' % (s(s_t0), s(s_t1)))
    a('s_add_u32 %s, %s, %s' % (s(s_pair), s(s_pair), s(s_t0)))
    a('s_lshr_b32 %s, %s, 1' % (s(s_qb), s(s_t1)))
    if mega:
        a('s_mov_b32 %s, %s' % (s(s_wave), s(M_WAVE)))
    else:
        a('v_lshrrev_b32 v1, 6, v0')
        a('v_and_b32 v0, 63, v0')
        a('v_readfirstlane_b32 %s, v1' % s(s_wave))
    R = Regs(1, 256, 'v')
    vg, vi, vt0, vt1, vt2, vt3, vg2 = [R.alloc() for _ in range(7)]
    a('v_lshrrev_b32 %s, 4, v0' % v(vg))
    a('v_and_b32 %s, 15, v0' % v(vi))
    a('v_min_u32 %s, 2, %s' % (v(vg2), v(vg)))
    a('s_and_b32 %s, %s, 3' % (s(s_wq), s(s_wave)))
    a('s_lshr_b32 %s, %s, 2' % (s(s_hh), s(s_wave)))
    a('s_lshl_b32 %s, %s, 1' % (s(s_head), s(s_pair)))
    a('s_add_u32 %s, %s, %s' % (s(s_head), s(s_head), s(s_hh)))
    a('s_mul_i32 %s, %s, %d' % (s(s_lb), s(s_hh), HB))
    a('s_mul_i32 %s, %s, %d' % (s(s_hk), s(s_head), 5 * 16384))
    a('s_lshl_b32 %s, %s, 10' % (s(s_t0), s(s_qb)))
    a('s_add_u32 %s, %s, %s' % (s(s_hk), s(s_hk), s(s_t0)))
    a('s_sub_u32 %s, %s, %d' % (s(s_hk), s(s_hk), 2048))
    a('v_lshlrev_b32 %s, 4, v0' % v(vt0))
    a('s_mul_i32 %s, %s, 768' % (s(s_t1), s(s_wq)))
    vkey = R.alloc()
    a('s_lshl_b32 %s, %s, 10' % (s(s_nm), s(s_qb)))
    a('s_add_u32 %s, %s, %s' % (s(s_nm), s(s_nm), s(s_t1)))
    a('s_sub_u32 %s, %s, 2048' % (s(s_nm), s(s_nm)))
    a('v_add_u32 %s, %s, %s' % (v(vkey), s(s_nm), v(vt0)))
    a('v_max_i32 %s, 0, %s' % (v(vkey), v(vkey)))
    a('s_mul_i32 %s, %s, %d' % (s(s_nm), s(s_head), 5 * 16384))
    a('s_add_u32 %s, %s, %s' % (s(s_t1), s(s_t1), s(s_lb)))
    a('s_mov_b32 s38, -1')
    a('s_mov_b32 s39, 0xffff')
    vq0, vq1 = R.alloc(), R.alloc()
    a('v_lshlrev_b32 %s, 1, %s' % (v(vt1), v(vg)))
    a('v_min_u32 %s, 4, %s' % (v(vt2), v(vt1)))
    a('v_add_u32 %s, 1, %s' % (v(vt1), v(vt1)))
    a('v_min_u32 %s, 4, %s' % (v(vt1), v(vt1)))
    vp0, vp1 = R.alloc(), R.alloc()
    a('v_mov_b32 %s, %s' % (v(vp0), v(vt2)))
    a('v_mov_b32 %s, %s' % (v(vp1), v(vt1)))
    a('v_lshlrev_b32 %s, 14, %s' % (v(vq0), v(vt2)))
    a('v_lshl_add_u32 %s, %s, 3, %s' % (v(vq0), v(vi), v(vq0)))
    a('v_lshlrev_b32 %s, 14, %s' % (v(vq1), v(vt1)))
    a('v_lshl_add_u32 %s, %s, 3, %s' % (v(vq1), v(vi), v(vq1)))
    a('s_waitcnt lgkmcnt(0)')
    build_srd(a, sQ, pWS, WS_QKV, QKV_BYTES)
    if mega:
        vd = [R.alloc() for _ in range(3)]
        a('s_sub_u32 s40, %s, 2' % s(s_qb))
        mega_wait(a, 'qkv', 40, s_qb, 15, vd, [41, 42], L('dep'))
        a('s_barrier')
        mstamp(a, 1)
    a('s_mov_b64 exec, s[38:39]')
    for pc in range(5):
        a('s_add_u32 %s, %s, %d' % (s(s_t0), s(s_nm), (160 + pc) * 16384))
        a('s_add_u32 m0, %s, %d' % (s(s_t1), KP + pc * PL))
        a('buffer_load_dwordx4 %s, %s, %s offen lds%s' % (v(vkey), s(sQ, 4), s(s_t0), ldf))
    a('s_mov_b64 exec, -1')
    fQ = [R.alloc(4, 4) for _ in range(2)]
    a('s_lshl_b32 %s, %s, 8' % (s(s_t0), s(s_wq)))
    a('s_add_u32 %s, %s, %s' % (s(s_t0), s(s_t0), s(s_hk)))
    a('s_add_u32 %s, %s, 2048' % (s(s_t0), s(s_t0)))
    for aa in range(2):
        a('buffer_load_dwordx2 %s, %s, %s, %s offen offset:%d%s' % (v(fQ[aa], 2), v(vq0), s(sQ, 4), s(s_t0), aa * 128, ldf))
        a('buffer_load_dwordx2 %s, %s, %s, %s offen offset:%d%s' % (v(fQ[aa] + 2, 2), v(vq1), s(sQ, 4), s(s_t0), aa * 128, ldf))
    a('s_mov_b64 exec, s[38:39]')
    for pc in range(5):
        a('s_add_u32 %s, %s, %d' % (s(s_t0), s(s_nm), (320 + pc) * 16384))
        a('s_add_u32 m0, %s, %d' % (s(s_t1), VP + pc * PL))
        a('buffer_load_dwordx4 %s, %s, %s offen lds%s' % (v(vkey), s(sQ, 4), s(s_t0), ldf))
    vone = R.alloc(4, 4)
    a('v_mov_b32 %s, 0x3f80' % v(vone))
    a('v_mov_b32 %s, 0' % v(vone + 1))
    a('v_mov_b32 %s, 0x3f80' % v(vone + 2))
    a('v_mov_b32 %s, 0' % v(vone + 3))
    a('v_add_u32 %s, %s, %s' % (v(vt1), s(s_t1), v(vt0)))
    a('ds_write_b128 %s, %s offset:%d' % (v(vt1), v(vone, 4), 10 * PL))
    a('s_mov_b64 exec, -1')
    build_srd(a, sO, pWS, WS_O, 16 * 163840)
    for r in range(4):
        a('v_lshl_add_u32 %s, %s, 2, %d' % (v(vt3), v(vg), r))
        a('v_cmp_le_u32 %s, %s, %s' % (s(sM[r], 2), v(vt3), v(vi)))
    a('v_cmp_eq_u32 %s, 3, %s' % (s(s_m3, 2), v(vg)))
    a('v_cmp_le_u32 %s, 2, %s' % (s(s_m2, 2), v(vg)))
    vML = [R.alloc() for _ in range(2)]
    vMH = [R.alloc() for _ in range(2)]
    vz = R.alloc()
    a('v_mov_b32 %s, 0' % v(vz))
    a('v_mov_b32 %s, 0xffff' % v(vt3))
    vhi16 = R.alloc()
    a('v_mov_b32 %s, 0xffff0000' % v(vhi16))
    for h in range(2):
        a('v_cndmask_b32 %s, %s, %s, %s' % (v(vML[h]), v(vz), v(vt3), s(sM[2 * h], 2)))
        a('v_cndmask_b32 %s, %s, %s, %s' % (v(vMH[h]), v(vz), v(vhi16), s(sM[2 * h + 1], 2)))
        a('v_or_b32 %s, %s, %s' % (v(vML[h]), v(vML[h]), v(vMH[h])))
        a('v_not_b32 %s, %s' % (v(vMH[h]), v(vML[h])))
    a('s_mov_b32 %s, 0x%x' % (s(s_c), f32bits(20 ** -0.5 * math.log2(math.e))))
    vKa0, vKa1, vV0a, vV1a = R.alloc(), R.alloc(), R.alloc(), R.alloc()
    a('s_lshl_b32 %s, %s, 8' % (s(s_t0), s(s_wq)))
    a('s_add_u32 %s, %s, %s' % (s(s_t0), s(s_t0), s(s_lb)))
    a('v_lshl_add_u32 %s, %s, 3, %s' % (v(vt3), v(vi), s(s_t0)))
    a('v_mul_u32_u24 %s, %d, %s' % (v(vKa0), PL, v(vp0)))
    a('v_add_u32 %s, %s, %s' % (v(vKa0), v(vKa0), v(vt3)))
    a('v_mul_u32_u24 %s, %d, %s' % (v(vKa1), PL, v(vp1)))
    a('v_add_u32 %s, %s, %s' % (v(vKa1), v(vKa1), v(vt3)))
    a('s_add_u32 %s, %s, %d' % (s(s_t0), s(s_t0), VP))
    a('v_lshrrev_b32 %s, 2, v0' % v(vt3))
    a('v_lshl_add_u32 %s, %s, 3, %s' % (v(vt3), v(vt3), s(s_t0)))
    a('v_and_b32 %s, 3, v0' % v(vV0a))
    a('v_mul_u32_u24 %s, %d, %s' % (v(vV0a), PL, v(vV0a)))
    a('v_add_u32 %s, %s, %s' % (v(vV0a), v(vV0a), v(vt3)))
    a('v_and_b32 %s, 1, v0' % v(vV1a))
    a('v_mul_u32_u24 %s, %d, %s' % (v(vV1a), PL, v(vV1a)))
    a('v_add_u32 %s, %s, %s' % (v(vV1a), v(vV1a), v(vt3)))
    a('v_add_u32 %s, %d, %s' % (v(vV1a), 4 * PL, v(vV1a)))
    a('s_waitcnt vmcnt(5)')
    for aa in range(2):
        for r in range(2):
            a('v_cndmask_b32 %s, %s, %s, %s' % (v(fQ[aa] + r), v(fQ[aa] + r), v(vz), s(s_m3, 2)))
        for r in range(2, 4):
            a('v_cndmask_b32 %s, %s, %s, %s' % (v(fQ[aa] + r), v(fQ[aa] + r), v(vz), s(s_m2, 2)))
    a('s_waitcnt lgkmcnt(0)')
    a('s_barrier')
    stamp(a, ST, 1)
    if mega:
        mstamp(a, 2)

    Sreg = [[R.alloc(4, 4) for t in range(17)] for aa in range(2)]
    NKB = 6
    fK = [R.alloc(4, 4) for _ in range(NKB)]
    def kread(t):
        a('ds_read_b64 %s, %s offset:%d' % (v(fK[t % NKB], 2), v(vKa0), t * 128))
        a('ds_read_b64 %s, %s offset:%d' % (v(fK[t % NKB] + 2, 2), v(vKa1), t * 128))
    for t in range(min(NKB, 18)):
        kread(t)
    for t in range(18):
        outstanding_after = min(17, t + NKB - 1) - t
        a('s_waitcnt lgkmcnt(%d)' % (2 * outstanding_after))
        if t <= 16:
            a('v_mfma_f32_16x16x32_bf16 %s, %s, %s, 0' % (v(Sreg[0][t], 4), v(fK[t % NKB], 4), v(fQ[0], 4)))
        if t >= 1:
            a('v_mfma_f32_16x16x32_bf16 %s, %s, %s, 0' % (v(Sreg[1][t - 1], 4), v(fK[t % NKB], 4), v(fQ[1], 4)))
        if t + NKB < 18:
            kread(t + NKB)
    a('s_nop 7')
    a('s_cmp_ge_u32 %s, 2' % s(s_qb))
    a('s_cbranch_scc1 %s' % L('nomask'))
    for aa in range(2):
        a('s_lshl_b32 %s, %s, 1' % (s(s_nm), s(s_wq)))
        a('s_lshl_b32 %s, %s, 3' % (s(s_t0), s(s_qb)))
        a('s_add_u32 %s, %s, %s' % (s(s_nm), s(s_nm), s(s_t0)))
        a('s_sub_u32 %s, %d, %s' % (s(s_nm), 16 - aa, s(s_nm)))
        for t in range(16):
            a('s_cmp_gt_u32 %s, %d' % (s(s_nm), t))
            a('s_cbranch_scc0 %s' % L('mdone%d' % aa))
            for r in range(4):
                a('v_mov_b32 %s, 0xf149f2ca' % v(Sreg[aa][t] + r))
        a.label(L('mdone%d' % aa))
    a.label(L('nomask'))

    vmx, vmx2 = R.alloc(), R.alloc()
    import os
    PK = bool(os.environ.get('PK'))
    vcc2, vnm = R.alloc(2), R.alloc(2)
    a('v_mov_b32 %s, %s' % (v(vcc2), s(s_c)))
    Oacc = [[R.alloc(4, 4) for dt in range(2)] for aa in range(2)]

    def softmax(aa):
        Sg = Sreg[aa]
        for r in range(4):
            a('v_cndmask_b32 %s, %s, %s, %s' % (v(Sg[16] + r), v(Sg[0] + r), v(Sg[16] + r), s(sM[r], 2)))
        vals = [Sg[t] + r for t in range(1, 17) for r in range(4)]
        a('v_max3_f32 %s, %s, %s, %s' % (v(vmx), v(vals[0]), v(vals[1]), v(vals[2])))
        a('v_max3_f32 %s, %s, %s, %s' % (v(vmx2), v(vals[3]), v(vals[4]), v(vals[5])))
        k = 6
        tog = 0
        while k + 1 < len(vals):
            d = vmx if tog == 0 else vmx2
            a('v_max3_f32 %s, %s, %s, %s' % (v(d), v(d), v(vals[k]), v(vals[k + 1])))
            k += 2
            tog ^= 1
        assert k == len(vals)
        a('v_max_f32 %s, %s, %s' % (v(vmx), v(vmx), v(vmx2)))
        a('v_mov_b32 %s, %s' % (v(vmx2), v(vmx)))
        a('v_permlane32_swap_b32 %s, %s' % (v(vmx), v(vmx2)))
        a('v_max_f32 %s, %s, %s' % (v(vmx), v(vmx), v(vmx2)))
        a('v_mov_b32 %s, %s' % (v(vmx2), v(vmx)))
        a('v_permlane16_swap_b32 %s, %s' % (v(vmx), v(vmx2)))
        a('v_max_f32 %s, %s, %s' % (v(vmx), v(vmx), v(vmx2)))
        a('v_mul_f32 %s, %s, %s' % (v(vmx), s(s_c), v(vmx)))
        if PK:
            a('v_sub_f32 %s, 0, %s' % (v(vnm), v(vmx)))
        if aa == 0:
            dst = {t: Sg[t & ~1] + 2 * (t & 1) for t in range(2, 16)}
            dst[1] = Sg[0] + 2
            dhi, dlo = Sg[0], Sg[16]
        else:
            dst = {t: Sg[t - ((t - 1) & 1)] + 2 * ((t - 1) & 1) for t in range(1, 15)}
            dst[15] = Sg[15]
            dhi, dlo = Sg[0], Sg[15] + 2
        order = list(range(1, 16)) + [16]
        for t in order:
            b = Sg[t]
            if PK:
                for h in range(2):
                    a('v_pk_fma_f32 %s, %s, %s, %s op_sel_hi:[1,0,0]' % (v(b + 2 * h, 2), v(b + 2 * h, 2), v(vcc2, 2), v(vnm, 2)))
            else:
                for r in range(4):
                    a('v_fma_f32 %s, %s, %s, -%s' % (v(b + r), v(b + r), s(s_c), v(vmx)))
            for r in range(4):
                a('v_exp_f32 %s, %s' % (v(b + r), v(b + r)))
            if t < 16:
                a('v_cvt_pk_bf16_f32 %s, %s, %s' % (v(dst[t]), v(b), v(b + 1)))
                a('v_cvt_pk_bf16_f32 %s, %s, %s' % (v(dst[t] + 1), v(b + 2), v(b + 3)))
            else:
                a('v_cvt_pk_bf16_f32 %s, %s, %s' % (v(vt0), v(b), v(b + 1)))
                a('v_cvt_pk_bf16_f32 %s, %s, %s' % (v(vt1), v(b + 2), v(b + 3)))
                a('v_and_b32 %s, %s, %s' % (v(dlo), v(vt0), v(vML[0])))
                a('v_and_b32 %s, %s, %s' % (v(dlo + 1), v(vt1), v(vML[1])))
                a('v_and_b32 %s, %s, %s' % (v(dhi), v(vt0), v(vMH[0])))
                a('v_and_b32 %s, %s, %s' % (v(dhi + 1), v(vt1), v(vMH[1])))

    stamp(a, ST, 2)
    softmax(0)
    vtid = R.alloc()
    a('v_lshl_add_u32 %s, %s, 6, v0' % (v(vtid), s(s_wave)))
    weight_prefetch(a, 'w1', vtid, 512, [vt0, vt1, vt2], vt3, 40, MP['w1'] if mega else 44, [s_t0, s_t1, s_nm], preloaded=True)
    if mega:
        weight_prefetch(a, 'w2', vtid, 512, [vt0, vt1, vt2], vt3, 40, MP['w2'], [s_t0, s_t1, s_nm], preloaded=True)
    softmax(1)
    stamp(a, ST, 3)

    a('s_waitcnt vmcnt(%d)' % (2 if mega else 1))
    a('s_barrier')
    Vb = [(fK[0], fK[1]), (fK[2], fK[3]), (fK[4], fK[5])]

    def vreads(slot, kta, ktb):
        for dt in range(2):
            base, stride = (vV0a, 128) if dt == 0 else (vV1a, 128)
            a('ds_read_b64_tr_b16 %s, %s offset:%d' % (v(Vb[slot][dt], 2), v(base), kta * stride))
            a('ds_read_b64_tr_b16 %s, %s offset:%d' % (v(Vb[slot][dt] + 2, 2), v(base), ktb * stride))

    steps = [(0, 1)] + [(t, t + 1) for t in range(2, 16, 2)] + [(16, 17)]
    vreads(0, *steps[0])
    vreads(1, *steps[1])
    first = [[True, True], [True, True]]

    def pv(aa, dt, vreg, preg, wide):
        cc = '0' if first[aa][dt] else v(Oacc[aa][dt], 4)
        first[aa][dt] = False
        if wide:
            a('v_mfma_f32_16x16x32_bf16 %s, %s, %s, %s' % (v(Oacc[aa][dt], 4), v(vreg, 4), v(preg, 4), cc))
        else:
            a('v_mfma_f32_16x16x16_bf16 %s, %s, %s, %s' % (v(Oacc[aa][dt], 4), v(vreg, 2), v(preg, 2), cc))

    for si, (ta, tb) in enumerate(steps):
        if si + 2 < len(steps):
            vreads((si + 2) % 3, *steps[si + 2])
        nafter = min(len(steps) - 1, si + 2) - si
        a('s_waitcnt lgkmcnt(%d)' % (4 * nafter))
        sl = Vb[si % 3]
        for dt in range(2):
            if si == 0:
                pv(0, dt, sl[dt], Sreg[0][0], True)
                pv(1, dt, sl[dt] + 2, Sreg[1][0], False)
            elif si == len(steps) - 1:
                pv(0, dt, sl[dt], Sreg[0][16], False)
                pv(1, dt, sl[dt], Sreg[1][15], True)
            else:
                pv(0, dt, sl[dt], Sreg[0][ta], True)
                pv(1, dt, sl[dt], Sreg[1][ta - 1], True)

    stamp(a, ST, 4)
    if mega:
        mstamp(a, 3)
    vo = R.alloc()
    a('s_mul_i32 %s, %s, %d' % (s(s_t0), s(s_wq), 32 * 80))
    a('s_mul_i32 %s, %s, 40' % (s(s_t1), s(s_hh)))
    a('s_add_u32 %s, %s, %s' % (s(s_t0), s(s_t0), s(s_t1)))
    a('s_add_u32 %s, %s, %d' % (s(s_t0), s(s_t0), STG))
    a('v_mul_u32_u24 %s, 80, %s' % (v(vo), v(vi)))
    a('v_lshl_add_u32 %s, %s, 3, %s' % (v(vo), v(vg), v(vo)))
    a('v_add_u32 %s, %s, %s' % (v(vo), s(s_t0), v(vo)))
    for aa in range(2):
        O0, O1 = Oacc[aa]
        a('v_mov_b32 %s, %s' % (v(vt0), v(O1)))
        a('v_mov_b32 %s, %s' % (v(vt1), v(O1)))
        a('v_permlane16_swap_b32 %s, %s' % (v(vt0), v(vt1)))
        a('v_mov_b32 %s, %s' % (v(vt0), v(vt1)))
        a('v_permlane32_swap_b32 %s, %s' % (v(vt0), v(vt1)))
        a('v_rcp_f32 %s, %s' % (v(vt0), v(vt0)))
        for r in range(4):
            a('v_mul_f32 %s, %s, %s' % (v(O0 + r), v(vt0), v(O0 + r)))
            a('v_mul_f32 %s, %s, %s' % (v(O1 + r), v(vt0), v(O1 + r)))
        a('v_cvt_pk_bf16_f32 %s, %s, %s' % (v(O0), v(O0), v(O0 + 1)))
        a('v_cvt_pk_bf16_f32 %s, %s, %s' % (v(O0 + 1), v(O0 + 2), v(O0 + 3)))
        a('v_cvt_pk_bf16_f32 %s, %s, %s' % (v(O1), v(O1), v(O1 + 1)))
        a('v_cvt_pk_bf16_f32 %s, %s, %s' % (v(O1 + 1), v(O1 + 2), v(O1 + 3)))
        a('ds_write_b64 %s, %s offset:%d' % (v(vo), v(O0, 2), aa * 16 * 80))
        a('s_mov_b64 exec, 0xffff')
        a('ds_write_b64 %s, %s offset:%d' % (v(vo), v(O1, 2), aa * 16 * 80 + 32))
        a('s_mov_b64 exec, -1')
    a('s_mul_i32 %s, %s, 1280' % (s(s_t0), s(s_wave)))
    a('v_lshl_add_u32 %s, v0, 4, %s' % (v(vt0), s(s_t0)))
    a('v_add_u32 %s, %d, %s' % (v(vt1), STG, v(vt0)))
    a('s_mul_i32 %s, %s, 163840' % (s(s_t0), s(s_pair)))
    a('s_mul_i32 %s, %s, 10240' % (s(s_t1), s(s_qb)))
    a('s_add_u32 %s, %s, %s' % (s(s_t0), s(s_t0), s(s_t1)))
    a('s_waitcnt lgkmcnt(0)')
    a('s_barrier')
    a('ds_read_b128 %s, %s' % (v(fK[0], 4), v(vt1)))
    a('ds_read_b128 %s, %s offset:1024' % (v(fK[1], 4), v(vt1)))
    a('s_waitcnt lgkmcnt(1)')
    a('buffer_store_dwordx4 %s, %s, %s, %s offen%s' % (v(fK[0], 4), v(vt0), s(sO, 4), s(s_t0), stf))
    a('s_waitcnt lgkmcnt(0)')
    a('s_mov_b64 exec, 0xffff')
    a('buffer_store_dwordx4 %s, %s, %s, %s offen offset:1024%s' % (v(fK[1], 4), v(vt0), s(sO, 4), s(s_t0), stf))
    a('s_mov_b64 exec, -1')
    if mega:
        mstamp(a, 4)
        a('s_waitcnt vmcnt(0)')
        a('s_barrier')
        mega_signal(a, 'attn', s_qb, s_pair, vt0, s_t0, L('sig'))
        mflush(a, 1, L('mfl'))
        a.label(L('end'))
    else:
        stamp_flush(a, ST, 1, 5, s_wave, L('sdone'))
        a.label(L('end'))
        a('s_endpgm')
    return dict(name=name, vgpr=254 if ST else R.hi, sgpr=90 if ST else 48, lds=LDS, block=512, grid=256)
```

```python
from asmlib import Asm, Regs, v, s

WS_QKV = 0
WS_O = 0x800000
WS_H = 0xB00000
WS_H1 = 0x1000000
QKV_BYTES = 96 * 81920
WS_STAMP = 0x3000000
STAMP_S = 60

KA = dict(x=0, wqkv=8, wo=16, bx=24, w1=32, w2=40, out=48, dbg=56, ws=64)
STFLAG = ''


def build_srd(a, sr, sptr, off, nbytes):
    if off:
        a('s_add_u32 %s, %s, 0x%x' % (s(sr), s(sptr), off))
        a('s_addc_u32 %s, %s, 0' % (s(sr + 1), s(sptr + 1)))
        a('s_and_b32 %s, %s, 0xffff' % (s(sr + 1), s(sr + 1)))
    else:
        a('s_mov_b32 %s, %s' % (s(sr), s(sptr)))
        a('s_and_b32 %s, %s, 0xffff' % (s(sr + 1), s(sptr + 1)))
    a('s_mov_b32 %s, 0x%x' % (s(sr + 2), nbytes))
    a('s_mov_b32 %s, 0x20000' % s(sr + 3))


def stamp(a, on, i):
    if on:
        a('s_memrealtime %s' % s(STAMP_S + 2 * i, 2))


def stamp_flush(a, on, kidx, n, s_wave, lbl):
    if not on:
        return
    a('s_waitcnt vmcnt(0)')
    stamp(a, on, n)
    a('s_load_dwordx2 s[80:81], s[0:1], %d' % KA['ws'])
    a('s_waitcnt lgkmcnt(0)')
    a('s_cmp_lg_u32 %s, 0' % s(s_wave))
    a('s_cbranch_scc1 %s' % lbl)
    build_srd(a, 76, 80, WS_STAMP + kidx * 16384, 16384)
    a('s_lshl_b32 s82, s2, 6')
    a('v_mov_b32 v250, s82')
    a('s_mov_b64 exec, 1')
    for i in range(6):
        a('v_mov_b32 v252, %s' % s(STAMP_S + 2 * i))
        a('v_mov_b32 v253, %s' % s(STAMP_S + 2 * i + 1))
        a('buffer_store_dwordx2 v[252:253], v250, s[76:79], 0 offen offset:%d' % (8 * i))
        a('s_nop 1')
    a('s_mov_b64 exec, -1')
    a.label(lbl)


PF = dict(wo=(640, 1280, 5, 640), w1=(640, 3456, 14, 1792), w2=(1728, 1280, 5, 640))


def weight_prefetch(a, wname, vtid, nthreads, vt, vdst, sr, sp, st, preloaded=False):
    nrows, stride, lpr, half = PF[wname]
    total = nrows * lpr
    per = (total + 31) // 32
    if not preloaded:
        a('s_load_dwordx2 %s, s[0:1], %d' % (s(sp, 2), KA[wname]))
    a('s_lshr_b32 %s, s2, 3' % s(st[0]))
    a('s_mul_i32 %s, %s, %d' % (s(st[0]), s(st[0]), per))
    a('s_add_u32 %s, %s, %d' % (s(st[1]), s(st[0]), per))
    a('s_min_u32 %s, %s, %d' % (s(st[1]), s(st[1]), total))
    a('s_and_b32 %s, s2, 1' % s(st[2]))
    a('s_mul_i32 %s, %s, %d' % (s(st[2]), s(st[2]), half))
    sh = 16
    while True:
        magic = ((1 << sh) + lpr - 1) // lpr
        if all((f * magic) >> sh == f // lpr for f in range(0, total + 2048)) and (total + 2048) * magic < (1 << 32):
            break
        sh += 1
    if not preloaded:
        a('s_waitcnt lgkmcnt(0)')
    build_srd(a, sr, sp, 0, nrows * stride)
    for it in range((per + nthreads - 1) // nthreads):
        a('v_add_u32 %s, %s, %s' % (v(vt[0]), s(st[0]), v(vtid)))
        if it:
            a('v_add_u32 %s, %d, %s' % (v(vt[0]), it * nthreads, v(vt[0])))
        a('v_mul_u32_u24 %s, %d, %s' % (v(vt[1]), magic, v(vt[0])))
        a('v_lshrrev_b32 %s, %d, %s' % (v(vt[1]), sh, v(vt[1])))
        a('v_mul_u32_u24 %s, %d, %s' % (v(vt[2]), lpr, v(vt[1])))
        a('v_sub_u32 %s, %s, %s' % (v(vt[2]), v(vt[0]), v(vt[2])))
        a('v_mul_u32_u24 %s, %d, %s' % (v(vt[1]), stride, v(vt[1])))
        a('v_lshl_add_u32 %s, %s, 7, %s' % (v(vt[1]), v(vt[2]), v(vt[1])))
        a('v_cmp_gt_u32 vcc, %s, %s' % (s(st[1]), v(vt[0])))
        a('v_mov_b32 %s, -1' % v(vt[2]))
        a('v_cndmask_b32 %s, %s, %s, vcc' % (v(vt[1]), v(vt[2]), v(vt[1])))
        a('buffer_load_dword %s, %s, %s, %s offen' % (v(vdst), v(vt[1]), s(sr, 4), s(st[2])))


WS_FLAG = 0x2000000
MP = dict(x=64, wqkv=66, wo=68, w1=70, w2=72, out=74, dbg=76, ws=78)
M_WAVE, M_NONCE, M_FSRD, M_STAMP = 80, 81, 84, 90
FLAG_OFF = dict(qkv=0, attn=2048, wo=4096, w1=8192)
POLL_LIMIT = 200000


MST = [False]


def mstamp(a, i):
    if MST[0]:
        a('s_memrealtime %s' % s(M_STAMP + 2 * i, 2))


def mflush(a, phase, lbl):
    if not MST[0]:
        return
    mstamp(a, 5)
    a('s_waitcnt lgkmcnt(0)')
    a('s_cmp_lg_u32 %s, 0' % s(M_WAVE))
    a('s_cbranch_scc1 %s' % lbl)
    build_srd(a, 4, MP['ws'], WS_STAMP + phase * 16384, 16384)
    a('s_lshl_b32 s8, s2, 6')
    a('v_mov_b32 v250, s8')
    a('s_mov_b64 exec, 1')
    for i in range(6):
        a('v_mov_b32 v252, %s' % s(M_STAMP + 2 * i))
        a('v_mov_b32 v253, %s' % s(M_STAMP + 2 * i + 1))
        a('buffer_store_dwordx2 v[252:253], v250, s[4:7], 0 offen offset:%d' % (8 * i))
        a('s_nop 1')
    a('s_mov_b64 exec, -1')
    a.label(lbl)


def mega_nonce(a):
    a('s_waitcnt vmcnt(0)')
    a('v_readfirstlane_b32 %s, v248' % s(M_NONCE))
    a('s_cmp_eq_u32 %s, 0' % s(M_NONCE))
    a('s_cselect_b32 %s, s82, %s' % (s(M_NONCE), s(M_NONCE)))


def mega_signal(a, table, s_row, s_col, vtmp, stmp, lbl):
    a('s_cmp_lg_u32 %s, 0' % s(M_WAVE))
    a('s_cbranch_scc1 %s' % lbl)
    mega_nonce(a)
    a('s_lshl_b32 %s, %s, 4' % (s(stmp), s(s_row)))
    a('s_add_u32 %s, %s, %s' % (s(stmp), s(stmp), s(s_col)))
    a('s_lshl_b32 %s, %s, 3' % (s(stmp), s(stmp)))
    a('s_add_u32 %s, %s, %d' % (s(stmp), s(stmp), FLAG_OFF[table]))
    a('v_mov_b32 %s, %s' % (v(vtmp), s(stmp)))
    a('v_mov_b32 v244, %s' % s(M_NONCE))
    a('v_not_b32 v245, v244')
    a('s_mov_b64 exec, 1')
    a('buffer_store_dwordx2 v[244:245], %s, %s, 0 offen sc1' % (v(vtmp), s(M_FSRD, 4)))
    a('s_mov_b64 exec, -1')
    a.label(lbl)


def mega_wait(a, table, s_r0, s_r1, ncol, vt, st, lbl):
    a('s_cmp_lg_u32 %s, 0' % s(M_WAVE))
    a('s_cbranch_scc1 %s' % (lbl + '_done'))
    mega_nonce(a)
    a('v_lshrrev_b32 %s, 4, v0' % v(vt[0]))
    a('v_add_u32 %s, %s, %s' % (v(vt[0]), s(s_r0), v(vt[0])))
    a('v_and_b32 %s, 15, v0' % v(vt[1]))
    a('v_cmp_gt_u32 %s, %d, %s' % (s(st[1], 2), ncol, v(vt[1])))
    a('v_cmp_le_i32 vcc, 0, %s' % v(vt[0]))
    a('s_and_b64 %s, %s, vcc' % (s(st[1], 2), s(st[1], 2)))
    a('v_cmp_ge_i32 vcc, %s, %s' % (s(s_r1), v(vt[0])))
    a('s_and_b64 %s, %s, vcc' % (s(st[1], 2), s(st[1], 2)))
    a('v_lshl_add_u32 %s, %s, 4, %s' % (v(vt[0]), v(vt[0]), v(vt[1])))
    a('v_lshlrev_b32 %s, 3, %s' % (v(vt[0]), v(vt[0])))
    a('v_add_u32 %s, %d, %s' % (v(vt[0]), FLAG_OFF[table], v(vt[0])))
    a('s_mov_b32 %s, 0' % s(st[0]))
    a('s_mov_b64 exec, %s' % s(st[1], 2))
    a.label(lbl + '_loop')
    a('buffer_load_dwordx2 v[244:245], %s, %s, 0 offen sc1' % (v(vt[0]), s(M_FSRD, 4)))
    a('s_waitcnt vmcnt(0)')
    a('v_not_b32 v245, v245')
    a('v_xor_b32 v244, %s, v244' % s(M_NONCE))
    a('v_xor_b32 v245, %s, v245' % s(M_NONCE))
    a('v_or_b32 v244, v244, v245')
    a('v_cmp_ne_u32 vcc, 0, v244')
    a('s_nop 1')
    a('s_cbranch_vccz %s' % (lbl + '_ok'))
    a('s_sleep 1')
    a('s_add_u32 %s, %s, 1' % (s(st[0]), s(st[0])))
    a('s_cmp_lt_u32 %s, %d' % (s(st[0]), POLL_LIMIT))
    a('s_cbranch_scc1 %s' % (lbl + '_loop'))
    a.label(lbl + '_ok')
    a('s_mov_b64 exec, -1')
    a.label(lbl + '_done')


def bf16_round(a, dst, src):
    a('v_cvt_pk_bf16_f32 %s, %s, %s' % (v(dst), v(src), v(src)))
    a('v_lshlrev_b32 %s, 16, %s' % (v(dst), v(dst)))


def gen_gemm(a, c):
    name = c['name']
    BM, BN, K, N = c['BM'], c['BN'], c['K'], c['N']
    WM, WN = c['WM'], c['WN']
    D = c['D']
    LN = c.get('LN', False)
    epi = c['epi']
    ST = c.get('stamps', False)
    MT = BM // 16 // WM
    NT = BN // 16 // WN
    S = K // 64
    G = BN // 8
    rowW = BN * 2
    assert rowW in (128, 256)
    XB = BM * 128
    WB = 64 * rowW
    SLOT = XB + WB
    SCOL = D * SLOT
    SROW = SCOL + BN * 4
    lds_total = SROW + BM * 8 if LN else SCOL
    strideX = K * 2
    strideW = N * 2
    nX = BM // 32
    nW = 16 * G // 64
    nDMA = nX + nW
    pairX = c.get('pairX', False)
    GRP = c.get('GRP', 1)
    PD = c.get('PD', 1)
    assert D % GRP == 0
    DG = D // GRP
    NG = (S + GRP - 1) // GRP
    last_g = (NG - 1) % DG
    GS = GRP * SLOT
    STG = (last_g + 1) * GS if last_g + 1 < DG else 0
    STG_ROOM = (DG - last_g - 1) * GS if last_g + 1 < DG else last_g * GS
    if LN and lds_total > 163840:
        SCOL = STG + STG_ROOM - 1024
        STG_ROOM -= 1024
        lds_total = D * SLOT
    mega = c.get('mega', False)
    stf = ' sc1' if mega else STFLAG
    ldf = ' sc1' if (mega and c['x'][0] == 'ws') else ''
    L = lambda x: '%s_%s' % (name, x)

    sX, sW, sO, sR = 4, 8, 12, 16
    pX, pW, pO, pR = 20, 22, 24, 26
    s_rb, s_cb, s_wave, s_t0, s_t1, s_kx, s_kw, s_ldsX, s_ldsW, s_st = 28, 29, 30, 31, 32, 33, 34, 35, 36, 37
    s_wm, s_wn, s_tok0, s_col0 = 38, 39, 40, 41
    s_ex = 42
    s_slot = 46
    s_t2, s_t3, s_t4, s_t5 = 54, 55, 56, 57
    s_m4 = 58

    if mega:
        ST = False
        pX, pW, pO = MP[c['x'][0]], MP[c['w']], MP[c['o'][0]]
        if epi == 'resid':
            pR = MP[c['r'][0]]
        a.label(name)
        mstamp(a, 0)
    else:
        a.raw('.p2align 8')
        a.raw('.globl %s' % name)
        a.raw('.type %s,@function' % name)
        a.label(name)
        stamp(a, ST, 0)
        a('s_load_dwordx2 %s, s[0:1], %d' % (s(pX, 2), KA[c['x'][0]]))
        a('s_load_dwordx2 %s, s[0:1], %d' % (s(pW, 2), KA[c['w']]))
        a('s_load_dwordx2 %s, s[0:1], %d' % (s(pO, 2), KA[c['o'][0]]))
        if epi == 'resid':
            a('s_load_dwordx2 %s, s[0:1], %d' % (s(pR, 2), KA[c['r'][0]]))
        a('s_cmp_ge_u32 s2, 256')
        a('s_cbranch_scc1 %s' % L('end'))
    a('s_and_b32 %s, s2, 7' % s(s_t0))
    a('s_lshr_b32 %s, s2, 3' % s(s_t1))
    if c['map'] == 'p2':
        RBX = c['rb_per_xcd']
        a('s_and_b32 %s, %s, %d' % (s(s_t2), s(s_t1), RBX - 1))
        a('s_lshr_b32 %s, %s, %d' % (s(s_t3), s(s_t1), RBX.bit_length() - 1))
        a('s_lshr_b32 %s, %s, 1' % (s(s_rb), s(s_t0)))
        a('s_mul_i32 %s, %s, %d' % (s(s_rb), s(s_rb), RBX))
        a('s_add_u32 %s, %s, %s' % (s(s_rb), s(s_rb), s(s_t2)))
        a('s_and_b32 %s, %s, 1' % (s(s_cb), s(s_t0)))
        a('s_mul_i32 %s, %s, %d' % (s(s_cb), s(s_cb), c['cb_stride']))
        a('s_cmp_ge_u32 %s, %d' % (s(s_t3), c['cb_stride']))
        a('s_cbranch_scc1 %s' % L('end'))
        a('s_add_u32 %s, %s, %s' % (s(s_cb), s(s_cb), s(s_t3)))
        a('s_cmp_ge_u32 %s, %d' % (s(s_cb), c['NB']))
        a('s_cbranch_scc1 %s' % L('end'))
        rot_max = c['rot'][0] * (RBX - 1) + c['rot'][1] * (c['cb_stride'] - 1)
    else:
        a('s_mul_i32 %s, %s, 205' % (s(s_t2), s(s_t1)))
        a('s_lshr_b32 %s, %s, 10' % (s(s_t2), s(s_t2)))
        a('s_mul_i32 %s, %s, 5' % (s(s_t3), s(s_t2)))
        a('s_sub_u32 %s, %s, %s' % (s(s_t3), s(s_t1), s(s_t3)))
        a('s_lshr_b32 %s, %s, 1' % (s(s_t1), s(s_t0)))
        a('s_mul_i32 %s, %s, 11' % (s(s_rb), s(s_t1)))
        a('s_add_u32 %s, %s, 12' % (s(s_t4), s(s_rb)))
        a('s_lshr_b32 %s, %s, 1' % (s(s_t4), s(s_t4)))
        a('s_add_u32 %s, %s, 1' % (s(s_rb), s(s_rb)))
        a('s_lshr_b32 %s, %s, 1' % (s(s_rb), s(s_rb)))
        a('s_add_u32 %s, %s, %s' % (s(s_rb), s(s_rb), s(s_t2)))
        a('s_cmp_ge_u32 %s, %s' % (s(s_rb), s(s_t4)))
        a('s_cbranch_scc1 %s' % L('end'))
        a('s_and_b32 %s, %s, 1' % (s(s_cb), s(s_t0)))
        a('s_mul_i32 %s, %s, 5' % (s(s_cb), s(s_cb)))
        a('s_add_u32 %s, %s, %s' % (s(s_cb), s(s_cb), s(s_t3)))
        rot_max = c['rot'][0] * 5 + c['rot'][1] * 4
    if mega:
        a('s_mov_b32 %s, %s' % (s(s_wave), s(M_WAVE)))
    else:
        a('v_lshrrev_b32 v1, 6, v0')
        a('v_and_b32 v0, 63, v0')
        a('v_readfirstlane_b32 %s, v1' % s(s_wave))
    a('s_mul_i32 %s, %s, %d' % (s(s_tok0), s(s_rb), BM))
    a('s_mul_i32 %s, %s, %d' % (s(s_col0), s(s_cb), BN))
    a('s_cmp_ge_u32 %s, 4' % s(s_wave))
    a('s_cbranch_scc1 %s' % L('loader'))

    if c.get('prio') == 'c':
        a('s_setprio 1')
    R = Regs(1, 256, 'v')
    vg, vi, vt0, vt1, vt2, vt3 = [R.alloc() for _ in range(6)]
    a('v_lshrrev_b32 %s, 4, v0' % v(vg))
    a('v_and_b32 %s, 15, v0' % v(vi))
    if WN == 1:
        a('s_mov_b32 %s, %s' % (s(s_wm), s(s_wave)))
        a('s_mov_b32 %s, 0' % s(s_wn))
    else:
        assert WN == 2
        a('s_lshr_b32 %s, %s, 1' % (s(s_wm), s(s_wave)))
        a('s_and_b32 %s, %s, 1' % (s(s_wn), s(s_wave)))
    vXa = [R.alloc() for _ in range(2)]
    vXs = [R.alloc() for _ in range(2)]
    a('s_mul_i32 %s, %s, %d' % (s(s_t0), s(s_wm), MT * 16 * 128))
    a('v_lshrrev_b32 %s, 1, %s' % (v(vt0), v(vi)))
    a('v_lshlrev_b32 %s, 7, %s' % (v(vt1), v(vi)))
    a('v_add_u32 %s, %s, %s' % (v(vt1), s(s_t0), v(vt1)))
    for ks in range(2):
        a('v_add_u32 %s, %d, %s' % (v(vt2), 4 * ks, v(vg)))
        a('v_xor_b32 %s, %s, %s' % (v(vt2), v(vt2), v(vt0)))
        a('v_lshl_add_u32 %s, %s, 4, %s' % (v(vXa[ks]), v(vt2), v(vt1)))
    vWa = [R.alloc() for _ in range(NT)]
    vWs = [R.alloc() for _ in range(NT)]
    a('v_lshrrev_b32 %s, 2, %s' % (v(vt0), v(vi)))
    a('v_and_b32 %s, 1, %s' % (v(vt1), v(vg)))
    a('v_lshl_add_u32 %s, %s, 2, %s' % (v(vt0), v(vt1), v(vt0)))
    a('v_lshrrev_b32 %s, 1, %s' % (v(vt1), v(vg)))
    a('v_lshl_add_u32 %s, %s, 4, %s' % (v(vt1), v(vt1), v(vt0)))
    a('v_mul_u32_u24 %s, %d, %s' % (v(vt1), rowW, v(vt1)))
    a('v_and_b32 %s, 1, %s' % (v(vt2), v(vi)))
    a('v_lshl_add_u32 %s, %s, 3, %s' % (v(vt1), v(vt2), v(vt1)))
    a('v_bfe_u32 %s, %s, 1, 1' % (v(vt2), v(vi)))
    a('v_lshl_add_u32 %s, %s, 4, %s' % (v(vt1), v(vt2), v(vt1)))
    a('v_add_u32 %s, %d, %s' % (v(vt1), XB, v(vt1)))
    if rowW == 256:
        a('v_lshlrev_b32 %s, 1, %s' % (v(vt0), v(vt0)))
    else:
        a('v_and_b32 %s, 6, %s' % (v(vt0), v(vt0)))
    for nt in range(NT):
        if LN:
            a('s_lshl_b32 %s, %s, 1' % (s(s_t0), s(s_wave)))
            a('s_add_u32 %s, %s, %d' % (s(s_t0), s(s_t0), nt))
            a('s_and_b32 %s, %s, 7' % (s(s_slot + nt), s(s_t0)))
        else:
            a('s_mul_i32 %s, %s, %d' % (s(s_t0), s(s_wn), NT))
            a('s_add_u32 %s, %s, %d' % (s(s_slot + nt), s(s_t0), nt))
        a('s_lshl_b32 %s, %s, 1' % (s(s_t0), s(s_slot + nt)))
        a('v_xor_b32 %s, %s, %s' % (v(vt2), s(s_t0), v(vt0)))
        a('v_lshl_add_u32 %s, %s, 4, %s' % (v(vWa[nt]), v(vt2), v(vt1)))
    a('s_waitcnt lgkmcnt(0)')
    build_srd(a, sO, pO, c['o'][1], c['obytes'])

    if epi == 'resid':
        build_srd(a, sR, pR, c['r'][1], 2048 * 1280)
        NCH = BM * 8 // 64 // 4
        vOut = [R.alloc() for _ in range(NCH)]
        vRes = [R.alloc(4, 4) for _ in range(NCH)]
        a('s_mul_i32 %s, %s, %d' % (s(s_t0), s(s_wave), NCH * 8))
        a('s_add_u32 %s, %s, %s' % (s(s_t0), s(s_t0), s(s_tok0)))
        a('v_lshrrev_b32 %s, 3, v0' % v(vt0))
        a('v_add_u32 %s, %s, %s' % (v(vt0), s(s_t0), v(vt0)))
        a('v_mul_u32_u24 %s, 1280, %s' % (v(vt0), v(vt0)))
        a('v_and_b32 %s, 7, v0' % v(vt1))
        a('v_lshl_add_u32 %s, %s, 4, %s' % (v(vt0), v(vt1), v(vt0)))
        a('s_lshl_b32 %s, %s, 1' % (s(s_t0), s(s_col0)))
        a('v_add_u32 %s, %s, %s' % (v(vOut[0]), s(s_t0), v(vt0)))
        for j in range(1, NCH):
            a('v_add_u32 %s, %d, %s' % (v(vOut[j]), j * 8 * 1280, v(vOut[0])))
        for j in range(NCH):
            a('buffer_load_dwordx4 %s, %s, %s, 0 offen%s' % (v(vRes[j], 4), v(vOut[j]), s(sR, 4), ' sc1' if (mega and c['r'][0] == 'ws') else ''))

    acc = [[R.alloc(4, 4) for nt in range(NT)] for mt in range(MT)]
    NS = PD + 1
    fX = [[R.alloc(4, 4) for mt in range(MT)] for _ in range(NS)]
    fW = [[R.alloc(4, 4) for nt in range(NT)] for _ in range(NS)]
    nreads = MT + 2 * NT

    def addr(u):
        base = (u % D) * SLOT
        out = []
        for ks in range(2):
            out.append('v_add_u32 %s, 0x%x, %s' % (v(vXs[ks]), base, v(vXa[ks])))
        for j in range(NT):
            out.append('v_add_u32 %s, 0x%x, %s' % (v(vWs[j]), base, v(vWa[j])))
        return out

    def reads(j):
        u, ks = j // 2, j % 2
        setn = j % NS
        out = addr(u) if ks == 0 else []
        if c.get('nocompute') or c.get('noreads'):
            return out
        for mt in range(MT):
            out.append('ds_read_b128 %s, %s offset:%d' % (v(fX[setn][mt], 4), v(vXs[ks]), mt * 2048))
        for nt in range(NT):
            for hf in range(2):
                off = (32 * ks + 8 * hf) * rowW
                out.append('ds_read_b64_tr_b16 %s, %s offset:%d' % (v(fW[setn][nt] + 2 * hf, 2), v(vWs[nt]), off))
        return out

    if LN:
        assert WN == 1 and NT == 8
        vones = R.alloc(4, 4)
        for r in range(4):
            a('v_mov_b32 %s, 0x3f803f80' % v(vones + r))
        accC = [R.alloc(4, 4) for _ in range(2)]
        accS = [R.alloc(4, 4) for _ in range(MT)]
        accG = [R.alloc(4, 4) for _ in range(MT)]

    def mfmas(j):
        setn = j % NS
        first = j == 0
        out = []
        if (c.get('nocompute') or c.get('nomfma')) and not first:
            return out
        M = 'v_mfma_f32_16x16x32_bf16 %s, %s, %s, %s'
        for nt in range(NT):
            for mt in range(MT):
                cc = '0' if first else v(acc[mt][nt], 4)
                out.append(M % (v(acc[mt][nt], 4), v(fW[setn][nt], 4), v(fX[setn][mt], 4), cc))
            if LN and (first or not c.get('nostat')):
                if nt < 2:
                    cc = '0' if first else v(accC[nt], 4)
                    out.append(M % (v(accC[nt], 4), v(fW[setn][nt], 4), v(vones, 4), cc))
                elif nt < 2 + MT:
                    mt = nt - 2
                    cc = '0' if first else v(accS[mt], 4)
                    out.append(M % (v(accS[mt], 4), v(vones, 4), v(fX[setn][mt], 4), cc))
                elif nt < 2 + 2 * MT:
                    mt = nt - 2 - MT
                    cc = '0' if first else v(accG[mt], 4)
                    out.append(M % (v(accG[mt], 4), v(fX[setn][mt], 4), v(fX[setn][mt], 4), cc))
        return out

    J = 2 * S
    dep = c.get('dep') if mega else None
    if dep:
        table, rowsz, ncol, nrow_max = dep
        mg = (1 << 20) // rowsz + 1
        a('s_mul_i32 %s, %s, %d' % (s(s_t0), s(s_tok0), mg))
        a('s_lshr_b32 %s, %s, 20' % (s(s_t0), s(s_t0)))
        a('s_add_u32 %s, %s, %d' % (s(s_t1), s(s_tok0), BM - 1))
        a('s_mul_i32 %s, %s, %d' % (s(s_t1), s(s_t1), mg))
        a('s_lshr_b32 %s, %s, 20' % (s(s_t1), s(s_t1)))
        a('s_min_u32 %s, %s, %d' % (s(s_t1), s(s_t1), nrow_max - 1))
        for tk in range(0, 2200):
            assert (tk * mg) >> 20 == tk // rowsz
        mega_wait(a, table, s_t0, s_t1, ncol, [vt0, vt1, vt2], [s_t4, s_ex], L('dep'))
        a('s_barrier')
    if mega:
        mstamp(a, 1)
    a('s_barrier')
    if mega:
        mstamp(a, 2)
    stamp(a, ST, 1)
    for j in range(min(PD, J)):
        assert j < 2 * GRP
        for x in reads(j):
            a(x)
    for j in range(J):
        younger = min(J - 1, j + PD - 1) - j
        a('s_waitcnt lgkmcnt(%d)' % min(15, younger * nreads))
        M = mfmas(j)
        jn = j + PD
        Rd = reads(jn) if jn < J else []
        need_bar = jn < J and jn % (2 * GRP) == 0
        k = 0
        if need_bar:
            pre = len(M) // 4
            for x in M[:pre]:
                a(x)
            k = pre
            a('s_waitcnt lgkmcnt(0)')
            a('s_barrier')
        rest = M[k:]
        span = max(1, (len(rest) * 3) // 4)
        ri = 0
        for i, x in enumerate(rest):
            a(x)
            want = (len(Rd) * (i + 1) + span - 1) // span if i < span else len(Rd)
            while ri < min(want, len(Rd)):
                a(Rd[ri])
                ri += 1
        while ri < len(Rd):
            a(Rd[ri])
            ri += 1

    stamp(a, ST, 2)
    if mega:
        mstamp(a, 3)
    if LN:
        vmean = [R.alloc(2) for _ in range(MT)]
        vrinv = [R.alloc(2) for _ in range(MT)]
        vcs = [R.alloc(4, 4) for _ in range(NT)]
        T0, T1 = fW[0][0], fW[0][1]
        for j in range(2):
            a('s_lshl_b32 %s, %s, 6' % (s(s_t0), s(s_slot + j)))
            a('v_lshl_add_u32 %s, %s, 4, %s' % (v(vt0), v(vg), s(s_t0)))
            a('v_add_u32 %s, 0x%x, %s' % (v(vt0), SCOL, v(vt0)))
            a('ds_write_b128 %s, %s' % (v(vt0), v(accC[j], 4)))
        a('v_and_b32 %s, 3, %s' % (v(vt0), v(vi)))
        a('v_lshrrev_b32 %s, 2, %s' % (v(vt1), v(vi)))
        a('v_cmp_eq_u32 %s, 1, %s' % (s(s_ex, 2), v(vt0)))
        a('v_cmp_eq_u32 %s, 2, %s' % (s(s_ex + 2, 2), v(vt0)))
        a('v_cmp_eq_u32 vcc, 3, %s' % v(vt0))
        a('v_cmp_eq_u32 %s, %s, %s' % (s(s_m4, 2), v(vt1), v(vg)))
        a('s_mov_b32 %s, 0x3acccccd' % s(s_t1))
        a('v_mov_b32 %s, 0' % v(vt2))
        a('s_waitcnt lgkmcnt(0)')
        a('s_barrier')
        for nt in range(NT):
            a('s_lshl_b32 %s, %s, 6' % (s(s_t0), s(s_slot + nt)))
            a('v_lshl_add_u32 %s, %s, 4, %s' % (v(vt0), v(vg), s(s_t0)))
            a('v_add_u32 %s, 0x%x, %s' % (v(vt0), SCOL, v(vt0)))
            a('ds_read_b128 %s, %s' % (v(vcs[nt], 4), v(vt0)))
        for mt in range(MT):
            Gm = accG[mt]
            a('v_cndmask_b32 %s, %s, %s, %s' % (v(T1), v(Gm), v(Gm + 1), s(s_ex, 2)))
            a('v_cndmask_b32 %s, %s, %s, %s' % (v(T1), v(T1), v(Gm + 2), s(s_ex + 2, 2)))
            a('v_cndmask_b32 %s, %s, %s, vcc' % (v(T1), v(T1), v(Gm + 3)))
            a('v_cndmask_b32 %s, %s, %s, %s' % (v(T1), v(vt2), v(T1), s(s_m4, 2)))
            a('v_mov_b32 %s, %s' % (v(T0), v(T1)))
            a('v_permlane32_swap_b32 %s, %s' % (v(T1), v(T0)))
            a('v_add_f32 %s, %s, %s' % (v(T1), v(T1), v(T0)))
            a('v_mov_b32 %s, %s' % (v(T0), v(T1)))
            a('v_permlane16_swap_b32 %s, %s' % (v(T1), v(T0)))
            a('v_add_f32 %s, %s, %s' % (v(T1), v(T1), v(T0)))
            a('v_mul_f32 %s, %s, %s' % (v(T0), s(s_t1), v(accS[mt])))
            a('v_mul_f32 %s, %s, %s' % (v(T1), s(s_t1), v(T1)))
            a('v_fma_f32 %s, -%s, %s, %s' % (v(T1), v(T0), v(T0), v(T1)))
            a('v_max_f32 %s, 0, %s' % (v(T1), v(T1)))
            bf16_round(a, vmean[mt], T0)
            a('v_xor_b32 %s, 0x80000000, %s' % (v(vmean[mt]), v(vmean[mt])))
            bf16_round(a, T1, T1)
            a('v_add_f32 %s, 0x3727c5ac, %s' % (v(T1), v(T1)))
            bf16_round(a, T1, T1)
            a('v_sqrt_f32 %s, %s' % (v(T1), v(T1)))
            bf16_round(a, T1, T1)
            a('v_rcp_f32 %s, %s' % (v(vrinv[mt]), v(T1)))
        a('s_waitcnt lgkmcnt(0)')
        stamp(a, ST, 4)

    def ln_apply(A, mt, nt, relu):
        for h in range(2):
            a('v_pk_fma_f32 %s, %s, %s, %s op_sel_hi:[1,0,1]' % (v(A + 2 * h, 2), v(vcs[nt] + 2 * h, 2), v(vmean[mt], 2), v(A + 2 * h, 2)))
        for h in range(2):
            a('v_pk_mul_f32 %s, %s, %s op_sel_hi:[1,0]' % (v(A + 2 * h, 2), v(A + 2 * h, 2), v(vrinv[mt], 2)))
        a('v_cvt_pk_bf16_f32 %s, %s, %s' % (v(A), v(A), v(A + 1)))
        a('v_cvt_pk_bf16_f32 %s, %s, %s' % (v(A + 1), v(A + 2), v(A + 3)))
        if relu:
            a('v_pk_max_i16 %s, %s, 0' % (v(A), v(A)))
            a('v_pk_max_i16 %s, %s, 0' % (v(A + 1), v(A + 1)))

    cbuf = [fX[0][0], fX[0][1], fX[1][0], fX[1][1]] + [fW[1][j] for j in range(NT)] + [fW[0][j] for j in range(NT)]

    if epi == 'qkv':
        PS = 288
        assert 4 * 32 * PS <= STG_ROOM
        s_wb = s_kx
        a('s_mul_i32 %s, %s, %d' % (s(s_wb), s(s_wave), 32 * PS))
        a('s_add_u32 %s, %s, 0x%x' % (s(s_wb), s(s_wb), STG))
        vw = R.alloc()
        a('v_mul_u32_u24 %s, %d, %s' % (v(vw), PS, v(vg)))
        a('v_lshl_add_u32 %s, %s, 3, %s' % (v(vw), v(vi), v(vw)))
        a('v_add_u32 %s, %s, %s' % (v(vw), s(s_wb), v(vw)))
        vws = vWa
        for nt in range(NT):
            a('s_mul_i32 %s, %s, %d' % (s(s_t0), s(s_slot + nt), 4 * PS))
            a('v_add_u32 %s, %s, %s' % (v(vws[nt]), s(s_t0), v(vw)))
        for nt in range(NT):
            for mt in range(MT):
                A = acc[mt][nt]
                ln_apply(A, mt, nt, False)
                a('ds_write_b64 %s, %s offset:%d' % (v(vws[nt]), v(A, 2), mt * 128))
        vr, vgo = R.alloc(), R.alloc()
        a('v_mul_u32_u24 %s, %d, %s' % (v(vr), PS, v(vg)))
        a('v_lshl_add_u32 %s, %s, 4, %s' % (v(vr), v(vi), v(vr)))
        a('v_add_u32 %s, %s, %s' % (v(vr), s(s_wb), v(vr)))
        a('s_lshl_b32 %s, %s, 5' % (s(s_t0), s(s_wave)))
        a('s_add_u32 %s, %s, %s' % (s(s_t0), s(s_t0), s(s_tok0)))
        a('s_lshl_b32 %s, %s, 3' % (s(s_t0), s(s_t0)))
        a('s_lshl_b32 %s, %s, 19' % (s(s_t1), s(s_cb)))
        a('s_add_u32 %s, %s, %s' % (s(s_t0), s(s_t0), s(s_t1)))
        a('v_lshlrev_b32 %s, 14, %s' % (v(vgo), v(vg)))
        a('v_lshl_add_u32 %s, %s, 4, %s' % (v(vgo), v(vi), v(vgo)))
        a('v_add_u32 %s, %s, %s' % (v(vgo), s(s_t0), v(vgo)))
        a('s_waitcnt lgkmcnt(0)')
        stamp(a, ST, 5)
        for it in range(8):
            a('ds_read_b128 %s, %s offset:%d' % (v(cbuf[it], 4), v(vr), it * 4 * PS))
        for it in range(8):
            a('s_mov_b32 %s, %d' % (s(s_t0), it * 4 * 16384))
            a('s_waitcnt lgkmcnt(%d)' % (7 - it))
            a('buffer_store_dwordx4 %s, %s, %s, %s offen%s' % (v(cbuf[it], 4), v(vgo), s(sO, 4), s(s_t0), stf))
    elif epi == 'relu':
        RS = 272
        assert 4 * 32 * RS <= STG_ROOM
        s_wb = s_kx
        a('s_mul_i32 %s, %s, %d' % (s(s_wb), s(s_wave), 32 * RS))
        a('s_add_u32 %s, %s, 0x%x' % (s(s_wb), s(s_wb), STG))
        vw = R.alloc()
        a('v_mul_u32_u24 %s, %d, %s' % (v(vw), RS, v(vi)))
        a('v_lshl_add_u32 %s, %s, 3, %s' % (v(vw), v(vg), v(vw)))
        a('v_add_u32 %s, %s, %s' % (v(vw), s(s_wb), v(vw)))
        vws = vWa
        for nt in range(NT):
            a('s_lshl_b32 %s, %s, 5' % (s(s_t0), s(s_slot + nt)))
            a('v_add_u32 %s, %s, %s' % (v(vws[nt]), s(s_t0), v(vw)))
        for nt in range(NT):
            for mt in range(MT):
                A = acc[mt][nt]
                ln_apply(A, mt, nt, True)
                a('ds_write_b64 %s, %s offset:%d' % (v(vws[nt]), v(A, 2), mt * 16 * RS))
        vr, vgo = R.alloc(), R.alloc()
        a('v_mul_u32_u24 %s, %d, %s' % (v(vr), RS, v(vg)))
        a('v_lshl_add_u32 %s, %s, 4, %s' % (v(vr), v(vi), v(vr)))
        a('v_add_u32 %s, %s, %s' % (v(vr), s(s_wb), v(vr)))
        a('s_lshl_b32 %s, %s, 5' % (s(s_t0), s(s_wave)))
        a('s_add_u32 %s, %s, %s' % (s(s_t0), s(s_t0), s(s_tok0)))
        a('v_add_u32 %s, %s, %s' % (v(vgo), s(s_t0), v(vg)))
        a('v_mul_u32_u24 %s, %d, %s' % (v(vgo), N * 2, v(vgo)))
        a('v_lshl_add_u32 %s, %s, 4, %s' % (v(vgo), v(vi), v(vgo)))
        a('s_lshl_b32 %s, %s, 1' % (s(s_t0), s(s_col0)))
        a('v_add_u32 %s, %s, %s' % (v(vgo), s(s_t0), v(vgo)))
        nvalid_chunks = (N - (c['NB'] - 1) * BN) // 8
        a('s_cmp_eq_u32 %s, %d' % (s(s_cb), c['NB'] - 1))
        a('s_cselect_b32 %s, %d, 16' % (s(s_t1), nvalid_chunks))
        a('v_cmp_gt_u32 vcc, %s, %s' % (s(s_t1), v(vi)))
        a('s_waitcnt lgkmcnt(0)')
        stamp(a, ST, 5)
        for it in range(8):
            a('ds_read_b128 %s, %s offset:%d' % (v(cbuf[it], 4), v(vr), it * 4 * RS))
        a('s_and_saveexec_b64 %s, vcc' % s(s_ex, 2))
        for it in range(8):
            a('s_mov_b32 %s, %d' % (s(s_t0), it * 4 * N * 2))
            a('s_waitcnt lgkmcnt(%d)' % (7 - it))
            a('buffer_store_dwordx4 %s, %s, %s, %s offen%s' % (v(cbuf[it], 4), v(vgo), s(sO, 4), s(s_t0), stf))
        a('s_mov_b64 exec, %s' % s(s_ex, 2))
    elif epi == 'resid':
        RS = 144
        assert BM * RS <= STG_ROOM
        vw = R.alloc()
        a('s_mul_i32 %s, %s, %d' % (s(s_t0), s(s_wm), MT * 16 * RS))
        a('s_mul_i32 %s, %s, %d' % (s(s_t1), s(s_wn), NT * 32))
        a('s_add_u32 %s, %s, %s' % (s(s_t0), s(s_t0), s(s_t1)))
        a('s_add_u32 %s, %s, 0x%x' % (s(s_t0), s(s_t0), STG))
        a('v_mul_u32_u24 %s, %d, %s' % (v(vw), RS, v(vi)))
        a('v_lshl_add_u32 %s, %s, 3, %s' % (v(vw), v(vg), v(vw)))
        a('v_add_u32 %s, %s, %s' % (v(vw), s(s_t0), v(vw)))
        for nt in range(NT):
            for mt in range(MT):
                A = acc[mt][nt]
                a('v_cvt_pk_bf16_f32 %s, %s, %s' % (v(A), v(A), v(A + 1)))
                a('v_cvt_pk_bf16_f32 %s, %s, %s' % (v(A + 1), v(A + 2), v(A + 3)))
                a('ds_write_b64 %s, %s offset:%d' % (v(vw), v(A, 2), mt * 16 * RS + nt * 32))
        vr = R.alloc()
        a('s_mul_i32 %s, %s, %d' % (s(s_t0), s(s_wave), NCH * 8 * RS))
        a('s_add_u32 %s, %s, 0x%x' % (s(s_t0), s(s_t0), STG))
        a('v_lshrrev_b32 %s, 3, v0' % v(vr))
        a('v_mul_u32_u24 %s, %d, %s' % (v(vr), RS, v(vr)))
        a('v_and_b32 %s, 7, v0' % v(vt0))
        a('v_lshl_add_u32 %s, %s, 4, %s' % (v(vr), v(vt0), v(vr)))
        a('v_add_u32 %s, %s, %s' % (v(vr), s(s_t0), v(vr)))
        a('s_mov_b32 %s, 0xffff0000' % s(s_t0))
        a('s_waitcnt lgkmcnt(0)')
        a('s_barrier')
        for j in range(NCH):
            a('ds_read_b128 %s, %s offset:%d' % (v(cbuf[j], 4), v(vr), j * 8 * RS))
        a('s_waitcnt vmcnt(0)')
        for j in range(NCH):
            a('s_waitcnt lgkmcnt(%d)' % (NCH - 1 - j))
            Cb, Rr = cbuf[j], vRes[j]
            for h in range(4):
                a('v_lshlrev_b32 %s, 16, %s' % (v(vt0), v(Cb + h)))
                a('v_and_b32 %s, %s, %s' % (v(vt1), s(s_t0), v(Cb + h)))
                a('v_lshlrev_b32 %s, 16, %s' % (v(vt2), v(Rr + h)))
                a('v_and_b32 %s, %s, %s' % (v(vt3), s(s_t0), v(Rr + h)))
                a('v_add_f32 %s, %s, %s' % (v(vt0), v(vt0), v(vt2)))
                a('v_add_f32 %s, %s, %s' % (v(vt1), v(vt1), v(vt3)))
                a('v_cvt_pk_bf16_f32 %s, %s, %s' % (v(Cb + h), v(vt0), v(vt1)))
            a('buffer_store_dwordx4 %s, %s, %s, 0 offen%s' % (v(Cb, 4), v(vOut[j]), s(sO, 4), stf if (c['o'][0] == 'ws' or c.get('outsc1')) else ''))
    if mega:
        mstamp(a, 4)
        a('s_waitcnt vmcnt(0)')
        a('s_barrier')
        if c.get('sig'):
            mega_signal(a, c['sig'], s_rb, s_cb, vt0, s_t0, L('sig'))
        mflush(a, c['kidx'], L('mfl'))
        a('s_branch %s' % L('end'))
    else:
        stamp_flush(a, ST, c.get('kidx', 0), 3, s_wave, L('sdone'))
        a('s_endpgm')
    vmax = 254 if ST else R.hi

    a.label(L('loader'))
    if c.get('prio') == 'l':
        a('s_setprio 1')
    R = Regs(1, 256, 'v')
    vt0, vt1, vt2, vt3, vl3, vl7 = [R.alloc() for _ in range(6)]
    s_lw = s_wave
    a('s_sub_u32 %s, %s, 4' % (s(s_lw), s(s_wave)))
    a('v_lshrrev_b32 %s, 3, v0' % v(vl3))
    a('v_and_b32 %s, 7, v0' % v(vl7))
    vX = [R.alloc() for _ in range(nX)]
    vXj = [R.alloc() for _ in range(nX)]
    vXo = [R.alloc() for _ in range(nX)]
    vW = [R.alloc() for _ in range(nW)]
    a('s_mul_i32 %s, %s, %d' % (s(s_t0), s(s_lw), BM // 4))
    for j in range(nX):
        a('s_add_u32 %s, %s, %d' % (s(s_t1), s(s_t0), 8 * j))
        a('v_add_u32 %s, %s, %s' % (v(vt0), s(s_t1), v(vl3)))
        a('v_bfe_u32 %s, %s, 1, 3' % (v(vt1), v(vt0)))
        a('v_xor_b32 %s, %s, %s' % (v(vt1), v(vt1), v(vl7)))
        a('v_add_u32 %s, %s, %s' % (v(vt0), s(s_tok0), v(vt0)))
        if pairX:
            a('v_mul_u32_u24 %s, 80, %s' % (v(vX[j]), v(vt0)))
            a('v_mov_b32 %s, %s' % (v(vXj[j]), v(vt1)))
        else:
            a('v_mul_u32_u24 %s, %d, %s' % (v(vt0), strideX, v(vt0)))
            a('v_lshl_add_u32 %s, %s, 4, %s' % (v(vX[j]), v(vt1), v(vt0)))
    lg = G.bit_length() - 1
    a('s_lshl_b32 %s, %s, 4' % (s(s_t0), s(s_lw)))
    a('s_lshl_b32 %s, %s, 1' % (s(s_t1), s(s_col0)))
    for j in range(nW):
        a('v_add_u32 %s, %d, v0' % (v(vt0), 64 * j))
        a('v_lshrrev_b32 %s, %d, %s' % (v(vt1), lg, v(vt0)))
        a('v_and_b32 %s, %d, %s' % (v(vt0), G - 1, v(vt0)))
        if rowW == 256:
            a('v_and_b32 %s, 7, %s' % (v(vt2), v(vt1)))
            a('v_lshlrev_b32 %s, 1, %s' % (v(vt2), v(vt2)))
        else:
            a('v_and_b32 %s, 6, %s' % (v(vt2), v(vt1)))
        a('v_xor_b32 %s, %s, %s' % (v(vt0), v(vt0), v(vt2)))
        a('v_and_b32 %s, 3, %s' % (v(vt2), v(vt1)))
        a('v_bfe_u32 %s, %s, 3, 1' % (v(vt3), v(vt1)))
        a('v_lshl_add_u32 %s, %s, 2, %s' % (v(vt2), v(vt3), v(vt2)))
        a('v_bfe_u32 %s, %s, 2, 1' % (v(vt3), v(vt1)))
        a('v_lshl_add_u32 %s, %s, 3, %s' % (v(vt2), v(vt3), v(vt2)))
        a('v_add_u32 %s, %s, %s' % (v(vt2), s(s_t0), v(vt2)))
        a('v_mul_u32_u24 %s, %d, %s' % (v(vt2), strideW, v(vt2)))
        a('v_lshl_add_u32 %s, %s, 4, %s' % (v(vt2), v(vt0), v(vt2)))
        a('v_add_u32 %s, %s, %s' % (v(vW[j]), s(s_t1), v(vt2)))
    a('s_mul_i32 %s, %s, %d' % (s(s_ldsX), s(s_lw), (BM // 4) * 128))
    a('s_mul_i32 %s, %s, %d' % (s(s_ldsW), s(s_lw), 16 * rowW))
    ra, rc = c['rot']
    a('s_mul_i32 %s, %s, %d' % (s(s_t2), s(s_t2), ra))
    a('s_mul_i32 %s, %s, %d' % (s(s_t3), s(s_t3), rc))
    a('s_add_u32 %s, %s, %s' % (s(s_st), s(s_t2), s(s_t3)))
    for _ in range(rot_max // S):
        a('s_cmp_ge_u32 %s, %d' % (s(s_st), S))
        a('s_cselect_b32 %s, %d, 0' % (s(s_t1), S))
        a('s_sub_u32 %s, %s, %s' % (s(s_st), s(s_st), s(s_t1)))
    a('s_lshl_b32 %s, %s, 7' % (s(s_kx), s(s_st)))
    a('s_mul_i32 %s, %s, %d' % (s(s_kw), s(s_st), 64 * strideW))
    a('s_waitcnt lgkmcnt(0)')
    build_srd(a, sX, pX, c['x'][1], c.get('xbytes', 2048 * strideX))
    build_srd(a, sW, pW, 0, K * strideW)

    ops = []
    s_kx2 = s_t4

    def issueW(st):
        base = (st % D) * SLOT
        for j in range(nW):
            a('s_add_u32 m0, %s, 0x%x' % (s(s_ldsW), base + XB + j * 1024))
            a('buffer_load_dwordx4 %s, %s, %s offen lds' % (v(vW[j]), s(sW, 4), s(s_kw)))
            ops.append(st)
        a('s_add_u32 %s, %s, %d' % (s(s_kw), s(s_kw), 64 * strideW))
        a('s_cmp_eq_u32 %s, %d' % (s(s_kw), S * 64 * strideW))
        a('s_cselect_b32 %s, 0, %s' % (s(s_kw), s(s_kw)))

    def issueX(st):
        base = (st % D) * SLOT
        for j in range(nX):
            if pairX:
                a('s_lshr_b32 %s, %s, 4' % (s(s_t0), s(s_kx)))
                a('v_add_u32 %s, %s, %s' % (v(vt0), s(s_t0), v(vXj[j])))
                a('v_mul_u32_u24 %s, 205, %s' % (v(vt1), v(vt0)))
                a('v_lshrrev_b32 %s, 10, %s' % (v(vt1), v(vt1)))
                a('v_mul_u32_u24 %s, 5, %s' % (v(vt2), v(vt1)))
                a('v_sub_u32 %s, %s, %s' % (v(vt0), v(vt0), v(vt2)))
                a('v_mul_u32_u24 %s, 163840, %s' % (v(vt1), v(vt1)))
                a('v_lshl_add_u32 %s, %s, 4, %s' % (v(vt1), v(vt0), v(vt1)))
                a('v_add_u32 %s, %s, %s' % (v(vXo[j]), v(vt1), v(vX[j])))
                a('s_add_u32 m0, %s, 0x%x' % (s(s_ldsX), base + j * 1024))
                a('buffer_load_dwordx4 %s, %s, 0 offen lds%s' % (v(vXo[j]), s(sX, 4), ldf))
            else:
                a('s_add_u32 m0, %s, 0x%x' % (s(s_ldsX), base + j * 1024))
                a('buffer_load_dwordx4 %s, %s, %s offen lds%s' % (v(vX[j]), s(sX, 4), s(s_kx), ldf))
            ops.append(st)
        a('s_add_u32 %s, %s, 128' % (s(s_kx), s(s_kx)))
        a('s_cmp_eq_u32 %s, %d' % (s(s_kx), S * 128))
        a('s_cselect_b32 %s, 0, %s' % (s(s_kx), s(s_kx)))

    def issue(st):
        issueW(st)
        issueX(st)

    def wait_stage(last_needed):
        n = 0
        for tag in reversed(ops):
            if tag <= last_needed:
                break
            n += 1
        a('s_waitcnt vmcnt(%d)' % min(63, n))

    issued = 0
    pf_done = False
    npro = max(GRP, min(D - GRP, S, c.get('pro', 3)))
    if dep:
        for u in range(npro):
            issueW(u)
        a('s_barrier')
        for u in range(npro):
            issueX(u)
        issued = npro
    else:
        for _ in range(npro):
            issue(issued)
            issued += 1
    for g in range(NG):
        last_needed = min(S, (g + 1) * GRP) - 1
        while issued <= last_needed:
            issue(issued)
            issued += 1
        wait_stage(last_needed)
        a('s_barrier')
        n = 0
        while issued < S and issued < (g + DG) * GRP and n < 2 * GRP:
            issue(issued)
            issued += 1
            n += 1
        if mega and issued == S and not pf_done:
            pf_done = True
            for wn in c.get('pfw', ()):
                vtid = R.alloc()
                a('v_lshl_add_u32 %s, %s, 6, v0' % (v(vtid), s(s_lw)))
                n0 = sum('buffer_load_dword ' in l for l in a.lines)
                weight_prefetch(a, wn, vtid, 256, [vt0, vt1, vt2], vt3, sO, MP[wn], [s_t0, s_t1, s_t2], preloaded=True)
                ops.extend([10 ** 9] * (sum('buffer_load_dword ' in l for l in a.lines) - n0))
    if LN:
        a('s_barrier')
    for wn in (() if mega else c.get('pfw', ())):
        vtid = R.alloc()
        a('v_lshl_add_u32 %s, %s, 6, v0' % (v(vtid), s(s_lw)))
        weight_prefetch(a, wn, vtid, 256, [vt0, vt1, vt2], vt3, sO, pO, [s_t0, s_t1, s_t2])
    if mega:
        if epi == 'resid':
            a('s_barrier')
        a('s_barrier')
        a.label(L('end'))
        if c.get('prio'):
            a('s_setprio 0')
    else:
        a.label(L('end'))
        a('s_endpgm')
    vmax = max(vmax, R.hi)
    return dict(name=name, vgpr=vmax, sgpr=90 if ST else 60, lds=lds_total, block=512, grid=256)


CFG_QKV = dict(name='qkv_kernel', kidx=0, BM=128, BN=128, K=640, N=1920, WM=4, WN=1, D=4, LN=True, epi='qkv',
               x=('x', 0), w='wqkv', o=('ws', WS_QKV), obytes=QKV_BYTES, NB=15, map='p2', rb_per_xcd=4, cb_stride=8, rot=(0, 0), prio='l', pfw=('wo',), sig='qkv')
CFG_WO = dict(name='wo_kernel', kidx=2, BM=96, BN=64, K=640, N=640, WM=2, WN=2, D=8, GRP=2, PD=3, pro=6, epi='resid', pairX=True, xbytes=16 * 163840,
              x=('ws', WS_O), w='wo', o=('ws', WS_H), obytes=2048 * 1280, r=('x', 0), map='22x10', rot=(0, 0), prio='l', dep=('attn', 128, 16, 16), sig='wo')
CFG_W1 = dict(name='w1_kernel', kidx=3, BM=128, BN=128, K=640, N=1728, WM=4, WN=1, D=4, LN=True, epi='relu',
              x=('ws', WS_H), w='w1', o=('ws', WS_H1), obytes=2048 * 3456, NB=14, map='p2', rb_per_xcd=4, cb_stride=7, rot=(0, 0), prio='l', pfw=('w2',), dep=('wo', 96, 10, 22), sig='w1')
CFG_W2 = dict(name='w2_kernel', kidx=4, BM=96, BN=64, K=1728, N=640, WM=2, WN=2, D=8, GRP=2, PD=3, pro=6, epi='resid',
              x=('ws', WS_H1), w='w2', o=('out', 0), obytes=2048 * 1280, r=('ws', WS_H), map='22x10', rot=(0, 0), prio='l', dep=('w1', 128, 14, 16), outsc1=1)
```

```python
import math
import struct
from asmlib import Asm, Regs, v, s
from gemm import build_srd, KA, WS_QKV, WS_O, QKV_BYTES, stamp, stamp_flush, STFLAG, weight_prefetch, MP, M_WAVE, mega_wait, mega_signal, mstamp, mflush


def f32bits(x):
    return struct.unpack('<I', struct.pack('<f', x))[0]


def gen_attn(a, ST=False, mega=False):
    name = 'attn_kernel'
    L = lambda x: '%s_%s' % (name, x)
    PL = 3136
    HB = 11 * PL
    KP, VP = 0, 5 * PL
    STG = 2 * HB
    LDS = STG + 10240
    sQ, sO = 4, 8
    pWS = 12
    s_head, s_qb, s_wave, s_t0, s_t1, s_hk, s_c, s_nm = 14, 15, 16, 17, 18, 19, 20, 21
    sM = [22, 24, 26, 28]
    s_m3, s_m2 = 30, 32
    s_pair, s_wq, s_hh, s_lb = 34, 35, 36, 37

    ldf = ' sc1' if mega else ''
    stf = ' sc1' if mega else STFLAG
    if mega:
        ST = False
        pWS = MP['ws']
        a.label(name)
        mstamp(a, 0)
    else:
        a.raw('.p2align 8')
        a.raw('.globl %s' % name)
        a.raw('.type %s,@function' % name)
        a.label(name)
        stamp(a, ST, 0)
        a('s_load_dwordx2 %s, s[0:1], %d' % (s(pWS, 2), KA['ws']))
        a('s_load_dwordx2 s[44:45], s[0:1], %d' % KA['w1'])
        a('s_cmp_ge_u32 s2, 256')
        a('s_cbranch_scc1 %s' % L('end'))
    a('s_and_b32 %s, s2, 7' % s(s_t0))
    a('s_lshr_b32 %s, s2, 3' % s(s_t1))
    a('s_lshl_b32 %s, %s, 1' % (s(s_pair), s(s_t0)))
    a('s_and_b32 %s, %s, 1' % (s(s_t0), s(s_t1)))
    a('s_add_u32 %s, %s, %s' % (s(s_pair), s(s_pair), s(s_t0)))
    a('s_lshr_b32 %s, %s, 1' % (s(s_qb), s(s_t1)))
    if mega:
        a('s_mov_b32 %s, %s' % (s(s_wave), s(M_WAVE)))
    else:
        a('v_lshrrev_b32 v1, 6, v0')
        a('v_and_b32 v0, 63, v0')
        a('v_readfirstlane_b32 %s, v1' % s(s_wave))
    R = Regs(1, 256, 'v')
    vg, vi, vt0, vt1, vt2, vt3, vg2 = [R.alloc() for _ in range(7)]
    a('v_lshrrev_b32 %s, 4, v0' % v(vg))
    a('v_and_b32 %s, 15, v0' % v(vi))
    a('v_min_u32 %s, 2, %s' % (v(vg2), v(vg)))
    a('s_and_b32 %s, %s, 3' % (s(s_wq), s(s_wave)))
    a('s_lshr_b32 %s, %s, 2' % (s(s_hh), s(s_wave)))
    a('s_lshl_b32 %s, %s, 1' % (s(s_head), s(s_pair)))
    a('s_add_u32 %s, %s, %s' % (s(s_head), s(s_head), s(s_hh)))
    a('s_mul_i32 %s, %s, %d' % (s(s_lb), s(s_hh), HB))
    a('s_mul_i32 %s, %s, %d' % (s(s_hk), s(s_head), 5 * 16384))
    a('s_lshl_b32 %s, %s, 10' % (s(s_t0), s(s_qb)))
    a('s_add_u32 %s, %s, %s' % (s(s_hk), s(s_hk), s(s_t0)))
    a('s_sub_u32 %s, %s, %d' % (s(s_hk), s(s_hk), 2048))
    a('v_lshlrev_b32 %s, 4, v0' % v(vt0))
    a('s_mul_i32 %s, %s, 768' % (s(s_t1), s(s_wq)))
    vkey = R.alloc()
    a('s_lshl_b32 %s, %s, 10' % (s(s_nm), s(s_qb)))
    a('s_add_u32 %s, %s, %s' % (s(s_nm), s(s_nm), s(s_t1)))
    a('s_sub_u32 %s, %s, 2048' % (s(s_nm), s(s_nm)))
    a('v_add_u32 %s, %s, %s' % (v(vkey), s(s_nm), v(vt0)))
    a('v_max_i32 %s, 0, %s' % (v(vkey), v(vkey)))
    a('s_mul_i32 %s, %s, %d' % (s(s_nm), s(s_head), 5 * 16384))
    a('s_add_u32 %s, %s, %s' % (s(s_t1), s(s_t1), s(s_lb)))
    a('s_mov_b32 s38, -1')
    a('s_mov_b32 s39, 0xffff')
    vq0, vq1 = R.alloc(), R.alloc()
    a('v_lshlrev_b32 %s, 1, %s' % (v(vt1), v(vg)))
    a('v_min_u32 %s, 4, %s' % (v(vt2), v(vt1)))
    a('v_add_u32 %s, 1, %s' % (v(vt1), v(vt1)))
    a('v_min_u32 %s, 4, %s' % (v(vt1), v(vt1)))
    vp0, vp1 = R.alloc(), R.alloc()
    a('v_mov_b32 %s, %s' % (v(vp0), v(vt2)))
    a('v_mov_b32 %s, %s' % (v(vp1), v(vt1)))
    a('v_lshlrev_b32 %s, 14, %s' % (v(vq0), v(vt2)))
    a('v_lshl_add_u32 %s, %s, 3, %s' % (v(vq0), v(vi), v(vq0)))
    a('v_lshlrev_b32 %s, 14, %s' % (v(vq1), v(vt1)))
    a('v_lshl_add_u32 %s, %s, 3, %s' % (v(vq1), v(vi), v(vq1)))
    a('s_waitcnt lgkmcnt(0)')
    build_srd(a, sQ, pWS, WS_QKV, QKV_BYTES)
    if mega:
        vd = [R.alloc() for _ in range(3)]
        a('s_sub_u32 s40, %s, 2' % s(s_qb))
        mega_wait(a, 'qkv', 40, s_qb, 15, vd, [41, 42], L('dep'))
        a('s_barrier')
        mstamp(a, 1)
    a('s_mov_b64 exec, s[38:39]')
    for pc in range(5):
        a('s_add_u32 %s, %s, %d' % (s(s_t0), s(s_nm), (160 + pc) * 16384))
        a('s_add_u32 m0, %s, %d' % (s(s_t1), KP + pc * PL))
        a('buffer_load_dwordx4 %s, %s, %s offen lds%s' % (v(vkey), s(sQ, 4), s(s_t0), ldf))
    a('s_mov_b64 exec, -1')
    fQ = [R.alloc(4, 4) for _ in range(2)]
    a('s_lshl_b32 %s, %s, 8' % (s(s_t0), s(s_wq)))
    a('s_add_u32 %s, %s, %s' % (s(s_t0), s(s_t0), s(s_hk)))
    a('s_add_u32 %s, %s, 2048' % (s(s_t0), s(s_t0)))
    for aa in range(2):
        a('buffer_load_dwordx2 %s, %s, %s, %s offen offset:%d%s' % (v(fQ[aa], 2), v(vq0), s(sQ, 4), s(s_t0), aa * 128, ldf))
        a('buffer_load_dwordx2 %s, %s, %s, %s offen offset:%d%s' % (v(fQ[aa] + 2, 2), v(vq1), s(sQ, 4), s(s_t0), aa * 128, ldf))
    a('s_mov_b64 exec, s[38:39]')
    for pc in range(5):
        a('s_add_u32 %s, %s, %d' % (s(s_t0), s(s_nm), (320 + pc) * 16384))
        a('s_add_u32 m0, %s, %d' % (s(s_t1), VP + pc * PL))
        a('buffer_load_dwordx4 %s, %s, %s offen lds%s' % (v(vkey), s(sQ, 4), s(s_t0), ldf))
    vone = R.alloc(4, 4)
    a('v_mov_b32 %s, 0x3f80' % v(vone))
    a('v_mov_b32 %s, 0' % v(vone + 1))
    a('v_mov_b32 %s, 0x3f80' % v(vone + 2))
    a('v_mov_b32 %s, 0' % v(vone + 3))
    a('v_add_u32 %s, %s, %s' % (v(vt1), s(s_t1), v(vt0)))
    a('ds_write_b128 %s, %s offset:%d' % (v(vt1), v(vone, 4), 10 * PL))
    a('s_mov_b64 exec, -1')
    build_srd(a, sO, pWS, WS_O, 16 * 163840)
    for r in range(4):
        a('v_lshl_add_u32 %s, %s, 2, %d' % (v(vt3), v(vg), r))
        a('v_cmp_le_u32 %s, %s, %s' % (s(sM[r], 2), v(vt3), v(vi)))
    a('v_cmp_eq_u32 %s, 3, %s' % (s(s_m3, 2), v(vg)))
    a('v_cmp_le_u32 %s, 2, %s' % (s(s_m2, 2), v(vg)))
    vML = [R.alloc() for _ in range(2)]
    vMH = [R.alloc() for _ in range(2)]
    vz = R.alloc()
    a('v_mov_b32 %s, 0' % v(vz))
    a('v_mov_b32 %s, 0xffff' % v(vt3))
    vhi16 = R.alloc()
    a('v_mov_b32 %s, 0xffff0000' % v(vhi16))
    for h in range(2):
        a('v_cndmask_b32 %s, %s, %s, %s' % (v(vML[h]), v(vz), v(vt3), s(sM[2 * h], 2)))
        a('v_cndmask_b32 %s, %s, %s, %s' % (v(vMH[h]), v(vz), v(vhi16), s(sM[2 * h + 1], 2)))
        a('v_or_b32 %s, %s, %s' % (v(vML[h]), v(vML[h]), v(vMH[h])))
        a('v_not_b32 %s, %s' % (v(vMH[h]), v(vML[h])))
    a('s_mov_b32 %s, 0x%x' % (s(s_c), f32bits(20 ** -0.5 * math.log2(math.e))))
    vKa0, vKa1, vV0a, vV1a = R.alloc(), R.alloc(), R.alloc(), R.alloc()
    a('s_lshl_b32 %s, %s, 8' % (s(s_t0), s(s_wq)))
    a('s_add_u32 %s, %s, %s' % (s(s_t0), s(s_t0), s(s_lb)))
    a('v_lshl_add_u32 %s, %s, 3, %s' % (v(vt3), v(vi), s(s_t0)))
    a('v_mul_u32_u24 %s, %d, %s' % (v(vKa0), PL, v(vp0)))
    a('v_add_u32 %s, %s, %s' % (v(vKa0), v(vKa0), v(vt3)))
    a('v_mul_u32_u24 %s, %d, %s' % (v(vKa1), PL, v(vp1)))
    a('v_add_u32 %s, %s, %s' % (v(vKa1), v(vKa1), v(vt3)))
    a('s_add_u32 %s, %s, %d' % (s(s_t0), s(s_t0), VP))
    a('v_lshrrev_b32 %s, 2, v0' % v(vt3))
    a('v_lshl_add_u32 %s, %s, 3, %s' % (v(vt3), v(vt3), s(s_t0)))
    a('v_and_b32 %s, 3, v0' % v(vV0a))
    a('v_mul_u32_u24 %s, %d, %s' % (v(vV0a), PL, v(vV0a)))
    a('v_add_u32 %s, %s, %s' % (v(vV0a), v(vV0a), v(vt3)))
    a('v_and_b32 %s, 1, v0' % v(vV1a))
    a('v_mul_u32_u24 %s, %d, %s' % (v(vV1a), PL, v(vV1a)))
    a('v_add_u32 %s, %s, %s' % (v(vV1a), v(vV1a), v(vt3)))
    a('v_add_u32 %s, %d, %s' % (v(vV1a), 4 * PL, v(vV1a)))
    a('s_waitcnt vmcnt(5)')
    for aa in range(2):
        for r in range(2):
            a('v_cndmask_b32 %s, %s, %s, %s' % (v(fQ[aa] + r), v(fQ[aa] + r), v(vz), s(s_m3, 2)))
        for r in range(2, 4):
            a('v_cndmask_b32 %s, %s, %s, %s' % (v(fQ[aa] + r), v(fQ[aa] + r), v(vz), s(s_m2, 2)))
    a('s_waitcnt lgkmcnt(0)')
    a('s_barrier')
    stamp(a, ST, 1)
    if mega:
        mstamp(a, 2)

    Sreg = [[R.alloc(4, 4) for t in range(17)] for aa in range(2)]
    NKB = 6
    fK = [R.alloc(4, 4) for _ in range(NKB)]
    def kread(t):
        a('ds_read_b64 %s, %s offset:%d' % (v(fK[t % NKB], 2), v(vKa0), t * 128))
        a('ds_read_b64 %s, %s offset:%d' % (v(fK[t % NKB] + 2, 2), v(vKa1), t * 128))
    for t in range(min(NKB, 18)):
        kread(t)
    for t in range(18):
        outstanding_after = min(17, t + NKB - 1) - t
        a('s_waitcnt lgkmcnt(%d)' % (2 * outstanding_after))
        if t <= 16:
            a('v_mfma_f32_16x16x32_bf16 %s, %s, %s, 0' % (v(Sreg[0][t], 4), v(fK[t % NKB], 4), v(fQ[0], 4)))
        if t >= 1:
            a('v_mfma_f32_16x16x32_bf16 %s, %s, %s, 0' % (v(Sreg[1][t - 1], 4), v(fK[t % NKB], 4), v(fQ[1], 4)))
        if t + NKB < 18:
            kread(t + NKB)
    a('s_nop 7')
    a('s_cmp_ge_u32 %s, 2' % s(s_qb))
    a('s_cbranch_scc1 %s' % L('nomask'))
    for aa in range(2):
        a('s_lshl_b32 %s, %s, 1' % (s(s_nm), s(s_wq)))
        a('s_lshl_b32 %s, %s, 3' % (s(s_t0), s(s_qb)))
        a('s_add_u32 %s, %s, %s' % (s(s_nm), s(s_nm), s(s_t0)))
        a('s_sub_u32 %s, %d, %s' % (s(s_nm), 16 - aa, s(s_nm)))
        for t in range(16):
            a('s_cmp_gt_u32 %s, %d' % (s(s_nm), t))
            a('s_cbranch_scc0 %s' % L('mdone%d' % aa))
            for r in range(4):
                a('v_mov_b32 %s, 0xf149f2ca' % v(Sreg[aa][t] + r))
        a.label(L('mdone%d' % aa))
    a.label(L('nomask'))

    vmx, vmx2 = R.alloc(), R.alloc()
    import os
    PK = bool(os.environ.get('PK'))
    vcc2, vnm = R.alloc(2), R.alloc(2)
    a('v_mov_b32 %s, %s' % (v(vcc2), s(s_c)))
    Oacc = [[R.alloc(4, 4) for dt in range(2)] for aa in range(2)]

    def softmax(aa):
        Sg = Sreg[aa]
        for r in range(4):
            a('v_cndmask_b32 %s, %s, %s, %s' % (v(Sg[16] + r), v(Sg[0] + r), v(Sg[16] + r), s(sM[r], 2)))
        vals = [Sg[t] + r for t in range(1, 17) for r in range(4)]
        a('v_max3_f32 %s, %s, %s, %s' % (v(vmx), v(vals[0]), v(vals[1]), v(vals[2])))
        a('v_max3_f32 %s, %s, %s, %s' % (v(vmx2), v(vals[3]), v(vals[4]), v(vals[5])))
        k = 6
        tog = 0
        while k + 1 < len(vals):
            d = vmx if tog == 0 else vmx2
            a('v_max3_f32 %s, %s, %s, %s' % (v(d), v(d), v(vals[k]), v(vals[k + 1])))
            k += 2
            tog ^= 1
        assert k == len(vals)
        a('v_max_f32 %s, %s, %s' % (v(vmx), v(vmx), v(vmx2)))
        a('v_mov_b32 %s, %s' % (v(vmx2), v(vmx)))
        a('v_permlane32_swap_b32 %s, %s' % (v(vmx), v(vmx2)))
        a('v_max_f32 %s, %s, %s' % (v(vmx), v(vmx), v(vmx2)))
        a('v_mov_b32 %s, %s' % (v(vmx2), v(vmx)))
        a('v_permlane16_swap_b32 %s, %s' % (v(vmx), v(vmx2)))
        a('v_max_f32 %s, %s, %s' % (v(vmx), v(vmx), v(vmx2)))
        a('v_mul_f32 %s, %s, %s' % (v(vmx), s(s_c), v(vmx)))
        if PK:
            a('v_sub_f32 %s, 0, %s' % (v(vnm), v(vmx)))
        if aa == 0:
            dst = {t: Sg[t & ~1] + 2 * (t & 1) for t in range(2, 16)}
            dst[1] = Sg[0] + 2
            dhi, dlo = Sg[0], Sg[16]
        else:
            dst = {t: Sg[t - ((t - 1) & 1)] + 2 * ((t - 1) & 1) for t in range(1, 15)}
            dst[15] = Sg[15]
            dhi, dlo = Sg[0], Sg[15] + 2
        order = list(range(1, 16)) + [16]
        for t in order:
            b = Sg[t]
            if PK:
                for h in range(2):
                    a('v_pk_fma_f32 %s, %s, %s, %s op_sel_hi:[1,0,0]' % (v(b + 2 * h, 2), v(b + 2 * h, 2), v(vcc2, 2), v(vnm, 2)))
            else:
                for r in range(4):
                    a('v_fma_f32 %s, %s, %s, -%s' % (v(b + r), v(b + r), s(s_c), v(vmx)))
            for r in range(4):
                a('v_exp_f32 %s, %s' % (v(b + r), v(b + r)))
            if t < 16:
                a('v_cvt_pk_bf16_f32 %s, %s, %s' % (v(dst[t]), v(b), v(b + 1)))
                a('v_cvt_pk_bf16_f32 %s, %s, %s' % (v(dst[t] + 1), v(b + 2), v(b + 3)))
            else:
                a('v_cvt_pk_bf16_f32 %s, %s, %s' % (v(vt0), v(b), v(b + 1)))
                a('v_cvt_pk_bf16_f32 %s, %s, %s' % (v(vt1), v(b + 2), v(b + 3)))
                a('v_and_b32 %s, %s, %s' % (v(dlo), v(vt0), v(vML[0])))
                a('v_and_b32 %s, %s, %s' % (v(dlo + 1), v(vt1), v(vML[1])))
                a('v_and_b32 %s, %s, %s' % (v(dhi), v(vt0), v(vMH[0])))
                a('v_and_b32 %s, %s, %s' % (v(dhi + 1), v(vt1), v(vMH[1])))

    stamp(a, ST, 2)
    softmax(0)
    vtid = R.alloc()
    a('v_lshl_add_u32 %s, %s, 6, v0' % (v(vtid), s(s_wave)))
    import os
    APF = os.environ.get('APF', 'w1').split(',') if mega else ['w1']
    APF = [x for x in APF if x]
    for wn in APF:
        weight_prefetch(a, wn, vtid, 512, [vt0, vt1, vt2], vt3, 40, MP[wn] if mega else 44, [s_t0, s_t1, s_nm], preloaded=True)
    softmax(1)
    stamp(a, ST, 3)

    a('s_waitcnt vmcnt(%d)' % len(APF))
    a('s_barrier')
    Vb = [(fK[0], fK[1]), (fK[2], fK[3]), (fK[4], fK[5])]

    def vreads(slot, kta, ktb):
        for dt in range(2):
            base, stride = (vV0a, 128) if dt == 0 else (vV1a, 128)
            a('ds_read_b64_tr_b16 %s, %s offset:%d' % (v(Vb[slot][dt], 2), v(base), kta * stride))
            a('ds_read_b64_tr_b16 %s, %s offset:%d' % (v(Vb[slot][dt] + 2, 2), v(base), ktb * stride))

    steps = [(0, 1)] + [(t, t + 1) for t in range(2, 16, 2)] + [(16, 17)]
    vreads(0, *steps[0])
    vreads(1, *steps[1])
    first = [[True, True], [True, True]]

    def pv(aa, dt, vreg, preg, wide):
        cc = '0' if first[aa][dt] else v(Oacc[aa][dt], 4)
        first[aa][dt] = False
        if wide:
            a('v_mfma_f32_16x16x32_bf16 %s, %s, %s, %s' % (v(Oacc[aa][dt], 4), v(vreg, 4), v(preg, 4), cc))
        else:
            a('v_mfma_f32_16x16x16_bf16 %s, %s, %s, %s' % (v(Oacc[aa][dt], 4), v(vreg, 2), v(preg, 2), cc))

    for si, (ta, tb) in enumerate(steps):
        if si + 2 < len(steps):
            vreads((si + 2) % 3, *steps[si + 2])
        nafter = min(len(steps) - 1, si + 2) - si
        a('s_waitcnt lgkmcnt(%d)' % (4 * nafter))
        sl = Vb[si % 3]
        for dt in range(2):
            if si == 0:
                pv(0, dt, sl[dt], Sreg[0][0], True)
                pv(1, dt, sl[dt] + 2, Sreg[1][0], False)
            elif si == len(steps) - 1:
                pv(0, dt, sl[dt], Sreg[0][16], False)
                pv(1, dt, sl[dt], Sreg[1][15], True)
            else:
                pv(0, dt, sl[dt], Sreg[0][ta], True)
                pv(1, dt, sl[dt], Sreg[1][ta - 1], True)

    stamp(a, ST, 4)
    if mega:
        mstamp(a, 3)
    vo = R.alloc()
    a('s_mul_i32 %s, %s, %d' % (s(s_t0), s(s_wq), 32 * 80))
    a('s_mul_i32 %s, %s, 40' % (s(s_t1), s(s_hh)))
    a('s_add_u32 %s, %s, %s' % (s(s_t0), s(s_t0), s(s_t1)))
    a('s_add_u32 %s, %s, %d' % (s(s_t0), s(s_t0), STG))
    a('v_mul_u32_u24 %s, 80, %s' % (v(vo), v(vi)))
    a('v_lshl_add_u32 %s, %s, 3, %s' % (v(vo), v(vg), v(vo)))
    a('v_add_u32 %s, %s, %s' % (v(vo), s(s_t0), v(vo)))
    for aa in range(2):
        O0, O1 = Oacc[aa]
        a('v_mov_b32 %s, %s' % (v(vt0), v(O1)))
        a('v_mov_b32 %s, %s' % (v(vt1), v(O1)))
        a('v_permlane16_swap_b32 %s, %s' % (v(vt0), v(vt1)))
        a('v_mov_b32 %s, %s' % (v(vt0), v(vt1)))
        a('v_permlane32_swap_b32 %s, %s' % (v(vt0), v(vt1)))
        a('v_rcp_f32 %s, %s' % (v(vt0), v(vt0)))
        for r in range(4):
            a('v_mul_f32 %s, %s, %s' % (v(O0 + r), v(vt0), v(O0 + r)))
            a('v_mul_f32 %s, %s, %s' % (v(O1 + r), v(vt0), v(O1 + r)))
        a('v_cvt_pk_bf16_f32 %s, %s, %s' % (v(O0), v(O0), v(O0 + 1)))
        a('v_cvt_pk_bf16_f32 %s, %s, %s' % (v(O0 + 1), v(O0 + 2), v(O0 + 3)))
        a('v_cvt_pk_bf16_f32 %s, %s, %s' % (v(O1), v(O1), v(O1 + 1)))
        a('v_cvt_pk_bf16_f32 %s, %s, %s' % (v(O1 + 1), v(O1 + 2), v(O1 + 3)))
        a('ds_write_b64 %s, %s offset:%d' % (v(vo), v(O0, 2), aa * 16 * 80))
        a('s_mov_b64 exec, 0xffff')
        a('ds_write_b64 %s, %s offset:%d' % (v(vo), v(O1, 2), aa * 16 * 80 + 32))
        a('s_mov_b64 exec, -1')
    a('s_mul_i32 %s, %s, 1280' % (s(s_t0), s(s_wave)))
    a('v_lshl_add_u32 %s, v0, 4, %s' % (v(vt0), s(s_t0)))
    a('v_add_u32 %s, %d, %s' % (v(vt1), STG, v(vt0)))
    a('s_mul_i32 %s, %s, 163840' % (s(s_t0), s(s_pair)))
    a('s_mul_i32 %s, %s, 10240' % (s(s_t1), s(s_qb)))
    a('s_add_u32 %s, %s, %s' % (s(s_t0), s(s_t0), s(s_t1)))
    a('s_waitcnt lgkmcnt(0)')
    a('s_barrier')
    a('ds_read_b128 %s, %s' % (v(fK[0], 4), v(vt1)))
    a('ds_read_b128 %s, %s offset:1024' % (v(fK[1], 4), v(vt1)))
    a('s_waitcnt lgkmcnt(1)')
    a('buffer_store_dwordx4 %s, %s, %s, %s offen%s' % (v(fK[0], 4), v(vt0), s(sO, 4), s(s_t0), stf))
    a('s_waitcnt lgkmcnt(0)')
    a('s_mov_b64 exec, 0xffff')
    a('buffer_store_dwordx4 %s, %s, %s, %s offen offset:1024%s' % (v(fK[1], 4), v(vt0), s(sO, 4), s(s_t0), stf))
    a('s_mov_b64 exec, -1')
    if mega:
        mstamp(a, 4)
        a('s_waitcnt vmcnt(0)')
        a('s_barrier')
        mega_signal(a, 'attn', s_qb, s_pair, vt0, s_t0, L('sig'))
        mflush(a, 1, L('mfl'))
        a.label(L('end'))
    else:
        stamp_flush(a, ST, 1, 5, s_wave, L('sdone'))
        a.label(L('end'))
        a('s_endpgm')
    return dict(name=name, vgpr=254 if ST else R.hi, sgpr=90 if ST else 48, lds=LDS, block=512, grid=256)
```

```python
import math
import struct
from asmlib import Asm, Regs, v, s
from gemm import build_srd, KA, WS_QKV, WS_O, QKV_BYTES, stamp, stamp_flush, STFLAG, weight_prefetch, MP, M_WAVE, mega_wait, mega_signal, mstamp, mflush


def f32bits(x):
    return struct.unpack('<I', struct.pack('<f', x))[0]


def gen_attn(a, ST=False, mega=False):
    name = 'attn_kernel'
    L = lambda x: '%s_%s' % (name, x)
    PL = 3136
    HB = 11 * PL
    KP, VP = 0, 5 * PL
    STG = 2 * HB
    LDS = STG + 10240
    sQ, sO = 4, 8
    pWS = 12
    s_head, s_qb, s_wave, s_t0, s_t1, s_hk, s_c, s_nm = 14, 15, 16, 17, 18, 19, 20, 21
    sM = [22, 24, 26, 28]
    s_m3, s_m2 = 30, 32
    s_pair, s_wq, s_hh, s_lb = 34, 35, 36, 37

    ldf = ' sc1' if mega else ''
    stf = ' sc1' if mega else STFLAG
    if mega:
        ST = False
        pWS = MP['ws']
        a.label(name)
        mstamp(a, 0)
    else:
        a.raw('.p2align 8')
        a.raw('.globl %s' % name)
        a.raw('.type %s,@function' % name)
        a.label(name)
        stamp(a, ST, 0)
        a('s_load_dwordx2 %s, s[0:1], %d' % (s(pWS, 2), KA['ws']))
        a('s_load_dwordx2 s[44:45], s[0:1], %d' % KA['w1'])
        a('s_cmp_ge_u32 s2, 256')
        a('s_cbranch_scc1 %s' % L('end'))
    a('s_and_b32 %s, s2, 7' % s(s_t0))
    a('s_lshr_b32 %s, s2, 3' % s(s_t1))
    a('s_lshl_b32 %s, %s, 1' % (s(s_pair), s(s_t0)))
    a('s_and_b32 %s, %s, 1' % (s(s_t0), s(s_t1)))
    a('s_add_u32 %s, %s, %s' % (s(s_pair), s(s_pair), s(s_t0)))
    a('s_lshr_b32 %s, %s, 1' % (s(s_qb), s(s_t1)))
    if mega:
        a('s_mov_b32 %s, %s' % (s(s_wave), s(M_WAVE)))
    else:
        a('v_lshrrev_b32 v1, 6, v0')
        a('v_and_b32 v0, 63, v0')
        a('v_readfirstlane_b32 %s, v1' % s(s_wave))
    R = Regs(1, 256, 'v')
    vg, vi, vt0, vt1, vt2, vt3, vg2 = [R.alloc() for _ in range(7)]
    a('v_lshrrev_b32 %s, 4, v0' % v(vg))
    a('v_and_b32 %s, 15, v0' % v(vi))
    a('v_min_u32 %s, 2, %s' % (v(vg2), v(vg)))
    a('s_and_b32 %s, %s, 3' % (s(s_wq), s(s_wave)))
    a('s_lshr_b32 %s, %s, 2' % (s(s_hh), s(s_wave)))
    a('s_lshl_b32 %s, %s, 1' % (s(s_head), s(s_pair)))
    a('s_add_u32 %s, %s, %s' % (s(s_head), s(s_head), s(s_hh)))
    a('s_mul_i32 %s, %s, %d' % (s(s_lb), s(s_hh), HB))
    a('s_mul_i32 %s, %s, %d' % (s(s_hk), s(s_head), 5 * 16384))
    a('s_lshl_b32 %s, %s, 10' % (s(s_t0), s(s_qb)))
    a('s_add_u32 %s, %s, %s' % (s(s_hk), s(s_hk), s(s_t0)))
    a('s_sub_u32 %s, %s, %d' % (s(s_hk), s(s_hk), 2048))
    a('v_lshlrev_b32 %s, 4, v0' % v(vt0))
    a('s_mul_i32 %s, %s, 768' % (s(s_t1), s(s_wq)))
    vkey = R.alloc()
    a('s_lshl_b32 %s, %s, 10' % (s(s_nm), s(s_qb)))
    a('s_add_u32 %s, %s, %s' % (s(s_nm), s(s_nm), s(s_t1)))
    a('s_sub_u32 %s, %s, 2048' % (s(s_nm), s(s_nm)))
    a('v_add_u32 %s, %s, %s' % (v(vkey), s(s_nm), v(vt0)))
    a('v_max_i32 %s, 0, %s' % (v(vkey), v(vkey)))
    a('s_mul_i32 %s, %s, %d' % (s(s_nm), s(s_head), 5 * 16384))
    a('s_add_u32 %s, %s, %s' % (s(s_t1), s(s_t1), s(s_lb)))
    a('s_mov_b32 s38, -1')
    a('s_mov_b32 s39, 0xffff')
    vq0, vq1 = R.alloc(), R.alloc()
    a('v_lshlrev_b32 %s, 1, %s' % (v(vt1), v(vg)))
    a('v_min_u32 %s, 4, %s' % (v(vt2), v(vt1)))
    a('v_add_u32 %s, 1, %s' % (v(vt1), v(vt1)))
    a('v_min_u32 %s, 4, %s' % (v(vt1), v(vt1)))
    vp0, vp1 = R.alloc(), R.alloc()
    a('v_mov_b32 %s, %s' % (v(vp0), v(vt2)))
    a('v_mov_b32 %s, %s' % (v(vp1), v(vt1)))
    a('v_lshlrev_b32 %s, 14, %s' % (v(vq0), v(vt2)))
    a('v_lshl_add_u32 %s, %s, 3, %s' % (v(vq0), v(vi), v(vq0)))
    a('v_lshlrev_b32 %s, 14, %s' % (v(vq1), v(vt1)))
    a('v_lshl_add_u32 %s, %s, 3, %s' % (v(vq1), v(vi), v(vq1)))
    a('s_waitcnt lgkmcnt(0)')
    build_srd(a, sQ, pWS, WS_QKV, QKV_BYTES)
    if mega:
        vd = [R.alloc() for _ in range(3)]
        a('s_sub_u32 s40, %s, 2' % s(s_qb))
        import os
        if os.environ.get('FINE'):
            a('s_mov_b32 s44, 0')
            for sec in range(3):
                for e in (0, 39):
                    a('s_mul_i32 s45, %s, 40' % s(s_pair))
                    a('s_add_u32 s45, s45, %d' % (640 * sec + e))
                    a('s_lshr_b32 s45, s45, 7')
                    a('s_lshl_b32 s45, 1, s45')
                    a('s_or_b32 s44, s44, s45')
            mega_wait(a, 'qkv', 40, s_qb, 15, vd, [41, 42], L('dep'), colmask=44)
        else:
            mega_wait(a, 'qkv', 40, s_qb, 15, vd, [41, 42], L('dep'))
        a('s_barrier')
        mstamp(a, 1)
    a('s_mov_b64 exec, s[38:39]')
    for pc in range(5):
        a('s_add_u32 %s, %s, %d' % (s(s_t0), s(s_nm), (160 + pc) * 16384))
        a('s_add_u32 m0, %s, %d' % (s(s_t1), KP + pc * PL))
        a('buffer_load_dwordx4 %s, %s, %s offen lds%s' % (v(vkey), s(sQ, 4), s(s_t0), ldf))
    a('s_mov_b64 exec, -1')
    fQ = [R.alloc(4, 4) for _ in range(2)]
    a('s_lshl_b32 %s, %s, 8' % (s(s_t0), s(s_wq)))
    a('s_add_u32 %s, %s, %s' % (s(s_t0), s(s_t0), s(s_hk)))
    a('s_add_u32 %s, %s, 2048' % (s(s_t0), s(s_t0)))
    for aa in range(2):
        a('buffer_load_dwordx2 %s, %s, %s, %s offen offset:%d%s' % (v(fQ[aa], 2), v(vq0), s(sQ, 4), s(s_t0), aa * 128, ldf))
        a('buffer_load_dwordx2 %s, %s, %s, %s offen offset:%d%s' % (v(fQ[aa] + 2, 2), v(vq1), s(sQ, 4), s(s_t0), aa * 128, ldf))
    a('s_mov_b64 exec, s[38:39]')
    for pc in range(5):
        a('s_add_u32 %s, %s, %d' % (s(s_t0), s(s_nm), (320 + pc) * 16384))
        a('s_add_u32 m0, %s, %d' % (s(s_t1), VP + pc * PL))
        a('buffer_load_dwordx4 %s, %s, %s offen lds%s' % (v(vkey), s(sQ, 4), s(s_t0), ldf))
    vone = R.alloc(4, 4)
    a('v_mov_b32 %s, 0x3f80' % v(vone))
    a('v_mov_b32 %s, 0' % v(vone + 1))
    a('v_mov_b32 %s, 0x3f80' % v(vone + 2))
    a('v_mov_b32 %s, 0' % v(vone + 3))
    a('v_add_u32 %s, %s, %s' % (v(vt1), s(s_t1), v(vt0)))
    a('ds_write_b128 %s, %s offset:%d' % (v(vt1), v(vone, 4), 10 * PL))
    a('s_mov_b64 exec, -1')
    build_srd(a, sO, pWS, WS_O, 16 * 163840)
    for r in range(4):
        a('v_lshl_add_u32 %s, %s, 2, %d' % (v(vt3), v(vg), r))
        a('v_cmp_le_u32 %s, %s, %s' % (s(sM[r], 2), v(vt3), v(vi)))
    a('v_cmp_eq_u32 %s, 3, %s' % (s(s_m3, 2), v(vg)))
    a('v_cmp_le_u32 %s, 2, %s' % (s(s_m2, 2), v(vg)))
    vML = [R.alloc() for _ in range(2)]
    vMH = [R.alloc() for _ in range(2)]
    vz = R.alloc()
    a('v_mov_b32 %s, 0' % v(vz))
    a('v_mov_b32 %s, 0xffff' % v(vt3))
    vhi16 = R.alloc()
    a('v_mov_b32 %s, 0xffff0000' % v(vhi16))
    for h in range(2):
        a('v_cndmask_b32 %s, %s, %s, %s' % (v(vML[h]), v(vz), v(vt3), s(sM[2 * h], 2)))
        a('v_cndmask_b32 %s, %s, %s, %s' % (v(vMH[h]), v(vz), v(vhi16), s(sM[2 * h + 1], 2)))
        a('v_or_b32 %s, %s, %s' % (v(vML[h]), v(vML[h]), v(vMH[h])))
        a('v_not_b32 %s, %s' % (v(vMH[h]), v(vML[h])))
    a('s_mov_b32 %s, 0x%x' % (s(s_c), f32bits(20 ** -0.5 * math.log2(math.e))))
    vKa0, vKa1, vV0a, vV1a = R.alloc(), R.alloc(), R.alloc(), R.alloc()
    a('s_lshl_b32 %s, %s, 8' % (s(s_t0), s(s_wq)))
    a('s_add_u32 %s, %s, %s' % (s(s_t0), s(s_t0), s(s_lb)))
    a('v_lshl_add_u32 %s, %s, 3, %s' % (v(vt3), v(vi), s(s_t0)))
    a('v_mul_u32_u24 %s, %d, %s' % (v(vKa0), PL, v(vp0)))
    a('v_add_u32 %s, %s, %s' % (v(vKa0), v(vKa0), v(vt3)))
    a('v_mul_u32_u24 %s, %d, %s' % (v(vKa1), PL, v(vp1)))
    a('v_add_u32 %s, %s, %s' % (v(vKa1), v(vKa1), v(vt3)))
    a('s_add_u32 %s, %s, %d' % (s(s_t0), s(s_t0), VP))
    a('v_lshrrev_b32 %s, 2, v0' % v(vt3))
    a('v_lshl_add_u32 %s, %s, 3, %s' % (v(vt3), v(vt3), s(s_t0)))
    a('v_and_b32 %s, 3, v0' % v(vV0a))
    a('v_mul_u32_u24 %s, %d, %s' % (v(vV0a), PL, v(vV0a)))
    a('v_add_u32 %s, %s, %s' % (v(vV0a), v(vV0a), v(vt3)))
    a('v_and_b32 %s, 1, v0' % v(vV1a))
    a('v_mul_u32_u24 %s, %d, %s' % (v(vV1a), PL, v(vV1a)))
    a('v_add_u32 %s, %s, %s' % (v(vV1a), v(vV1a), v(vt3)))
    a('v_add_u32 %s, %d, %s' % (v(vV1a), 4 * PL, v(vV1a)))
    a('s_waitcnt vmcnt(5)')
    for aa in range(2):
        for r in range(2):
            a('v_cndmask_b32 %s, %s, %s, %s' % (v(fQ[aa] + r), v(fQ[aa] + r), v(vz), s(s_m3, 2)))
        for r in range(2, 4):
            a('v_cndmask_b32 %s, %s, %s, %s' % (v(fQ[aa] + r), v(fQ[aa] + r), v(vz), s(s_m2, 2)))
    a('s_waitcnt lgkmcnt(0)')
    a('s_barrier')
    stamp(a, ST, 1)
    if mega:
        mstamp(a, 2)

    Sreg = [[R.alloc(4, 4) for t in range(17)] for aa in range(2)]
    NKB = 6
    fK = [R.alloc(4, 4) for _ in range(NKB)]
    def kread(t):
        a('ds_read_b64 %s, %s offset:%d' % (v(fK[t % NKB], 2), v(vKa0), t * 128))
        a('ds_read_b64 %s, %s offset:%d' % (v(fK[t % NKB] + 2, 2), v(vKa1), t * 128))
    for t in range(min(NKB, 18)):
        kread(t)
    for t in range(18):
        outstanding_after = min(17, t + NKB - 1) - t
        a('s_waitcnt lgkmcnt(%d)' % (2 * outstanding_after))
        if t <= 16:
            a('v_mfma_f32_16x16x32_bf16 %s, %s, %s, 0' % (v(Sreg[0][t], 4), v(fK[t % NKB], 4), v(fQ[0], 4)))
        if t >= 1:
            a('v_mfma_f32_16x16x32_bf16 %s, %s, %s, 0' % (v(Sreg[1][t - 1], 4), v(fK[t % NKB], 4), v(fQ[1], 4)))
        if t + NKB < 18:
            kread(t + NKB)
    a('s_nop 7')
    a('s_cmp_ge_u32 %s, 2' % s(s_qb))
    a('s_cbranch_scc1 %s' % L('nomask'))
    for aa in range(2):
        a('s_lshl_b32 %s, %s, 1' % (s(s_nm), s(s_wq)))
        a('s_lshl_b32 %s, %s, 3' % (s(s_t0), s(s_qb)))
        a('s_add_u32 %s, %s, %s' % (s(s_nm), s(s_nm), s(s_t0)))
        a('s_sub_u32 %s, %d, %s' % (s(s_nm), 16 - aa, s(s_nm)))
        for t in range(16):
            a('s_cmp_gt_u32 %s, %d' % (s(s_nm), t))
            a('s_cbranch_scc0 %s' % L('mdone%d' % aa))
            for r in range(4):
                a('v_mov_b32 %s, 0xf149f2ca' % v(Sreg[aa][t] + r))
        a.label(L('mdone%d' % aa))
    a.label(L('nomask'))

    vmx, vmx2 = R.alloc(), R.alloc()
    import os
    PK = bool(os.environ.get('PK'))
    vcc2, vnm = R.alloc(2), R.alloc(2)
    a('v_mov_b32 %s, %s' % (v(vcc2), s(s_c)))
    Oacc = [[R.alloc(4, 4) for dt in range(2)] for aa in range(2)]

    def softmax(aa):
        Sg = Sreg[aa]
        for r in range(4):
            a('v_cndmask_b32 %s, %s, %s, %s' % (v(Sg[16] + r), v(Sg[0] + r), v(Sg[16] + r), s(sM[r], 2)))
        vals = [Sg[t] + r for t in range(1, 17) for r in range(4)]
        a('v_max3_f32 %s, %s, %s, %s' % (v(vmx), v(vals[0]), v(vals[1]), v(vals[2])))
        a('v_max3_f32 %s, %s, %s, %s' % (v(vmx2), v(vals[3]), v(vals[4]), v(vals[5])))
        k = 6
        tog = 0
        while k + 1 < len(vals):
            d = vmx if tog == 0 else vmx2
            a('v_max3_f32 %s, %s, %s, %s' % (v(d), v(d), v(vals[k]), v(vals[k + 1])))
            k += 2
            tog ^= 1
        assert k == len(vals)
        a('v_max_f32 %s, %s, %s' % (v(vmx), v(vmx), v(vmx2)))
        a('v_mov_b32 %s, %s' % (v(vmx2), v(vmx)))
        a('v_permlane32_swap_b32 %s, %s' % (v(vmx), v(vmx2)))
        a('v_max_f32 %s, %s, %s' % (v(vmx), v(vmx), v(vmx2)))
        a('v_mov_b32 %s, %s' % (v(vmx2), v(vmx)))
        a('v_permlane16_swap_b32 %s, %s' % (v(vmx), v(vmx2)))
        a('v_max_f32 %s, %s, %s' % (v(vmx), v(vmx), v(vmx2)))
        a('v_mul_f32 %s, %s, %s' % (v(vmx), s(s_c), v(vmx)))
        if PK:
            a('v_sub_f32 %s, 0, %s' % (v(vnm), v(vmx)))
        if aa == 0:
            dst = {t: Sg[t & ~1] + 2 * (t & 1) for t in range(2, 16)}
            dst[1] = Sg[0] + 2
            dhi, dlo = Sg[0], Sg[16]
        else:
            dst = {t: Sg[t - ((t - 1) & 1)] + 2 * ((t - 1) & 1) for t in range(1, 15)}
            dst[15] = Sg[15]
            dhi, dlo = Sg[0], Sg[15] + 2
        order = list(range(1, 16)) + [16]
        for t in order:
            b = Sg[t]
            if PK:
                for h in range(2):
                    a('v_pk_fma_f32 %s, %s, %s, %s op_sel_hi:[1,0,0]' % (v(b + 2 * h, 2), v(b + 2 * h, 2), v(vcc2, 2), v(vnm, 2)))
            else:
                for r in range(4):
                    a('v_fma_f32 %s, %s, %s, -%s' % (v(b + r), v(b + r), s(s_c), v(vmx)))
            for r in range(4):
                a('v_exp_f32 %s, %s' % (v(b + r), v(b + r)))
            if t < 16:
                a('v_cvt_pk_bf16_f32 %s, %s, %s' % (v(dst[t]), v(b), v(b + 1)))
                a('v_cvt_pk_bf16_f32 %s, %s, %s' % (v(dst[t] + 1), v(b + 2), v(b + 3)))
            else:
                a('v_cvt_pk_bf16_f32 %s, %s, %s' % (v(vt0), v(b), v(b + 1)))
                a('v_cvt_pk_bf16_f32 %s, %s, %s' % (v(vt1), v(b + 2), v(b + 3)))
                a('v_and_b32 %s, %s, %s' % (v(dlo), v(vt0), v(vML[0])))
                a('v_and_b32 %s, %s, %s' % (v(dlo + 1), v(vt1), v(vML[1])))
                a('v_and_b32 %s, %s, %s' % (v(dhi), v(vt0), v(vMH[0])))
                a('v_and_b32 %s, %s, %s' % (v(dhi + 1), v(vt1), v(vMH[1])))

    stamp(a, ST, 2)
    softmax(0)
    vtid = R.alloc()
    a('v_lshl_add_u32 %s, %s, 6, v0' % (v(vtid), s(s_wave)))
    import os
    APF = os.environ.get('APF', 'w1').split(',') if mega else ['w1']
    APF = [x for x in APF if x]
    for wn in APF:
        weight_prefetch(a, wn, vtid, 512, [vt0, vt1, vt2], vt3, 40, MP[wn] if mega else 44, [s_t0, s_t1, s_nm], preloaded=True)
    softmax(1)
    stamp(a, ST, 3)

    a('s_waitcnt vmcnt(%d)' % len(APF))
    a('s_barrier')
    Vb = [(fK[0], fK[1]), (fK[2], fK[3]), (fK[4], fK[5])]

    def vreads(slot, kta, ktb):
        for dt in range(2):
            base, stride = (vV0a, 128) if dt == 0 else (vV1a, 128)
            a('ds_read_b64_tr_b16 %s, %s offset:%d' % (v(Vb[slot][dt], 2), v(base), kta * stride))
            a('ds_read_b64_tr_b16 %s, %s offset:%d' % (v(Vb[slot][dt] + 2, 2), v(base), ktb * stride))

    steps = [(0, 1)] + [(t, t + 1) for t in range(2, 16, 2)] + [(16, 17)]
    vreads(0, *steps[0])
    vreads(1, *steps[1])
    first = [[True, True], [True, True]]

    def pv(aa, dt, vreg, preg, wide):
        cc = '0' if first[aa][dt] else v(Oacc[aa][dt], 4)
        first[aa][dt] = False
        if wide:
            a('v_mfma_f32_16x16x32_bf16 %s, %s, %s, %s' % (v(Oacc[aa][dt], 4), v(vreg, 4), v(preg, 4), cc))
        else:
            a('v_mfma_f32_16x16x16_bf16 %s, %s, %s, %s' % (v(Oacc[aa][dt], 4), v(vreg, 2), v(preg, 2), cc))

    for si, (ta, tb) in enumerate(steps):
        if si + 2 < len(steps):
            vreads((si + 2) % 3, *steps[si + 2])
        nafter = min(len(steps) - 1, si + 2) - si
        a('s_waitcnt lgkmcnt(%d)' % (4 * nafter))
        sl = Vb[si % 3]
        for dt in range(2):
            if si == 0:
                pv(0, dt, sl[dt], Sreg[0][0], True)
                pv(1, dt, sl[dt] + 2, Sreg[1][0], False)
            elif si == len(steps) - 1:
                pv(0, dt, sl[dt], Sreg[0][16], False)
                pv(1, dt, sl[dt], Sreg[1][15], True)
            else:
                pv(0, dt, sl[dt], Sreg[0][ta], True)
                pv(1, dt, sl[dt], Sreg[1][ta - 1], True)

    stamp(a, ST, 4)
    if mega:
        mstamp(a, 3)
    vo = R.alloc()
    a('s_mul_i32 %s, %s, %d' % (s(s_t0), s(s_wq), 32 * 80))
    a('s_mul_i32 %s, %s, 40' % (s(s_t1), s(s_hh)))
    a('s_add_u32 %s, %s, %s' % (s(s_t0), s(s_t0), s(s_t1)))
    a('s_add_u32 %s, %s, %d' % (s(s_t0), s(s_t0), STG))
    a('v_mul_u32_u24 %s, 80, %s' % (v(vo), v(vi)))
    a('v_lshl_add_u32 %s, %s, 3, %s' % (v(vo), v(vg), v(vo)))
    a('v_add_u32 %s, %s, %s' % (v(vo), s(s_t0), v(vo)))
    for aa in range(2):
        O0, O1 = Oacc[aa]
        a('v_mov_b32 %s, %s' % (v(vt0), v(O1)))
        a('v_mov_b32 %s, %s' % (v(vt1), v(O1)))
        a('v_permlane16_swap_b32 %s, %s' % (v(vt0), v(vt1)))
        a('v_mov_b32 %s, %s' % (v(vt0), v(vt1)))
        a('v_permlane32_swap_b32 %s, %s' % (v(vt0), v(vt1)))
        a('v_rcp_f32 %s, %s' % (v(vt0), v(vt0)))
        for r in range(4):
            a('v_mul_f32 %s, %s, %s' % (v(O0 + r), v(vt0), v(O0 + r)))
            a('v_mul_f32 %s, %s, %s' % (v(O1 + r), v(vt0), v(O1 + r)))
        a('v_cvt_pk_bf16_f32 %s, %s, %s' % (v(O0), v(O0), v(O0 + 1)))
        a('v_cvt_pk_bf16_f32 %s, %s, %s' % (v(O0 + 1), v(O0 + 2), v(O0 + 3)))
        a('v_cvt_pk_bf16_f32 %s, %s, %s' % (v(O1), v(O1), v(O1 + 1)))
        a('v_cvt_pk_bf16_f32 %s, %s, %s' % (v(O1 + 1), v(O1 + 2), v(O1 + 3)))
        a('ds_write_b64 %s, %s offset:%d' % (v(vo), v(O0, 2), aa * 16 * 80))
        a('s_mov_b64 exec, 0xffff')
        a('ds_write_b64 %s, %s offset:%d' % (v(vo), v(O1, 2), aa * 16 * 80 + 32))
        a('s_mov_b64 exec, -1')
    a('s_mul_i32 %s, %s, 1280' % (s(s_t0), s(s_wave)))
    a('v_lshl_add_u32 %s, v0, 4, %s' % (v(vt0), s(s_t0)))
    a('v_add_u32 %s, %d, %s' % (v(vt1), STG, v(vt0)))
    a('s_mul_i32 %s, %s, 163840' % (s(s_t0), s(s_pair)))
    a('s_mul_i32 %s, %s, 10240' % (s(s_t1), s(s_qb)))
    a('s_add_u32 %s, %s, %s' % (s(s_t0), s(s_t0), s(s_t1)))
    a('s_waitcnt lgkmcnt(0)')
    a('s_barrier')
    a('ds_read_b128 %s, %s' % (v(fK[0], 4), v(vt1)))
    a('ds_read_b128 %s, %s offset:1024' % (v(fK[1], 4), v(vt1)))
    a('s_waitcnt lgkmcnt(1)')
    a('buffer_store_dwordx4 %s, %s, %s, %s offen%s' % (v(fK[0], 4), v(vt0), s(sO, 4), s(s_t0), stf))
    a('s_waitcnt lgkmcnt(0)')
    a('s_mov_b64 exec, 0xffff')
    a('buffer_store_dwordx4 %s, %s, %s, %s offen offset:1024%s' % (v(fK[1], 4), v(vt0), s(sO, 4), s(s_t0), stf))
    a('s_mov_b64 exec, -1')
    if mega:
        mstamp(a, 4)
        a('s_waitcnt vmcnt(0)')
        a('s_barrier')
        mega_signal(a, 'attn', s_qb, s_pair, vt0, s_t0, L('sig'))
        mflush(a, 1, L('mfl'))
        a.label(L('end'))
    else:
        stamp_flush(a, ST, 1, 5, s_wave, L('sdone'))
        a.label(L('end'))
        a('s_endpgm')
    return dict(name=name, vgpr=254 if ST else R.hi, sgpr=90 if ST else 48, lds=LDS, block=512, grid=256)
```

```python
from asmlib import Asm, Regs, v, s

WS_QKV = 0
WS_O = 0x800000
WS_H = 0xB00000
WS_H1 = 0x1000000
QKV_BYTES = 96 * 81920
WS_STAMP = 0x3000000
STAMP_S = 60

KA = dict(x=0, wqkv=8, wo=16, bx=24, w1=32, w2=40, out=48, dbg=56, ws=64)
STFLAG = ''


def build_srd(a, sr, sptr, off, nbytes):
    if off:
        a('s_add_u32 %s, %s, 0x%x' % (s(sr), s(sptr), off))
        a('s_addc_u32 %s, %s, 0' % (s(sr + 1), s(sptr + 1)))
        a('s_and_b32 %s, %s, 0xffff' % (s(sr + 1), s(sr + 1)))
    else:
        a('s_mov_b32 %s, %s' % (s(sr), s(sptr)))
        a('s_and_b32 %s, %s, 0xffff' % (s(sr + 1), s(sptr + 1)))
    a('s_mov_b32 %s, 0x%x' % (s(sr + 2), nbytes))
    a('s_mov_b32 %s, 0x20000' % s(sr + 3))


def stamp(a, on, i):
    if on:
        a('s_memrealtime %s' % s(STAMP_S + 2 * i, 2))


def stamp_flush(a, on, kidx, n, s_wave, lbl):
    if not on:
        return
    a('s_waitcnt vmcnt(0)')
    stamp(a, on, n)
    a('s_load_dwordx2 s[80:81], s[0:1], %d' % KA['ws'])
    a('s_waitcnt lgkmcnt(0)')
    a('s_cmp_lg_u32 %s, 0' % s(s_wave))
    a('s_cbranch_scc1 %s' % lbl)
    build_srd(a, 76, 80, WS_STAMP + kidx * 16384, 16384)
    a('s_lshl_b32 s82, s2, 6')
    a('v_mov_b32 v250, s82')
    a('s_mov_b64 exec, 1')
    for i in range(6):
        a('v_mov_b32 v252, %s' % s(STAMP_S + 2 * i))
        a('v_mov_b32 v253, %s' % s(STAMP_S + 2 * i + 1))
        a('buffer_store_dwordx2 v[252:253], v250, s[76:79], 0 offen offset:%d' % (8 * i))
        a('s_nop 1')
    a('s_mov_b64 exec, -1')
    a.label(lbl)


PF = dict(wo=(640, 1280, 5, 640), w1=(640, 3456, 14, 1792), w2=(1728, 1280, 5, 640))


def weight_prefetch(a, wname, vtid, nthreads, vt, vdst, sr, sp, st, preloaded=False):
    nrows, stride, lpr, half = PF[wname]
    total = nrows * lpr
    per = (total + 31) // 32
    if not preloaded:
        a('s_load_dwordx2 %s, s[0:1], %d' % (s(sp, 2), KA[wname]))
    a('s_lshr_b32 %s, s2, 3' % s(st[0]))
    a('s_mul_i32 %s, %s, %d' % (s(st[0]), s(st[0]), per))
    a('s_add_u32 %s, %s, %d' % (s(st[1]), s(st[0]), per))
    a('s_min_u32 %s, %s, %d' % (s(st[1]), s(st[1]), total))
    a('s_and_b32 %s, s2, 1' % s(st[2]))
    a('s_mul_i32 %s, %s, %d' % (s(st[2]), s(st[2]), half))
    sh = 16
    while True:
        magic = ((1 << sh) + lpr - 1) // lpr
        if all((f * magic) >> sh == f // lpr for f in range(0, total + 2048)) and (total + 2048) * magic < (1 << 32):
            break
        sh += 1
    if not preloaded:
        a('s_waitcnt lgkmcnt(0)')
    build_srd(a, sr, sp, 0, nrows * stride)
    for it in range((per + nthreads - 1) // nthreads):
        a('v_add_u32 %s, %s, %s' % (v(vt[0]), s(st[0]), v(vtid)))
        if it:
            a('v_add_u32 %s, %d, %s' % (v(vt[0]), it * nthreads, v(vt[0])))
        a('v_mul_u32_u24 %s, %d, %s' % (v(vt[1]), magic, v(vt[0])))
        a('v_lshrrev_b32 %s, %d, %s' % (v(vt[1]), sh, v(vt[1])))
        a('v_mul_u32_u24 %s, %d, %s' % (v(vt[2]), lpr, v(vt[1])))
        a('v_sub_u32 %s, %s, %s' % (v(vt[2]), v(vt[0]), v(vt[2])))
        a('v_mul_u32_u24 %s, %d, %s' % (v(vt[1]), stride, v(vt[1])))
        a('v_lshl_add_u32 %s, %s, 7, %s' % (v(vt[1]), v(vt[2]), v(vt[1])))
        a('v_cmp_gt_u32 vcc, %s, %s' % (s(st[1]), v(vt[0])))
        a('v_mov_b32 %s, -1' % v(vt[2]))
        a('v_cndmask_b32 %s, %s, %s, vcc' % (v(vt[1]), v(vt[2]), v(vt[1])))
        a('buffer_load_dword %s, %s, %s, %s offen' % (v(vdst), v(vt[1]), s(sr, 4), s(st[2])))


WS_FLAG = 0x2000000
MP = dict(x=64, wqkv=66, wo=68, w1=70, w2=72, out=74, dbg=76, ws=78)
M_WAVE, M_NONCE, M_FSRD, M_STAMP = 80, 81, 84, 90
FLAG_OFF = dict(qkv=0, attn=2048, wo=4096, w1=8192)
POLL_LIMIT = 200000


MST = [False]


def mstamp(a, i):
    if MST[0]:
        a('s_memrealtime %s' % s(M_STAMP + 2 * i, 2))


def mflush(a, phase, lbl):
    if not MST[0]:
        return
    mstamp(a, 5)
    a('s_waitcnt lgkmcnt(0)')
    a('s_cmp_lg_u32 %s, 0' % s(M_WAVE))
    a('s_cbranch_scc1 %s' % lbl)
    build_srd(a, 4, MP['ws'], WS_STAMP + phase * 16384, 16384)
    a('s_lshl_b32 s8, s2, 6')
    a('v_mov_b32 v250, s8')
    a('s_mov_b64 exec, 1')
    for i in range(6):
        a('v_mov_b32 v252, %s' % s(M_STAMP + 2 * i))
        a('v_mov_b32 v253, %s' % s(M_STAMP + 2 * i + 1))
        a('buffer_store_dwordx2 v[252:253], v250, s[4:7], 0 offen offset:%d' % (8 * i))
        a('s_nop 1')
    a('s_mov_b64 exec, -1')
    a.label(lbl)


def mega_nonce(a):
    a('s_waitcnt vmcnt(0)')
    a('v_readfirstlane_b32 %s, v248' % s(M_NONCE))
    a('s_cmp_eq_u32 %s, 0' % s(M_NONCE))
    a('s_cselect_b32 %s, s82, %s' % (s(M_NONCE), s(M_NONCE)))


def mega_signal(a, table, s_row, s_col, vtmp, stmp, lbl):
    a('s_cmp_lg_u32 %s, 0' % s(M_WAVE))
    a('s_cbranch_scc1 %s' % lbl)
    mega_nonce(a)
    a('s_lshl_b32 %s, %s, 4' % (s(stmp), s(s_row)))
    a('s_add_u32 %s, %s, %s' % (s(stmp), s(stmp), s(s_col)))
    a('s_lshl_b32 %s, %s, 3' % (s(stmp), s(stmp)))
    a('s_add_u32 %s, %s, %d' % (s(stmp), s(stmp), FLAG_OFF[table]))
    a('v_mov_b32 %s, %s' % (v(vtmp), s(stmp)))
    a('v_mov_b32 v244, %s' % s(M_NONCE))
    a('v_not_b32 v245, v244')
    a('s_mov_b64 exec, 1')
    a('buffer_store_dwordx2 v[244:245], %s, %s, 0 offen sc1' % (v(vtmp), s(M_FSRD, 4)))
    a('s_mov_b64 exec, -1')
    a.label(lbl)


def mega_wait(a, table, s_r0, s_r1, ncol, vt, st, lbl, colmask=None):
    a('s_cmp_lg_u32 %s, 0' % s(M_WAVE))
    a('s_cbranch_scc1 %s' % (lbl + '_done'))
    mega_nonce(a)
    a('v_lshrrev_b32 %s, 4, v0' % v(vt[0]))
    a('v_add_u32 %s, %s, %s' % (v(vt[0]), s(s_r0), v(vt[0])))
    a('v_and_b32 %s, 15, v0' % v(vt[1]))
    if colmask is None:
        a('v_cmp_gt_u32 %s, %d, %s' % (s(st[1], 2), ncol, v(vt[1])))
    else:
        a('v_lshrrev_b32 %s, %s, %s' % (v(vt[2]), v(vt[1]), s(colmask)))
        a('v_and_b32 %s, 1, %s' % (v(vt[2]), v(vt[2])))
        a('v_cmp_eq_u32 %s, 1, %s' % (s(st[1], 2), v(vt[2])))
    a('v_cmp_le_i32 vcc, 0, %s' % v(vt[0]))
    a('s_and_b64 %s, %s, vcc' % (s(st[1], 2), s(st[1], 2)))
    a('v_cmp_ge_i32 vcc, %s, %s' % (s(s_r1), v(vt[0])))
    a('s_and_b64 %s, %s, vcc' % (s(st[1], 2), s(st[1], 2)))
    a('v_lshl_add_u32 %s, %s, 4, %s' % (v(vt[0]), v(vt[0]), v(vt[1])))
    a('v_lshlrev_b32 %s, 3, %s' % (v(vt[0]), v(vt[0])))
    a('v_add_u32 %s, %d, %s' % (v(vt[0]), FLAG_OFF[table], v(vt[0])))
    a('s_mov_b32 %s, 0' % s(st[0]))
    a('s_mov_b64 exec, %s' % s(st[1], 2))
    a.label(lbl + '_loop')
    a('buffer_load_dwordx2 v[244:245], %s, %s, 0 offen sc1' % (v(vt[0]), s(M_FSRD, 4)))
    a('s_waitcnt vmcnt(0)')
    a('v_not_b32 v245, v245')
    a('v_xor_b32 v244, %s, v244' % s(M_NONCE))
    a('v_xor_b32 v245, %s, v245' % s(M_NONCE))
    a('v_or_b32 v244, v244, v245')
    a('v_cmp_ne_u32 vcc, 0, v244')
    a('s_nop 1')
    a('s_cbranch_vccz %s' % (lbl + '_ok'))
    a('s_sleep 1')
    a('s_add_u32 %s, %s, 1' % (s(st[0]), s(st[0])))
    a('s_cmp_lt_u32 %s, %d' % (s(st[0]), POLL_LIMIT))
    a('s_cbranch_scc1 %s' % (lbl + '_loop'))
    a.label(lbl + '_ok')
    a('s_mov_b64 exec, -1')
    a.label(lbl + '_done')


def bf16_round(a, dst, src):
    a('v_cvt_pk_bf16_f32 %s, %s, %s' % (v(dst), v(src), v(src)))
    a('v_lshlrev_b32 %s, 16, %s' % (v(dst), v(dst)))


def gen_gemm(a, c):
    name = c['name']
    BM, BN, K, N = c['BM'], c['BN'], c['K'], c['N']
    WM, WN = c['WM'], c['WN']
    D = c['D']
    LN = c.get('LN', False)
    epi = c['epi']
    ST = c.get('stamps', False)
    MT = BM // 16 // WM
    NT = BN // 16 // WN
    S = K // 64
    G = BN // 8
    rowW = BN * 2
    assert rowW in (128, 256)
    XB = BM * 128
    WB = 64 * rowW
    SLOT = XB + WB
    SCOL = D * SLOT
    SROW = SCOL + BN * 4
    lds_total = SROW + BM * 8 if LN else SCOL
    strideX = K * 2
    strideW = N * 2
    nX = BM // 32
    nW = 16 * G // 64
    nDMA = nX + nW
    pairX = c.get('pairX', False)
    GRP = c.get('GRP', 1)
    PD = c.get('PD', 1)
    assert D % GRP == 0
    DG = D // GRP
    NG = (S + GRP - 1) // GRP
    last_g = (NG - 1) % DG
    GS = GRP * SLOT
    STG = (last_g + 1) * GS if last_g + 1 < DG else 0
    STG_ROOM = (DG - last_g - 1) * GS if last_g + 1 < DG else last_g * GS
    if LN and lds_total > 163840:
        SCOL = STG + STG_ROOM - 1024
        STG_ROOM -= 1024
        lds_total = D * SLOT
    mega = c.get('mega', False)
    stf = ' sc1' if mega else STFLAG
    ldf = ' sc1' if (mega and c['x'][0] == 'ws') else ''
    L = lambda x: '%s_%s' % (name, x)

    sX, sW, sO, sR = 4, 8, 12, 16
    pX, pW, pO, pR = 20, 22, 24, 26
    s_rb, s_cb, s_wave, s_t0, s_t1, s_kx, s_kw, s_ldsX, s_ldsW, s_st = 28, 29, 30, 31, 32, 33, 34, 35, 36, 37
    s_wm, s_wn, s_tok0, s_col0 = 38, 39, 40, 41
    s_ex = 42
    s_slot = 46
    s_t2, s_t3, s_t4, s_t5 = 54, 55, 56, 57
    s_m4 = 58

    if mega:
        ST = False
        pX, pW, pO = MP[c['x'][0]], MP[c['w']], MP[c['o'][0]]
        if epi == 'resid':
            pR = MP[c['r'][0]]
        a.label(name)
        mstamp(a, 0)
    else:
        a.raw('.p2align 8')
        a.raw('.globl %s' % name)
        a.raw('.type %s,@function' % name)
        a.label(name)
        stamp(a, ST, 0)
        a('s_load_dwordx2 %s, s[0:1], %d' % (s(pX, 2), KA[c['x'][0]]))
        a('s_load_dwordx2 %s, s[0:1], %d' % (s(pW, 2), KA[c['w']]))
        a('s_load_dwordx2 %s, s[0:1], %d' % (s(pO, 2), KA[c['o'][0]]))
        if epi == 'resid':
            a('s_load_dwordx2 %s, s[0:1], %d' % (s(pR, 2), KA[c['r'][0]]))
        a('s_cmp_ge_u32 s2, 256')
        a('s_cbranch_scc1 %s' % L('end'))
    a('s_and_b32 %s, s2, 7' % s(s_t0))
    a('s_lshr_b32 %s, s2, 3' % s(s_t1))
    if c['map'] == 'p2':
        RBX = c['rb_per_xcd']
        a('s_and_b32 %s, %s, %d' % (s(s_t2), s(s_t1), RBX - 1))
        a('s_lshr_b32 %s, %s, %d' % (s(s_t3), s(s_t1), RBX.bit_length() - 1))
        a('s_lshr_b32 %s, %s, 1' % (s(s_rb), s(s_t0)))
        a('s_mul_i32 %s, %s, %d' % (s(s_rb), s(s_rb), RBX))
        a('s_add_u32 %s, %s, %s' % (s(s_rb), s(s_rb), s(s_t2)))
        a('s_and_b32 %s, %s, 1' % (s(s_cb), s(s_t0)))
        a('s_mul_i32 %s, %s, %d' % (s(s_cb), s(s_cb), c['cb_stride']))
        a('s_cmp_ge_u32 %s, %d' % (s(s_t3), c['cb_stride']))
        a('s_cbranch_scc1 %s' % L('end'))
        a('s_add_u32 %s, %s, %s' % (s(s_cb), s(s_cb), s(s_t3)))
        a('s_cmp_ge_u32 %s, %d' % (s(s_cb), c['NB']))
        a('s_cbranch_scc1 %s' % L('end'))
        rot_max = c['rot'][0] * (RBX - 1) + c['rot'][1] * (c['cb_stride'] - 1)
    else:
        a('s_mul_i32 %s, %s, 205' % (s(s_t2), s(s_t1)))
        a('s_lshr_b32 %s, %s, 10' % (s(s_t2), s(s_t2)))
        a('s_mul_i32 %s, %s, 5' % (s(s_t3), s(s_t2)))
        a('s_sub_u32 %s, %s, %s' % (s(s_t3), s(s_t1), s(s_t3)))
        a('s_lshr_b32 %s, %s, 1' % (s(s_t1), s(s_t0)))
        a('s_mul_i32 %s, %s, 11' % (s(s_rb), s(s_t1)))
        a('s_add_u32 %s, %s, 12' % (s(s_t4), s(s_rb)))
        a('s_lshr_b32 %s, %s, 1' % (s(s_t4), s(s_t4)))
        a('s_add_u32 %s, %s, 1' % (s(s_rb), s(s_rb)))
        a('s_lshr_b32 %s, %s, 1' % (s(s_rb), s(s_rb)))
        a('s_add_u32 %s, %s, %s' % (s(s_rb), s(s_rb), s(s_t2)))
        a('s_cmp_ge_u32 %s, %s' % (s(s_rb), s(s_t4)))
        a('s_cbranch_scc1 %s' % L('end'))
        a('s_and_b32 %s, %s, 1' % (s(s_cb), s(s_t0)))
        a('s_mul_i32 %s, %s, 5' % (s(s_cb), s(s_cb)))
        a('s_add_u32 %s, %s, %s' % (s(s_cb), s(s_cb), s(s_t3)))
        rot_max = c['rot'][0] * 5 + c['rot'][1] * 4
    if mega:
        a('s_mov_b32 %s, %s' % (s(s_wave), s(M_WAVE)))
    else:
        a('v_lshrrev_b32 v1, 6, v0')
        a('v_and_b32 v0, 63, v0')
        a('v_readfirstlane_b32 %s, v1' % s(s_wave))
    a('s_mul_i32 %s, %s, %d' % (s(s_tok0), s(s_rb), BM))
    a('s_mul_i32 %s, %s, %d' % (s(s_col0), s(s_cb), BN))
    a('s_cmp_ge_u32 %s, 4' % s(s_wave))
    a('s_cbranch_scc1 %s' % L('loader'))

    if c.get('prio') == 'c':
        a('s_setprio 1')
    R = Regs(1, 256, 'v')
    vg, vi, vt0, vt1, vt2, vt3 = [R.alloc() for _ in range(6)]
    a('v_lshrrev_b32 %s, 4, v0' % v(vg))
    a('v_and_b32 %s, 15, v0' % v(vi))
    if WN == 1:
        a('s_mov_b32 %s, %s' % (s(s_wm), s(s_wave)))
        a('s_mov_b32 %s, 0' % s(s_wn))
    else:
        assert WN == 2
        a('s_lshr_b32 %s, %s, 1' % (s(s_wm), s(s_wave)))
        a('s_and_b32 %s, %s, 1' % (s(s_wn), s(s_wave)))
    vXa = [R.alloc() for _ in range(2)]
    vXs = [R.alloc() for _ in range(2)]
    a('s_mul_i32 %s, %s, %d' % (s(s_t0), s(s_wm), MT * 16 * 128))
    a('v_lshrrev_b32 %s, 1, %s' % (v(vt0), v(vi)))
    a('v_lshlrev_b32 %s, 7, %s' % (v(vt1), v(vi)))
    a('v_add_u32 %s, %s, %s' % (v(vt1), s(s_t0), v(vt1)))
    for ks in range(2):
        a('v_add_u32 %s, %d, %s' % (v(vt2), 4 * ks, v(vg)))
        a('v_xor_b32 %s, %s, %s' % (v(vt2), v(vt2), v(vt0)))
        a('v_lshl_add_u32 %s, %s, 4, %s' % (v(vXa[ks]), v(vt2), v(vt1)))
    vWa = [R.alloc() for _ in range(NT)]
    vWs = [R.alloc() for _ in range(NT)]
    a('v_lshrrev_b32 %s, 2, %s' % (v(vt0), v(vi)))
    a('v_and_b32 %s, 1, %s' % (v(vt1), v(vg)))
    a('v_lshl_add_u32 %s, %s, 2, %s' % (v(vt0), v(vt1), v(vt0)))
    a('v_lshrrev_b32 %s, 1, %s' % (v(vt1), v(vg)))
    a('v_lshl_add_u32 %s, %s, 4, %s' % (v(vt1), v(vt1), v(vt0)))
    a('v_mul_u32_u24 %s, %d, %s' % (v(vt1), rowW, v(vt1)))
    a('v_and_b32 %s, 1, %s' % (v(vt2), v(vi)))
    a('v_lshl_add_u32 %s, %s, 3, %s' % (v(vt1), v(vt2), v(vt1)))
    a('v_bfe_u32 %s, %s, 1, 1' % (v(vt2), v(vi)))
    a('v_lshl_add_u32 %s, %s, 4, %s' % (v(vt1), v(vt2), v(vt1)))
    a('v_add_u32 %s, %d, %s' % (v(vt1), XB, v(vt1)))
    if rowW == 256:
        a('v_lshlrev_b32 %s, 1, %s' % (v(vt0), v(vt0)))
    else:
        a('v_and_b32 %s, 6, %s' % (v(vt0), v(vt0)))
    for nt in range(NT):
        if LN:
            a('s_lshl_b32 %s, %s, 1' % (s(s_t0), s(s_wave)))
            a('s_add_u32 %s, %s, %d' % (s(s_t0), s(s_t0), nt))
            a('s_and_b32 %s, %s, 7' % (s(s_slot + nt), s(s_t0)))
        else:
            a('s_mul_i32 %s, %s, %d' % (s(s_t0), s(s_wn), NT))
            a('s_add_u32 %s, %s, %d' % (s(s_slot + nt), s(s_t0), nt))
        a('s_lshl_b32 %s, %s, 1' % (s(s_t0), s(s_slot + nt)))
        a('v_xor_b32 %s, %s, %s' % (v(vt2), s(s_t0), v(vt0)))
        a('v_lshl_add_u32 %s, %s, 4, %s' % (v(vWa[nt]), v(vt2), v(vt1)))
    a('s_waitcnt lgkmcnt(0)')
    build_srd(a, sO, pO, c['o'][1], c['obytes'])

    if epi == 'resid':
        build_srd(a, sR, pR, c['r'][1], 2048 * 1280)
        NCH = BM * 8 // 64 // 4
        vOut = [R.alloc() for _ in range(NCH)]
        vRes = [R.alloc(4, 4) for _ in range(NCH)]
        a('s_mul_i32 %s, %s, %d' % (s(s_t0), s(s_wave), NCH * 8))
        a('s_add_u32 %s, %s, %s' % (s(s_t0), s(s_t0), s(s_tok0)))
        a('v_lshrrev_b32 %s, 3, v0' % v(vt0))
        a('v_add_u32 %s, %s, %s' % (v(vt0), s(s_t0), v(vt0)))
        a('v_mul_u32_u24 %s, 1280, %s' % (v(vt0), v(vt0)))
        a('v_and_b32 %s, 7, v0' % v(vt1))
        a('v_lshl_add_u32 %s, %s, 4, %s' % (v(vt0), v(vt1), v(vt0)))
        a('s_lshl_b32 %s, %s, 1' % (s(s_t0), s(s_col0)))
        a('v_add_u32 %s, %s, %s' % (v(vOut[0]), s(s_t0), v(vt0)))
        for j in range(1, NCH):
            a('v_add_u32 %s, %d, %s' % (v(vOut[j]), j * 8 * 1280, v(vOut[0])))
        for j in range(NCH):
            a('buffer_load_dwordx4 %s, %s, %s, 0 offen%s' % (v(vRes[j], 4), v(vOut[j]), s(sR, 4), ' sc1' if (mega and c['r'][0] == 'ws') else ''))

    acc = [[R.alloc(4, 4) for nt in range(NT)] for mt in range(MT)]
    NS = PD + 1
    fX = [[R.alloc(4, 4) for mt in range(MT)] for _ in range(NS)]
    fW = [[R.alloc(4, 4) for nt in range(NT)] for _ in range(NS)]
    nreads = MT + 2 * NT

    def addr(u):
        base = (u % D) * SLOT
        out = []
        for ks in range(2):
            out.append('v_add_u32 %s, 0x%x, %s' % (v(vXs[ks]), base, v(vXa[ks])))
        for j in range(NT):
            out.append('v_add_u32 %s, 0x%x, %s' % (v(vWs[j]), base, v(vWa[j])))
        return out

    def reads(j):
        u, ks = j // 2, j % 2
        setn = j % NS
        out = addr(u) if ks == 0 else []
        if c.get('nocompute') or c.get('noreads'):
            return out
        for mt in range(MT):
            out.append('ds_read_b128 %s, %s offset:%d' % (v(fX[setn][mt], 4), v(vXs[ks]), mt * 2048))
        for nt in range(NT):
            for hf in range(2):
                off = (32 * ks + 8 * hf) * rowW
                out.append('ds_read_b64_tr_b16 %s, %s offset:%d' % (v(fW[setn][nt] + 2 * hf, 2), v(vWs[nt]), off))
        return out

    if LN:
        assert WN == 1 and NT == 8
        vones = R.alloc(4, 4)
        for r in range(4):
            a('v_mov_b32 %s, 0x3f803f80' % v(vones + r))
        accC = [R.alloc(4, 4) for _ in range(2)]
        accS = [R.alloc(4, 4) for _ in range(MT)]
        accG = [R.alloc(4, 4) for _ in range(MT)]

    def mfmas(j):
        setn = j % NS
        first = j == 0
        out = []
        if (c.get('nocompute') or c.get('nomfma')) and not first:
            return out
        M = 'v_mfma_f32_16x16x32_bf16 %s, %s, %s, %s'
        for nt in range(NT):
            for mt in range(MT):
                cc = '0' if first else v(acc[mt][nt], 4)
                out.append(M % (v(acc[mt][nt], 4), v(fW[setn][nt], 4), v(fX[setn][mt], 4), cc))
            if LN and (first or not c.get('nostat')):
                if nt < 2:
                    cc = '0' if first else v(accC[nt], 4)
                    out.append(M % (v(accC[nt], 4), v(fW[setn][nt], 4), v(vones, 4), cc))
                elif nt < 2 + MT:
                    mt = nt - 2
                    cc = '0' if first else v(accS[mt], 4)
                    out.append(M % (v(accS[mt], 4), v(vones, 4), v(fX[setn][mt], 4), cc))
                elif nt < 2 + 2 * MT:
                    mt = nt - 2 - MT
                    cc = '0' if first else v(accG[mt], 4)
                    out.append(M % (v(accG[mt], 4), v(fX[setn][mt], 4), v(fX[setn][mt], 4), cc))
        return out

    J = 2 * S
    dep = c.get('dep') if mega else None
    if dep:
        table, rowsz, ncol, nrow_max = dep
        mg = (1 << 20) // rowsz + 1
        a('s_mul_i32 %s, %s, %d' % (s(s_t0), s(s_tok0), mg))
        a('s_lshr_b32 %s, %s, 20' % (s(s_t0), s(s_t0)))
        a('s_add_u32 %s, %s, %d' % (s(s_t1), s(s_tok0), BM - 1))
        a('s_mul_i32 %s, %s, %d' % (s(s_t1), s(s_t1), mg))
        a('s_lshr_b32 %s, %s, 20' % (s(s_t1), s(s_t1)))
        a('s_min_u32 %s, %s, %d' % (s(s_t1), s(s_t1), nrow_max - 1))
        for tk in range(0, 2200):
            assert (tk * mg) >> 20 == tk // rowsz
        mega_wait(a, table, s_t0, s_t1, ncol, [vt0, vt1, vt2], [s_t4, s_ex], L('dep'))
        a('s_barrier')
    if mega:
        mstamp(a, 1)
    a('s_barrier')
    if mega:
        mstamp(a, 2)
    stamp(a, ST, 1)
    for j in range(min(PD, J)):
        assert j < 2 * GRP
        for x in reads(j):
            a(x)
    for j in range(J):
        younger = min(J - 1, j + PD - 1) - j
        a('s_waitcnt lgkmcnt(%d)' % min(15, younger * nreads))
        M = mfmas(j)
        jn = j + PD
        Rd = reads(jn) if jn < J else []
        need_bar = jn < J and jn % (2 * GRP) == 0
        k = 0
        if need_bar:
            pre = len(M) // 4
            for x in M[:pre]:
                a(x)
            k = pre
            a('s_waitcnt lgkmcnt(0)')
            a('s_barrier')
        rest = M[k:]
        span = max(1, (len(rest) * 3) // 4)
        ri = 0
        for i, x in enumerate(rest):
            a(x)
            want = (len(Rd) * (i + 1) + span - 1) // span if i < span else len(Rd)
            while ri < min(want, len(Rd)):
                a(Rd[ri])
                ri += 1
        while ri < len(Rd):
            a(Rd[ri])
            ri += 1

    stamp(a, ST, 2)
    if mega:
        mstamp(a, 3)
    if LN:
        vmean = [R.alloc(2) for _ in range(MT)]
        vrinv = [R.alloc(2) for _ in range(MT)]
        vcs = [R.alloc(4, 4) for _ in range(NT)]
        T0, T1 = fW[0][0], fW[0][1]
        for j in range(2):
            a('s_lshl_b32 %s, %s, 6' % (s(s_t0), s(s_slot + j)))
            a('v_lshl_add_u32 %s, %s, 4, %s' % (v(vt0), v(vg), s(s_t0)))
            a('v_add_u32 %s, 0x%x, %s' % (v(vt0), SCOL, v(vt0)))
            a('ds_write_b128 %s, %s' % (v(vt0), v(accC[j], 4)))
        a('v_and_b32 %s, 3, %s' % (v(vt0), v(vi)))
        a('v_lshrrev_b32 %s, 2, %s' % (v(vt1), v(vi)))
        a('v_cmp_eq_u32 %s, 1, %s' % (s(s_ex, 2), v(vt0)))
        a('v_cmp_eq_u32 %s, 2, %s' % (s(s_ex + 2, 2), v(vt0)))
        a('v_cmp_eq_u32 vcc, 3, %s' % v(vt0))
        a('v_cmp_eq_u32 %s, %s, %s' % (s(s_m4, 2), v(vt1), v(vg)))
        a('s_mov_b32 %s, 0x3acccccd' % s(s_t1))
        a('v_mov_b32 %s, 0' % v(vt2))
        a('s_waitcnt lgkmcnt(0)')
        a('s_barrier')
        for nt in range(NT):
            a('s_lshl_b32 %s, %s, 6' % (s(s_t0), s(s_slot + nt)))
            a('v_lshl_add_u32 %s, %s, 4, %s' % (v(vt0), v(vg), s(s_t0)))
            a('v_add_u32 %s, 0x%x, %s' % (v(vt0), SCOL, v(vt0)))
            a('ds_read_b128 %s, %s' % (v(vcs[nt], 4), v(vt0)))
        for mt in range(MT):
            Gm = accG[mt]
            a('v_cndmask_b32 %s, %s, %s, %s' % (v(T1), v(Gm), v(Gm + 1), s(s_ex, 2)))
            a('v_cndmask_b32 %s, %s, %s, %s' % (v(T1), v(T1), v(Gm + 2), s(s_ex + 2, 2)))
            a('v_cndmask_b32 %s, %s, %s, vcc' % (v(T1), v(T1), v(Gm + 3)))
            a('v_cndmask_b32 %s, %s, %s, %s' % (v(T1), v(vt2), v(T1), s(s_m4, 2)))
            a('v_mov_b32 %s, %s' % (v(T0), v(T1)))
            a('v_permlane32_swap_b32 %s, %s' % (v(T1), v(T0)))
            a('v_add_f32 %s, %s, %s' % (v(T1), v(T1), v(T0)))
            a('v_mov_b32 %s, %s' % (v(T0), v(T1)))
            a('v_permlane16_swap_b32 %s, %s' % (v(T1), v(T0)))
            a('v_add_f32 %s, %s, %s' % (v(T1), v(T1), v(T0)))
            a('v_mul_f32 %s, %s, %s' % (v(T0), s(s_t1), v(accS[mt])))
            a('v_mul_f32 %s, %s, %s' % (v(T1), s(s_t1), v(T1)))
            a('v_fma_f32 %s, -%s, %s, %s' % (v(T1), v(T0), v(T0), v(T1)))
            a('v_max_f32 %s, 0, %s' % (v(T1), v(T1)))
            bf16_round(a, vmean[mt], T0)
            a('v_xor_b32 %s, 0x80000000, %s' % (v(vmean[mt]), v(vmean[mt])))
            bf16_round(a, T1, T1)
            a('v_add_f32 %s, 0x3727c5ac, %s' % (v(T1), v(T1)))
            bf16_round(a, T1, T1)
            a('v_sqrt_f32 %s, %s' % (v(T1), v(T1)))
            bf16_round(a, T1, T1)
            a('v_rcp_f32 %s, %s' % (v(vrinv[mt]), v(T1)))
        a('s_waitcnt lgkmcnt(0)')
        stamp(a, ST, 4)

    def ln_apply(A, mt, nt, relu):
        for h in range(2):
            a('v_pk_fma_f32 %s, %s, %s, %s op_sel_hi:[1,0,1]' % (v(A + 2 * h, 2), v(vcs[nt] + 2 * h, 2), v(vmean[mt], 2), v(A + 2 * h, 2)))
        for h in range(2):
            a('v_pk_mul_f32 %s, %s, %s op_sel_hi:[1,0]' % (v(A + 2 * h, 2), v(A + 2 * h, 2), v(vrinv[mt], 2)))
        a('v_cvt_pk_bf16_f32 %s, %s, %s' % (v(A), v(A), v(A + 1)))
        a('v_cvt_pk_bf16_f32 %s, %s, %s' % (v(A + 1), v(A + 2), v(A + 3)))
        if relu:
            a('v_pk_max_i16 %s, %s, 0' % (v(A), v(A)))
            a('v_pk_max_i16 %s, %s, 0' % (v(A + 1), v(A + 1)))

    cbuf = [fX[0][0], fX[0][1], fX[1][0], fX[1][1]] + [fW[1][j] for j in range(NT)] + [fW[0][j] for j in range(NT)]

    if epi == 'qkv':
        PS = 288
        assert 4 * 32 * PS <= STG_ROOM
        s_wb = s_kx
        a('s_mul_i32 %s, %s, %d' % (s(s_wb), s(s_wave), 32 * PS))
        a('s_add_u32 %s, %s, 0x%x' % (s(s_wb), s(s_wb), STG))
        vw = R.alloc()
        a('v_mul_u32_u24 %s, %d, %s' % (v(vw), PS, v(vg)))
        a('v_lshl_add_u32 %s, %s, 3, %s' % (v(vw), v(vi), v(vw)))
        a('v_add_u32 %s, %s, %s' % (v(vw), s(s_wb), v(vw)))
        vws = vWa
        for nt in range(NT):
            a('s_mul_i32 %s, %s, %d' % (s(s_t0), s(s_slot + nt), 4 * PS))
            a('v_add_u32 %s, %s, %s' % (v(vws[nt]), s(s_t0), v(vw)))
        for nt in range(NT):
            for mt in range(MT):
                A = acc[mt][nt]
                ln_apply(A, mt, nt, False)
                a('ds_write_b64 %s, %s offset:%d' % (v(vws[nt]), v(A, 2), mt * 128))
        vr, vgo = R.alloc(), R.alloc()
        a('v_mul_u32_u24 %s, %d, %s' % (v(vr), PS, v(vg)))
        a('v_lshl_add_u32 %s, %s, 4, %s' % (v(vr), v(vi), v(vr)))
        a('v_add_u32 %s, %s, %s' % (v(vr), s(s_wb), v(vr)))
        a('s_lshl_b32 %s, %s, 5' % (s(s_t0), s(s_wave)))
        a('s_add_u32 %s, %s, %s' % (s(s_t0), s(s_t0), s(s_tok0)))
        a('s_lshl_b32 %s, %s, 3' % (s(s_t0), s(s_t0)))
        a('s_lshl_b32 %s, %s, 19' % (s(s_t1), s(s_cb)))
        a('s_add_u32 %s, %s, %s' % (s(s_t0), s(s_t0), s(s_t1)))
        a('v_lshlrev_b32 %s, 14, %s' % (v(vgo), v(vg)))
        a('v_lshl_add_u32 %s, %s, 4, %s' % (v(vgo), v(vi), v(vgo)))
        a('v_add_u32 %s, %s, %s' % (v(vgo), s(s_t0), v(vgo)))
        a('s_waitcnt lgkmcnt(0)')
        stamp(a, ST, 5)
        for it in range(8):
            a('ds_read_b128 %s, %s offset:%d' % (v(cbuf[it], 4), v(vr), it * 4 * PS))
        for it in range(8):
            a('s_mov_b32 %s, %d' % (s(s_t0), it * 4 * 16384))
            a('s_waitcnt lgkmcnt(%d)' % (7 - it))
            a('buffer_store_dwordx4 %s, %s, %s, %s offen%s' % (v(cbuf[it], 4), v(vgo), s(sO, 4), s(s_t0), stf))
    elif epi == 'relu':
        RS = 272
        assert 4 * 32 * RS <= STG_ROOM
        s_wb = s_kx
        a('s_mul_i32 %s, %s, %d' % (s(s_wb), s(s_wave), 32 * RS))
        a('s_add_u32 %s, %s, 0x%x' % (s(s_wb), s(s_wb), STG))
        vw = R.alloc()
        a('v_mul_u32_u24 %s, %d, %s' % (v(vw), RS, v(vi)))
        a('v_lshl_add_u32 %s, %s, 3, %s' % (v(vw), v(vg), v(vw)))
        a('v_add_u32 %s, %s, %s' % (v(vw), s(s_wb), v(vw)))
        vws = vWa
        for nt in range(NT):
            a('s_lshl_b32 %s, %s, 5' % (s(s_t0), s(s_slot + nt)))
            a('v_add_u32 %s, %s, %s' % (v(vws[nt]), s(s_t0), v(vw)))
        for nt in range(NT):
            for mt in range(MT):
                A = acc[mt][nt]
                ln_apply(A, mt, nt, True)
                a('ds_write_b64 %s, %s offset:%d' % (v(vws[nt]), v(A, 2), mt * 16 * RS))
        vr, vgo = R.alloc(), R.alloc()
        a('v_mul_u32_u24 %s, %d, %s' % (v(vr), RS, v(vg)))
        a('v_lshl_add_u32 %s, %s, 4, %s' % (v(vr), v(vi), v(vr)))
        a('v_add_u32 %s, %s, %s' % (v(vr), s(s_wb), v(vr)))
        a('s_lshl_b32 %s, %s, 5' % (s(s_t0), s(s_wave)))
        a('s_add_u32 %s, %s, %s' % (s(s_t0), s(s_t0), s(s_tok0)))
        a('v_add_u32 %s, %s, %s' % (v(vgo), s(s_t0), v(vg)))
        a('v_mul_u32_u24 %s, %d, %s' % (v(vgo), N * 2, v(vgo)))
        a('v_lshl_add_u32 %s, %s, 4, %s' % (v(vgo), v(vi), v(vgo)))
        a('s_lshl_b32 %s, %s, 1' % (s(s_t0), s(s_col0)))
        a('v_add_u32 %s, %s, %s' % (v(vgo), s(s_t0), v(vgo)))
        nvalid_chunks = (N - (c['NB'] - 1) * BN) // 8
        a('s_cmp_eq_u32 %s, %d' % (s(s_cb), c['NB'] - 1))
        a('s_cselect_b32 %s, %d, 16' % (s(s_t1), nvalid_chunks))
        a('v_cmp_gt_u32 vcc, %s, %s' % (s(s_t1), v(vi)))
        a('s_waitcnt lgkmcnt(0)')
        stamp(a, ST, 5)
        for it in range(8):
            a('ds_read_b128 %s, %s offset:%d' % (v(cbuf[it], 4), v(vr), it * 4 * RS))
        a('s_and_saveexec_b64 %s, vcc' % s(s_ex, 2))
        for it in range(8):
            a('s_mov_b32 %s, %d' % (s(s_t0), it * 4 * N * 2))
            a('s_waitcnt lgkmcnt(%d)' % (7 - it))
            a('buffer_store_dwordx4 %s, %s, %s, %s offen%s' % (v(cbuf[it], 4), v(vgo), s(sO, 4), s(s_t0), stf))
        a('s_mov_b64 exec, %s' % s(s_ex, 2))
    elif epi == 'resid':
        RS = 144
        assert BM * RS <= STG_ROOM
        vw = R.alloc()
        a('s_mul_i32 %s, %s, %d' % (s(s_t0), s(s_wm), MT * 16 * RS))
        a('s_mul_i32 %s, %s, %d' % (s(s_t1), s(s_wn), NT * 32))
        a('s_add_u32 %s, %s, %s' % (s(s_t0), s(s_t0), s(s_t1)))
        a('s_add_u32 %s, %s, 0x%x' % (s(s_t0), s(s_t0), STG))
        a('v_mul_u32_u24 %s, %d, %s' % (v(vw), RS, v(vi)))
        a('v_lshl_add_u32 %s, %s, 3, %s' % (v(vw), v(vg), v(vw)))
        a('v_add_u32 %s, %s, %s' % (v(vw), s(s_t0), v(vw)))
        for nt in range(NT):
            for mt in range(MT):
                A = acc[mt][nt]
                a('v_cvt_pk_bf16_f32 %s, %s, %s' % (v(A), v(A), v(A + 1)))
                a('v_cvt_pk_bf16_f32 %s, %s, %s' % (v(A + 1), v(A + 2), v(A + 3)))
                a('ds_write_b64 %s, %s offset:%d' % (v(vw), v(A, 2), mt * 16 * RS + nt * 32))
        vr = R.alloc()
        a('s_mul_i32 %s, %s, %d' % (s(s_t0), s(s_wave), NCH * 8 * RS))
        a('s_add_u32 %s, %s, 0x%x' % (s(s_t0), s(s_t0), STG))
        a('v_lshrrev_b32 %s, 3, v0' % v(vr))
        a('v_mul_u32_u24 %s, %d, %s' % (v(vr), RS, v(vr)))
        a('v_and_b32 %s, 7, v0' % v(vt0))
        a('v_lshl_add_u32 %s, %s, 4, %s' % (v(vr), v(vt0), v(vr)))
        a('v_add_u32 %s, %s, %s' % (v(vr), s(s_t0), v(vr)))
        a('s_mov_b32 %s, 0xffff0000' % s(s_t0))
        a('s_waitcnt lgkmcnt(0)')
        a('s_barrier')
        for j in range(NCH):
            a('ds_read_b128 %s, %s offset:%d' % (v(cbuf[j], 4), v(vr), j * 8 * RS))
        a('s_waitcnt vmcnt(0)')
        for j in range(NCH):
            a('s_waitcnt lgkmcnt(%d)' % (NCH - 1 - j))
            Cb, Rr = cbuf[j], vRes[j]
            for h in range(4):
                a('v_lshlrev_b32 %s, 16, %s' % (v(vt0), v(Cb + h)))
                a('v_and_b32 %s, %s, %s' % (v(vt1), s(s_t0), v(Cb + h)))
                a('v_lshlrev_b32 %s, 16, %s' % (v(vt2), v(Rr + h)))
                a('v_and_b32 %s, %s, %s' % (v(vt3), s(s_t0), v(Rr + h)))
                a('v_add_f32 %s, %s, %s' % (v(vt0), v(vt0), v(vt2)))
                a('v_add_f32 %s, %s, %s' % (v(vt1), v(vt1), v(vt3)))
                a('v_cvt_pk_bf16_f32 %s, %s, %s' % (v(Cb + h), v(vt0), v(vt1)))
            a('buffer_store_dwordx4 %s, %s, %s, 0 offen%s' % (v(Cb, 4), v(vOut[j]), s(sO, 4), stf if (c['o'][0] == 'ws' or c.get('outsc1')) else ''))
    if mega:
        mstamp(a, 4)
        a('s_waitcnt vmcnt(0)')
        a('s_barrier')
        if c.get('sig'):
            mega_signal(a, c['sig'], s_rb, s_cb, vt0, s_t0, L('sig'))
        mflush(a, c['kidx'], L('mfl'))
        a('s_branch %s' % L('end'))
    else:
        stamp_flush(a, ST, c.get('kidx', 0), 3, s_wave, L('sdone'))
        a('s_endpgm')
    vmax = 254 if ST else R.hi

    a.label(L('loader'))
    if c.get('prio') == 'l':
        a('s_setprio 1')
    R = Regs(1, 256, 'v')
    vt0, vt1, vt2, vt3, vl3, vl7 = [R.alloc() for _ in range(6)]
    s_lw = s_wave
    a('s_sub_u32 %s, %s, 4' % (s(s_lw), s(s_wave)))
    a('v_lshrrev_b32 %s, 3, v0' % v(vl3))
    a('v_and_b32 %s, 7, v0' % v(vl7))
    vX = [R.alloc() for _ in range(nX)]
    vXj = [R.alloc() for _ in range(nX)]
    vXo = [R.alloc() for _ in range(nX)]
    vW = [R.alloc() for _ in range(nW)]
    a('s_mul_i32 %s, %s, %d' % (s(s_t0), s(s_lw), BM // 4))
    for j in range(nX):
        a('s_add_u32 %s, %s, %d' % (s(s_t1), s(s_t0), 8 * j))
        a('v_add_u32 %s, %s, %s' % (v(vt0), s(s_t1), v(vl3)))
        a('v_bfe_u32 %s, %s, 1, 3' % (v(vt1), v(vt0)))
        a('v_xor_b32 %s, %s, %s' % (v(vt1), v(vt1), v(vl7)))
        a('v_add_u32 %s, %s, %s' % (v(vt0), s(s_tok0), v(vt0)))
        if pairX:
            a('v_mul_u32_u24 %s, 80, %s' % (v(vX[j]), v(vt0)))
            a('v_mov_b32 %s, %s' % (v(vXj[j]), v(vt1)))
        else:
            a('v_mul_u32_u24 %s, %d, %s' % (v(vt0), strideX, v(vt0)))
            a('v_lshl_add_u32 %s, %s, 4, %s' % (v(vX[j]), v(vt1), v(vt0)))
    lg = G.bit_length() - 1
    a('s_lshl_b32 %s, %s, 4' % (s(s_t0), s(s_lw)))
    a('s_lshl_b32 %s, %s, 1' % (s(s_t1), s(s_col0)))
    for j in range(nW):
        a('v_add_u32 %s, %d, v0' % (v(vt0), 64 * j))
        a('v_lshrrev_b32 %s, %d, %s' % (v(vt1), lg, v(vt0)))
        a('v_and_b32 %s, %d, %s' % (v(vt0), G - 1, v(vt0)))
        if rowW == 256:
            a('v_and_b32 %s, 7, %s' % (v(vt2), v(vt1)))
            a('v_lshlrev_b32 %s, 1, %s' % (v(vt2), v(vt2)))
        else:
            a('v_and_b32 %s, 6, %s' % (v(vt2), v(vt1)))
        a('v_xor_b32 %s, %s, %s' % (v(vt0), v(vt0), v(vt2)))
        a('v_and_b32 %s, 3, %s' % (v(vt2), v(vt1)))
        a('v_bfe_u32 %s, %s, 3, 1' % (v(vt3), v(vt1)))
        a('v_lshl_add_u32 %s, %s, 2, %s' % (v(vt2), v(vt3), v(vt2)))
        a('v_bfe_u32 %s, %s, 2, 1' % (v(vt3), v(vt1)))
        a('v_lshl_add_u32 %s, %s, 3, %s' % (v(vt2), v(vt3), v(vt2)))
        a('v_add_u32 %s, %s, %s' % (v(vt2), s(s_t0), v(vt2)))
        a('v_mul_u32_u24 %s, %d, %s' % (v(vt2), strideW, v(vt2)))
        a('v_lshl_add_u32 %s, %s, 4, %s' % (v(vt2), v(vt0), v(vt2)))
        a('v_add_u32 %s, %s, %s' % (v(vW[j]), s(s_t1), v(vt2)))
    a('s_mul_i32 %s, %s, %d' % (s(s_ldsX), s(s_lw), (BM // 4) * 128))
    a('s_mul_i32 %s, %s, %d' % (s(s_ldsW), s(s_lw), 16 * rowW))
    ra, rc = c['rot']
    a('s_mul_i32 %s, %s, %d' % (s(s_t2), s(s_t2), ra))
    a('s_mul_i32 %s, %s, %d' % (s(s_t3), s(s_t3), rc))
    a('s_add_u32 %s, %s, %s' % (s(s_st), s(s_t2), s(s_t3)))
    for _ in range(rot_max // S):
        a('s_cmp_ge_u32 %s, %d' % (s(s_st), S))
        a('s_cselect_b32 %s, %d, 0' % (s(s_t1), S))
        a('s_sub_u32 %s, %s, %s' % (s(s_st), s(s_st), s(s_t1)))
    a('s_lshl_b32 %s, %s, 7' % (s(s_kx), s(s_st)))
    a('s_mul_i32 %s, %s, %d' % (s(s_kw), s(s_st), 64 * strideW))
    a('s_waitcnt lgkmcnt(0)')
    build_srd(a, sX, pX, c['x'][1], c.get('xbytes', 2048 * strideX))
    build_srd(a, sW, pW, 0, K * strideW)

    ops = []
    s_kx2 = s_t4

    def issueW(st):
        base = (st % D) * SLOT
        for j in range(nW):
            a('s_add_u32 m0, %s, 0x%x' % (s(s_ldsW), base + XB + j * 1024))
            a('buffer_load_dwordx4 %s, %s, %s offen lds' % (v(vW[j]), s(sW, 4), s(s_kw)))
            ops.append(st)
        a('s_add_u32 %s, %s, %d' % (s(s_kw), s(s_kw), 64 * strideW))
        a('s_cmp_eq_u32 %s, %d' % (s(s_kw), S * 64 * strideW))
        a('s_cselect_b32 %s, 0, %s' % (s(s_kw), s(s_kw)))

    def issueX(st):
        base = (st % D) * SLOT
        for j in range(nX):
            if pairX:
                a('s_lshr_b32 %s, %s, 4' % (s(s_t0), s(s_kx)))
                a('v_add_u32 %s, %s, %s' % (v(vt0), s(s_t0), v(vXj[j])))
                a('v_mul_u32_u24 %s, 205, %s' % (v(vt1), v(vt0)))
                a('v_lshrrev_b32 %s, 10, %s' % (v(vt1), v(vt1)))
                a('v_mul_u32_u24 %s, 5, %s' % (v(vt2), v(vt1)))
                a('v_sub_u32 %s, %s, %s' % (v(vt0), v(vt0), v(vt2)))
                a('v_mul_u32_u24 %s, 163840, %s' % (v(vt1), v(vt1)))
                a('v_lshl_add_u32 %s, %s, 4, %s' % (v(vt1), v(vt0), v(vt1)))
                a('v_add_u32 %s, %s, %s' % (v(vXo[j]), v(vt1), v(vX[j])))
                a('s_add_u32 m0, %s, 0x%x' % (s(s_ldsX), base + j * 1024))
                a('buffer_load_dwordx4 %s, %s, 0 offen lds%s' % (v(vXo[j]), s(sX, 4), ldf))
            else:
                a('s_add_u32 m0, %s, 0x%x' % (s(s_ldsX), base + j * 1024))
                a('buffer_load_dwordx4 %s, %s, %s offen lds%s' % (v(vX[j]), s(sX, 4), s(s_kx), ldf))
            ops.append(st)
        a('s_add_u32 %s, %s, 128' % (s(s_kx), s(s_kx)))
        a('s_cmp_eq_u32 %s, %d' % (s(s_kx), S * 128))
        a('s_cselect_b32 %s, 0, %s' % (s(s_kx), s(s_kx)))

    def issue(st):
        issueW(st)
        issueX(st)

    def wait_stage(last_needed):
        n = 0
        for tag in reversed(ops):
            if tag <= last_needed:
                break
            n += 1
        a('s_waitcnt vmcnt(%d)' % min(63, n))

    issued = 0
    pf_done = False
    npro = max(GRP, min(D - GRP, S, c.get('pro', 3)))
    if dep:
        for u in range(npro):
            issueW(u)
        a('s_barrier')
        for u in range(npro):
            issueX(u)
        issued = npro
    else:
        for _ in range(npro):
            issue(issued)
            issued += 1
    for g in range(NG):
        last_needed = min(S, (g + 1) * GRP) - 1
        while issued <= last_needed:
            issue(issued)
            issued += 1
        wait_stage(last_needed)
        a('s_barrier')
        n = 0
        while issued < S and issued < (g + DG) * GRP and n < 2 * GRP:
            issue(issued)
            issued += 1
            n += 1
        if mega and issued == S and not pf_done:
            pf_done = True
            for wn in c.get('pfw', ()):
                vtid = R.alloc()
                a('v_lshl_add_u32 %s, %s, 6, v0' % (v(vtid), s(s_lw)))
                n0 = sum('buffer_load_dword ' in l for l in a.lines)
                weight_prefetch(a, wn, vtid, 256, [vt0, vt1, vt2], vt3, sO, MP[wn], [s_t0, s_t1, s_t2], preloaded=True)
                ops.extend([10 ** 9] * (sum('buffer_load_dword ' in l for l in a.lines) - n0))
    if LN:
        a('s_barrier')
    for wn in (() if mega else c.get('pfw', ())):
        vtid = R.alloc()
        a('v_lshl_add_u32 %s, %s, 6, v0' % (v(vtid), s(s_lw)))
        weight_prefetch(a, wn, vtid, 256, [vt0, vt1, vt2], vt3, sO, pO, [s_t0, s_t1, s_t2])
    if mega:
        if epi == 'resid':
            a('s_barrier')
        a('s_barrier')
        a.label(L('end'))
        if c.get('prio'):
            a('s_setprio 0')
    else:
        a.label(L('end'))
        a('s_endpgm')
    vmax = max(vmax, R.hi)
    return dict(name=name, vgpr=vmax, sgpr=90 if ST else 60, lds=lds_total, block=512, grid=256)


CFG_QKV = dict(name='qkv_kernel', kidx=0, BM=128, BN=128, K=640, N=1920, WM=4, WN=1, D=4, LN=True, epi='qkv',
               x=('x', 0), w='wqkv', o=('ws', WS_QKV), obytes=QKV_BYTES, NB=15, map='p2', rb_per_xcd=4, cb_stride=8, rot=(0, 0), prio='l', pfw=('wo',), sig='qkv')
CFG_WO = dict(name='wo_kernel', kidx=2, BM=96, BN=64, K=640, N=640, WM=2, WN=2, D=8, GRP=2, PD=3, pro=6, epi='resid', pairX=True, xbytes=16 * 163840,
              x=('ws', WS_O), w='wo', o=('ws', WS_H), obytes=2048 * 1280, r=('x', 0), map='22x10', rot=(0, 0), prio='l', dep=('attn', 128, 16, 16), sig='wo')
CFG_W1 = dict(name='w1_kernel', kidx=3, BM=128, BN=128, K=640, N=1728, WM=4, WN=1, D=4, LN=True, epi='relu',
              x=('ws', WS_H), w='w1', o=('ws', WS_H1), obytes=2048 * 3456, NB=14, map='p2', rb_per_xcd=4, cb_stride=7, rot=(0, 0), prio='l', pfw=('w2',), dep=('wo', 96, 10, 22), sig='w1')
CFG_W2 = dict(name='w2_kernel', kidx=4, BM=96, BN=64, K=1728, N=640, WM=2, WN=2, D=8, GRP=2, PD=3, pro=6, epi='resid',
              x=('ws', WS_H1), w='w2', o=('out', 0), obytes=2048 * 1280, r=('ws', WS_H), map='22x10', rot=(0, 0), prio='l', dep=('w1', 128, 14, 16), outsc1=1)
```
